```python
import torch

def _softmax(x, axis=-1):
    return torch.softmax(x, dim=axis)
def _gelu(x):
    return torch.nn.functional.gelu(x, approximate="tanh")
def _silu(x):
    return torch.nn.functional.silu(x)
def _sigmoid(x):
    return torch.sigmoid(x)
def _layernorm(x, axis=-1, eps=1e-5):
    m = x.mean(dim=axis, keepdim=True)
    v = x.var(dim=axis, keepdim=True, unbiased=False)
    return (x - m) / torch.sqrt(v + eps)
def _scatter_add(tgt, idx, src, axis=0):
    return tgt.clone().index_add_(axis, idx, src)
def _segment_sum(src, seg, n):
    out = torch.zeros((n,) + src.shape[1:], dtype=src.dtype)
    return out.index_add_(0, seg, src)
def _pad(x, pw):
    flat = tuple(v for pair in reversed(pw) for v in pair)
    return torch.nn.functional.pad(x, flat)

kernel_name = 'standalone__gqa_block_cached__near_ridge'

def setup_inputs():

    _w = (lambda a: (lambda t: t.to(torch.bfloat16) if t.is_floating_point() else t)(torch.as_tensor(a)))
    B, Sq, D = 8, 64, 512
    Hq, Hkv, Sk, Dh = 32, 8, 2048, 128
    assert Hq % Hkv == 0, (Hq, Hkv)
    return {
        "x": _w((lambda *s: torch.randn(*s, dtype=torch.bfloat16) * 0.8)(B, Sq, D)),
        "k_cache": _w((lambda *s: torch.randn(*s, dtype=torch.bfloat16) * 0.8)(B, Hkv, Sk, Dh)),
        "v_cache": _w((lambda *s: torch.randn(*s, dtype=torch.bfloat16) * 0.05)(B, Hkv, Sk, Dh)),
        "wq": _w((lambda *s: torch.randn(*s, dtype=torch.bfloat16) * 0.8)(D, Hq * Dh) * (D ** -0.5)),
        "wo": _w((lambda *s: torch.randn(*s, dtype=torch.bfloat16) * 0.05)(Hq * Dh, D) * ((Hq * Dh) ** -0.5)),
    }

def reference(x, k_cache, v_cache, wq, wo):
    B, Sq, D = x.shape
    Hq, Dh = 32, 128
    Hkv = k_cache.shape[1]
    rep = Hq // Hkv
    q = (lambda x, *d: x.permute(*d))((x @ wq).reshape(B, Sq, Hq, Dh), 0, 2, 1, 3)
    k = (lambda x, n, axis: torch.repeat_interleave(x, n, dim=axis))(k_cache, rep, axis=1)
    v = (lambda x, n, axis: torch.repeat_interleave(x, n, dim=axis))(v_cache, rep, axis=1)
    scores = torch.einsum("bhqd,bhkd->bhqk", q, k) * (Dh ** -0.5)
    p = _softmax(scores, axis=-1)
    o = torch.einsum("bhqk,bhkd->bhqd", p, v)
    return (lambda x, *d: x.permute(*d))(o, 0, 2, 1, 3).reshape(B, Sq, Hq * Dh) @ wo
```

```python
KNAME = "standalone__gqa_block_cached__near_ridge_kernel"

HEADER_COMMENT = """; Kernarg layout (64 bytes, ptrs only, base s[0:1]):
"""

class Asm:
    def __init__(self):
        self.lines = []
    def __call__(self, s=""):
        for l in s.split("\n"):
            self.lines.append(l)
    def label(self, name):
        self.lines.append(name + ":")
    def text(self):
        return "\n".join(self.lines) + "\n"

def kernel_desc(name, vgpr, sgpr, accum, extra=""):
    return f""".section .rodata,"a"
.p2align 6
.amdhsa_kernel {name}
  .amdhsa_next_free_vgpr {vgpr}
  .amdhsa_next_free_sgpr {sgpr}
  .amdhsa_accum_offset {accum}
  .amdhsa_group_segment_fixed_size 0
  .amdhsa_kernarg_size 64
  .amdhsa_user_sgpr_count 2
  .amdhsa_user_sgpr_kernarg_segment_ptr 1
  .amdhsa_system_sgpr_workgroup_id_x 1
  .amdhsa_float_denorm_mode_32 3
{extra}.end_amdhsa_kernel
"""

def kernel_start(name):
    return f""".text
.globl {name}
.p2align 8
.type {name},@function
{name}:
"""
```

```python
import sys, math, struct
from asmlib import *

WS_QF = 0x0000000
WS_OP = 0x0400000
WS_ML = 0x2400000
WS_OF = 0x2500000
WS_PO = 0x2900000
WS_ST = 0x3200000
WS_SIZE = 0x3400000

def vr(a, n=1):
    return f"v{a}" if n == 1 else f"v[{a}:{a+n-1}]"
def ar(a, n=1):
    return f"a{a}" if n == 1 else f"a[{a}:{a+n-1}]"
def sr(a, n=1):
    return f"s{a}" if n == 1 else f"s[{a}:{a+n-1}]"

SCALE = math.log2(math.e) / math.sqrt(128.0)
def f32hex(x):
    return "0x%08x" % struct.unpack("<I", struct.pack("<f", x))[0]

S_W, S_G, S_B, S_J = 3, 4, 5, 6
P_X, P_K, P_V, P_WQ, P_WO, P_OUT, P_DBG, P_WS = 16, 18, 20, 22, 24, 26, 28, 30
R_K, R_V, R_X, R_WQ, R_WO, R_WS, R_OUT, R_WS2 = 32, 36, 40, 44, 48, 52, 56, 60
T0 = 64

def prologue(a, done):
    a(f"""  s_cmp_ge_u32 s2, 256
  s_cbranch_scc1 {done}
  s_load_dwordx16 s[16:31], s[0:1], 0
  v_lshrrev_b32 v1, 6, v0
  v_and_b32 v0, 63, v0
  s_and_b32 s{S_G}, s2, 7
  v_readfirstlane_b32 s{S_W}, v1
  s_lshr_b32 s7, s2, 3
  s_lshr_b32 s{S_B}, s7, 2
  s_and_b32 s{S_J}, s7, 3
  s_waitcnt lgkmcnt(0)""")

def srd(a, r, p, off, size):
    if off is None:
        a(f"  s_mov_b32 s{r}, s{p}")
        a(f"  s_mov_b32 s{r+1}, s{p+1}")
    else:
        a(f"  s_add_u32 s{r}, s{p}, {off}")
        a(f"  s_addc_u32 s{r+1}, s{p+1}, 0")
    a(f"  s_mov_b32 s{r+2}, {size}")
    a(f"  s_mov_b32 s{r+3}, 0x20000")

def R(r):
    return f"s[{r}:{r+3}]"

def tr_addr(a, dst, tile_sgpr_or_int, sigma, row_mode, tmp):
    t0, t1, t2, t3 = tmp, tmp+1, tmp+2, tmp+3
    a(f"  v_bfe_u32 v{t0}, v0, 4, 1            ; gi")
    a(f"  v_and_b32 v{t1}, 3, v0               ; c'")
    if sigma:
        a(f"  v_and_b32 v{t2}, 1, v{t1}")
        a(f"  v_lshrrev_b32 v{t1}, 1, v{t1}")
    else:
        a(f"  v_lshrrev_b32 v{t2}, 1, v{t1}")
        a(f"  v_and_b32 v{t1}, 1, v{t1}")
    a(f"  v_lshl_add_u32 v{t2}, v{t0}, 1, v{t2}")
    if isinstance(tile_sgpr_or_int, int):
        a(f"  v_add_u32 v{t2}, {4*tile_sgpr_or_int}, v{t2}")
    else:
        a(f"  v_add_u32 v{t2}, {tile_sgpr_or_int}, v{t2}")
    a(f"  v_bfe_u32 v{t0}, v0, 2, 2            ; r'")
    a(f"  v_lshlrev_b32 v{t3}, 2, v{t0}")
    a(f"  v_xor_b32 v{t2}, v{t2}, v{t3}")
    a(f"  v_lshlrev_b32 v{t2}, 4, v{t2}")
    a(f"  v_lshl_add_u32 v{t2}, v{t1}, 3, v{t2}")
    a(f"  v_lshrrev_b32 v{t3}, 5, v0           ; hf")
    a(f"  v_lshl_add_u32 v{t3}, v{t3}, {3 if row_mode=='nat' else 2}, v{t0}")
    a(f"  v_lshl_add_u32 v{dst}, v{t3}, 8, v{t2}")

def p1(a):
    a(f"  s_lshl_b32 s{T0}, s{S_B}, 16")
    srd(a, R_X, P_X, f"s{T0}", "0x10000")
    a(f"  s_lshl_b32 s{T0}, s{S_G}, 2")
    a(f"  s_add_u32 s{T0}, s{T0}, s{S_J}          ; h_own")
    a(f"  s_lshl_b32 s{T0+1}, s{T0}, 8")
    srd(a, R_WQ, P_WQ, f"s{T0+1}", "0x400000")
    a(f"  s_sub_u32 s{R_WQ+2}, s{R_WQ+2}, s{T0+1}")
    a(f"  s_lshl_b32 s{T0+2}, s{S_B}, 5")
    a(f"  s_add_u32 s{T0+2}, s{T0+2}, s{T0}")
    a(f"  s_lshl_b32 s{T0+2}, s{T0+2}, 14")
    a(f"  s_add_u32 s{T0+2}, s{T0+2}, {WS_QF}")
    srd(a, R_WS, P_WS, f"s{T0+2}", "0x4000")
    a("""  v_lshrrev_b32 v2, 4, v0             ; l>>4
  v_and_b32 v3, 15, v0                ; l&15
  v_lshrrev_b32 v4, 3, v0
  v_and_b32 v5, 7, v0                 ; l&7
  v_xor_b32 v6, v5, v2
  v_lshlrev_b32 v6, 4, v6
  v_lshl_add_u32 v10, v4, 10, v6
  v_add_u32 v7, 4, v2
  v_xor_b32 v6, v5, v7
  v_lshlrev_b32 v6, 4, v6
  v_lshl_add_u32 v11, v4, 10, v6
  v_lshlrev_b32 v6, 2, v2
  v_xor_b32 v6, v6, v3
  v_lshlrev_b32 v6, 4, v6
  v_lshl_add_u32 v12, v2, 13, v6""")
    a(f"  s_lshl_b32 s{T0+3}, s{S_W}, 2")
    tr_addr(a, 13, f"s{T0+3}", True, 'nat', 4)
    a("""  v_add_u32 v13, 0x8000, v13
  v_and_b32 v6, 31, v0
  v_lshrrev_b32 v7, 5, v0
  v_bfe_u32 v8, v0, 1, 3              ; (q>>1)&7""")
    for ks in range(4):
        a(f"  v_add_u32 v9, {2*ks}, v7")
        a(f"  v_xor_b32 v9, v9, v8")
        a(f"  v_lshlrev_b32 v9, 4, v9")
        a(f"  v_lshl_add_u32 v{14+ks}, v6, 7, v9")
    sXg, sXl, sWg, sWl, sO = T0+4, T0+5, T0+6, T0+7, T0+8
    a(f"  s_lshl_b32 s{sXg}, s{S_W}, 14")
    a(f"  s_lshl_b32 s{sXl}, s{S_W}, 11")
    a(f"  s_lshl_b32 s{sWg}, s{S_W}, 17")
    a(f"  s_lshl_b32 s{sWl}, s{S_W}, 12")
    NCH = 4
    def issue(kc):
        slot = kc % NCH
        for ii in range(2):
            a(f"  s_add_u32 m0, s{sXl}, {slot*8192 + ii*1024}")
            a(f"  s_add_u32 s{sO}, s{sXg}, {ii*8192 + kc*128}")
            a(f"  buffer_load_dwordx4 v{10+ii}, {R(R_X)}, s{sO} offen lds")
        for ii in range(4):
            a(f"  s_add_u32 m0, s{sWl}, {0x8000 + slot*16384 + ii*1024}")
            a(f"  s_add_u32 s{sO}, s{sWg}, {kc*64*8192 + ii*32768}")
            a(f"  buffer_load_dwordx4 v12, {R(R_WQ)}, s{sO} offen lds")
    AF, BF, ACC = 32, 64, 128
    def reads(kc):
        slot = kc % NCH; buf = kc & 1
        for ks in range(4):
            for rd in range(2):
                a(f"  ds_read_b64_tr_b16 {vr(AF+buf*16+ks*4+rd*2,2)}, v13 offset:{slot*16384+ks*4096+rd*1024}")
            for qt in range(2):
                a(f"  ds_read_b128 {vr(BF+buf*32+ks*8+qt*4,4)}, v{14+ks} offset:{slot*8192+qt*4096}")
    for kc in range(3):
        issue(kc)
    for i in range(32):
        a(f"  v_mov_b32 v{ACC+i}, 0")
    a("  s_waitcnt vmcnt(12)")
    a("  s_barrier")
    reads(0)
    for c in range(8):
        if c + 1 < 8:
            last_issued = min(c + 2, 7)
            a(f"  s_waitcnt vmcnt({6*(last_issued-(c+1))})")
            a("  s_barrier")
            if c + 3 < 8:
                issue(c + 3)
        a("  s_waitcnt lgkmcnt(0)")
        if c + 1 < 8:
            reads(c + 1)
        buf = c & 1
        for ks in range(4):
            for qt in range(2):
                a(f"  v_mfma_f32_32x32x16_bf16 {vr(ACC+16*qt,16)}, {vr(AF+buf*16+ks*4,4)}, {vr(BF+buf*32+ks*8+qt*4,4)}, {vr(ACC+16*qt,16)}")
    a("  s_nop 15")
    a(f"  s_mov_b32 s{sO}, {f32hex(SCALE)}")
    for i in range(32):
        a(f"  v_mul_f32 v{ACC+i}, s{sO}, v{ACC+i}")
    for qt in range(2):
        for s in range(2):
            for p in range(4):
                r = ACC + 16*qt + 8*s + 2*p
                a(f"  v_cvt_pk_bf16_f32 v{32+qt*8+s*4+p}, v{r}, v{r+1}")
    a("  v_lshlrev_b32 v1, 4, v0")
    a(f"  s_lshl_b32 s{sO}, s{S_W}, 11        ; 2w*1024")
    for qt in range(2):
        for s in range(2):
            a(f"  s_add_u32 s{sO+1}, s{sO}, {qt*8192 + s*1024}")
            a(f"  buffer_store_dwordx4 {vr(32+qt*8+s*4,4)}, v1, {R(R_WS)}, s{sO+1} offen")
    a("  s_waitcnt vmcnt(0)")

NSTEP = 16
def p2(a):
    a(f"  s_lshl_b32 s{T0}, s{S_B}, 3")
    a(f"  s_add_u32 s{T0}, s{T0}, s{S_G}")
    a(f"  s_lshl_b32 s{T0}, s{T0}, 19")
    a(f"  s_lshl_b32 s{T0+1}, s{S_J}, 17")
    a(f"  s_add_u32 s{T0}, s{T0}, s{T0+1}")
    srd(a, R_K, P_K, f"s{T0}", "0x20000")
    srd(a, R_V, P_V, f"s{T0}", "0x20000")
    a(f"  s_lshl_b32 s{T0+2}, s{S_G}, 2")
    a(f"  s_add_u32 s{T0+2}, s{T0+2}, s{S_W}")
    a(f"  s_lshl_b32 s{T0+3}, s{S_B}, 5")
    a(f"  s_add_u32 s{T0+3}, s{T0+3}, s{T0+2}")
    a(f"  s_lshl_b32 s{T0+3}, s{T0+3}, 14")
    a(f"  s_add_u32 s{T0+3}, s{T0+3}, {WS_QF}")
    srd(a, R_WS, P_WS, f"s{T0+3}", "0x4000")
    AO, AQ, AK, AV = 0, 128, 192, 224
    VKD = 10
    VVD = 12
    VKA = 16
    VVA = 24
    VL = 28
    VS = 32
    VP = 96
    VN = 128
    VM = 30
    a("  v_lshlrev_b32 v1, 4, v0")
    for qt in range(2):
        for ks in range(8):
            off = qt*8192 + ks*1024
            if off < 4096:
                a(f"  buffer_load_dwordx4 {ar(AQ+qt*32+ks*4,4)}, v1, {R(R_WS)}, 0 offen offset:{off}")
            else:
                a(f"  s_mov_b32 s{T0+4}, {off & ~4095}")
                a(f"  buffer_load_dwordx4 {ar(AQ+qt*32+ks*4,4)}, v1, {R(R_WS)}, s{T0+4} offen offset:{off & 4095}")
    a("""  v_lshrrev_b32 v2, 4, v0             ; l>>4
  v_and_b32 v3, 15, v0""")
    a(f"  s_lshl_b32 s{T0+4}, s{S_W}, 3       ; 8w")
    for i in range(2):
        a(f"  v_add_u32 v4, s{T0+4}, v2           ; 8w + (l>>4)")
        a(f"  v_add_u32 v5, {4*i}, v4")
        a(f"  v_and_b32 v5, 15, v5")
        a(f"  v_xor_b32 v5, v5, v3")
        a(f"  v_lshlrev_b32 v5, 4, v5")
        a(f"  v_lshl_add_u32 v{VKD+i}, v4, 8, v5")
    a(f"  v_lshlrev_b32 v5, 2, v2")
    a(f"  v_xor_b32 v5, v5, v3")
    a(f"  v_lshlrev_b32 v5, 4, v5")
    a(f"  v_lshl_add_u32 v{VVD}, v4, 8, v5")
    a("""  v_and_b32 v4, 31, v0
  v_lshrrev_b32 v5, 5, v0
  v_and_b32 v6, 15, v0""")
    for ks in range(8):
        a(f"  v_add_u32 v7, {2*ks}, v5")
        a(f"  v_xor_b32 v7, v7, v6")
        a(f"  v_lshlrev_b32 v7, 4, v7")
        a(f"  v_lshl_add_u32 v{VKA+ks}, v4, 8, v7")
    for t in range(4):
        tr_addr(a, VVA+t, t, False, 'pv', 4)
        a(f"  v_add_u32 v{VVA+t}, 0x10000, v{VVA+t}")
    sLw, sTile = T0+5, T0+6
    a(f"  s_lshl_b32 s{sLw}, s{S_W}, 11       ; w*2048")
    RK = RV = 8
    def dmaK(i):
        a(f"  s_add_u32 m0, s{sLw}, {(i%RK)*8192}")
        a(f"  s_mov_b32 s{sTile}, {i*8192}")
        for ii in range(2):
            a(f"  buffer_load_dwordx4 v{VKD+ii}, {R(R_K)}, s{sTile} offen offset:{ii*1024} nt lds")
    def dmaV(i):
        a(f"  s_add_u32 m0, s{sLw}, {0x10000+(i%RV)*8192}")
        a(f"  s_mov_b32 s{sTile}, {i*8192}")
        for ii in range(2):
            a(f"  buffer_load_dwordx4 v{VVD}, {R(R_V)}, s{sTile} offen offset:{ii*1024} nt lds")
    def readK(i, ks):
        a(f"  ds_read_b128 {ar(AK+ks*4,4)}, v{VKA+ks} offset:{(i%RK)*8192}")
    def readV(i, t, s, rd):
        a(f"  ds_read_b64_tr_b16 {ar(AV+(t*2+s)*4+rd*2,2)}, v{VVA+t} offset:{(i%RV)*8192+s*4096+rd*2048}")
    order = []
    def issue(kind, i):
        (dmaK if kind == 'K' else dmaV)(i); order.append((kind, i))
    issue('K', 0); issue('K', 1)
    for i in range(2, RK):
        issue('V', i-2); issue('K', i)
    issue('V', RK-2)
    def wait_for(items):
        last = max(order.index(it) for it in items)
        n = 2 * (len(order) - 1 - last)
        a(f"  s_waitcnt vmcnt({n})")
    for r in range(128):
        a(f"  v_accvgpr_write_b32 a{AO+r}, 0")
    a(f"  v_mov_b32 v{VL}, 0")
    a(f"  v_mov_b32 v{VL+1}, 0")
    def qk(i, first=False):
        buf = i & 1
        out = []
        for ks in range(8):
            for qt in range(2):
                d = vr(VS+buf*32+qt*16, 16)
                c = d if ks > 0 else ("0" if first else vr(VN+qt*16, 16))
                out.append(f"  v_mfma_f32_32x32x16_bf16 {d}, {ar(AK+ks*4,4)}, {ar(AQ+qt*32+ks*4,4)}, {c}")
        return out
    def pv(i):
        buf = i & 1
        out = []
        for s in range(2):
            for t in range(4):
                for qt in range(2):
                    d = ar(AO+(t*2+qt)*16, 16)
                    out.append(f"  v_mfma_f32_32x32x16_bf16 {d}, {ar(AV+(t*2+s)*4,4)}, {vr(VP+buf*16+qt*8+s*4,4)}, {d}")
        return out
    def softmax(i):
        buf = i & 1
        out = []
        for qt in range(2):
            for s in range(2):
                for p in range(4):
                    r = VS+buf*32+qt*16+s*8+2*p
                    out.append(f"  v_exp_f32 v{r}, v{r}")
                    out.append(f"  v_exp_f32 v{r+1}, v{r+1}")
                    out.append(f"  v_add_f32 v{VL+qt}, v{VL+qt}, v{r}")
                    out.append(f"  v_cvt_pk_bf16_f32 v{VP+buf*16+qt*8+s*4+p}, v{r}, v{r+1}")
                    out.append(f"  v_add_f32 v{VL+qt}, v{VL+qt}, v{r+1}")
        return out
    wait_for([('K', 0)])
    a("  s_barrier")
    for ks in range(8):
        readK(0, ks)
    a("  s_waitcnt lgkmcnt(0)")
    for m in qk(0, True): a(m)
    a("  s_nop 15")
    for qt in range(2):
        r = VS + qt*16
        a(f"  v_max3_f32 v{VM+qt}, v{r}, v{r+1}, v{r+2}")
        for k in range(3, 15, 2):
            a(f"  v_max3_f32 v{VM+qt}, v{VM+qt}, v{r+k}, v{r+k+1}")
        a(f"  v_max_f32 v{VM+qt}, v{VM+qt}, v{r+15}")
        a(f"  v_mov_b32 v4, v{VM+qt}")
        a("  s_nop 1")
        a(f"  v_permlane32_swap_b32 v{VM+qt}, v4")
        a("  s_nop 1")
        a(f"  v_max_f32 v{VM+qt}, v{VM+qt}, v4")
        for k in range(16):
            a(f"  v_sub_f32 v{VN+qt*16+k}, 0, v{VM+qt}")
        for k in range(16):
            a(f"  v_sub_f32 v{r+k}, v{r+k}, v{VM+qt}")
    for i in range(NSTEP):
        items = [('V', i)] + ([('K', i+1)] if i+1 < NSTEP else [])
        wait_for(items)
        a("  s_barrier")
        if i + RK < NSTEP: issue('K', i+RK)
        if i - 1 + RV < NSTEP and i - 1 + RV > RK - 2: issue('V', i-1+RV)
        for t in range(4):
            for s in range(2):
                for rd in range(2):
                    readV(i, t, s, rd)
        for m in softmax(i): a(m)
        a("  s_waitcnt lgkmcnt(0)")
        if i + 1 < NSTEP:
            for ks in range(8):
                readK(i+1, ks)
        for m in pv(i): a(m)
        if i + 1 < NSTEP:
            a("  s_waitcnt lgkmcnt(0)")
            for m in qk(i+1): a(m)
            a("  s_nop 15")
    a("  s_nop 15")
    for qt in range(2):
        a(f"  v_mov_b32 v4, v{VL+qt}")
        a("  s_nop 1")
        a(f"  v_permlane32_swap_b32 v{VL+qt}, v4")
        a("  s_nop 1")
        a(f"  v_add_f32 v{VL+qt}, v{VL+qt}, v4")
    a(f"  s_lshl_b32 s{T0}, s{S_B}, 3")
    a(f"  s_add_u32 s{T0}, s{T0}, s{S_G}")
    a(f"  s_lshl_b32 s{T0}, s{T0}, 2")
    a(f"  s_add_u32 s{T0}, s{T0}, s{S_J}")
    a(f"  s_lshl_b32 s{T0}, s{T0}, 2")
    a(f"  s_add_u32 s{T0}, s{T0}, s{S_W}        ; ((b*8+g)*4+j)*4+w")
    a(f"  s_lshl_b32 s{T0+1}, s{T0}, 15")
    a(f"  s_add_u32 s{T0+1}, s{T0+1}, {WS_OP}")
    srd(a, R_WS, P_WS, f"s{T0+1}", "0x8000")
    a(f"  s_lshl_b32 s{T0+1}, s{T0}, 9")
    a(f"  s_add_u32 s{T0+1}, s{T0+1}, {WS_ML}")
    srd(a, R_WS2, P_WS, f"s{T0+1}", "0x200")
    a("  v_lshlrev_b32 v1, 4, v0")
    for n in range(32):
        off = n * 1024
        a(f"  s_mov_b32 s{T0+4}, {off & ~4095}")
        a(f"  buffer_store_dwordx4 {ar(AO+n*4,4)}, v1, {R(R_WS)}, s{T0+4} offen offset:{off & 4095}")
    a(f"  v_mov_b32 v4, v{VM}")
    a(f"  v_mov_b32 v5, v{VL}")
    a(f"  v_mov_b32 v6, v{VM+1}")
    a(f"  v_mov_b32 v7, v{VL+1}")
    a("  s_nop 1")
    a(f"  buffer_store_dwordx4 v[4:7], v1, {R(R_WS2)}, 0 offen")
    a("  s_waitcnt vmcnt(0)")

def p3(a):
    a(f"  s_lshl_b32 s{T0}, s{S_B}, 3")
    a(f"  s_add_u32 s{T0}, s{T0}, s{S_G}")
    a(f"  s_lshl_b32 s{T0}, s{T0}, 4")
    a(f"  s_add_u32 s{T0}, s{T0}, s{S_J}")
    a(f"  s_lshl_b32 s{T0+1}, s{T0}, 15")
    a(f"  s_add_u32 s{T0+1}, s{T0+1}, {WS_OP}")
    srd(a, R_WS, P_WS, f"s{T0+1}", "0x80000")
    a(f"  s_lshl_b32 s{T0+1}, s{T0}, 9")
    a(f"  s_add_u32 s{T0+1}, s{T0+1}, {WS_ML}")
    srd(a, R_WS2, P_WS, f"s{T0+1}", "0x2000")
    a("  v_lshlrev_b32 v1, 4, v0")
    a("  v_and_b32 v2, 31, v0")
    a("  v_lshlrev_b32 v2, 4, v2")
    for jp in range(4):
        a(f"  s_mov_b32 s{T0+2}, {jp*2048}")
        a(f"  buffer_load_dwordx4 {vr(16+jp*4,4)}, v2, {R(R_WS2)}, s{T0+2} offen")
    a(f"  s_lshl_b32 s{T0+3}, s{S_W}, 13      ; t*8192")
    VO = 64
    for jp in range(4):
        for n in range(8):
            off = jp*4*32768 + n*1024
            a(f"  s_add_u32 s{T0+2}, s{T0+3}, {off & ~4095}")
            a(f"  buffer_load_dwordx4 {vr(VO+jp*32+n*4,4)}, v1, {R(R_WS)}, s{T0+2} offen offset:{off & 4095}")
    a("  s_waitcnt vmcnt(32)")
    for qt in range(2):
        m = lambda jp: 16+jp*4+qt*2
        l = lambda jp: 16+jp*4+qt*2+1
        a(f"  v_max3_f32 v4, v{m(0)}, v{m(1)}, v{m(2)}")
        a(f"  v_max_f32 v4, v4, v{m(3)}")
        for jp in range(4):
            a(f"  v_sub_f32 v{m(jp)}, v{m(jp)}, v4")
        for jp in range(4):
            a(f"  v_exp_f32 v{m(jp)}, v{m(jp)}")
        a("  s_nop 0")
        a(f"  v_mul_f32 v5, v{m(0)}, v{l(0)}")
        for jp in range(1, 4):
            a(f"  v_fmac_f32 v5, v{m(jp)}, v{l(jp)}")
        a(f"  v_rcp_f32 v5, v5")
        a("  s_nop 0")
        for jp in range(4):
            a(f"  v_mul_f32 v{m(jp)}, v{m(jp)}, v5")
    a("  s_waitcnt vmcnt(0)")
    for qt in range(2):
        for k in range(16):
            r = lambda jp: VO+jp*32+qt*16+k
            a(f"  v_mul_f32 v{r(0)}, v{16+qt*2}, v{r(0)}")
            for jp in range(1, 4):
                a(f"  v_fmac_f32 v{r(0)}, v{16+jp*4+qt*2}, v{r(jp)}")
    for qt in range(2):
        for s in range(2):
            for p in range(4):
                r = VO + qt*16 + s*8 + 2*p
                a(f"  v_cvt_pk_bf16_f32 v{32+qt*8+s*4+p}, v{r}, v{r+1}")
    a(f"  s_lshl_b32 s{T0}, s{S_G}, 2")
    a(f"  s_add_u32 s{T0}, s{T0}, s{S_J}")
    a(f"  s_lshl_b32 s{T0+1}, s{S_B}, 5")
    a(f"  s_add_u32 s{T0+1}, s{T0+1}, s{T0}")
    a(f"  s_lshl_b32 s{T0+1}, s{T0+1}, 14")
    a(f"  s_add_u32 s{T0+1}, s{T0+1}, {WS_OF}")
    srd(a, R_OUT, P_WS, f"s{T0+1}", "0x4000")
    a(f"  s_lshl_b32 s{T0+2}, s{S_W}, 11")
    for qt in range(2):
        for s in range(2):
            a(f"  s_add_u32 s{T0+3}, s{T0+2}, {qt*8192+s*1024}")
            a(f"  buffer_store_dwordx4 {vr(32+qt*8+s*4,4)}, v1, {R(R_OUT)}, s{T0+3} offen")
    a("  s_waitcnt vmcnt(0)")

def p4(a):
    a(f"  s_lshl_b32 s{T0}, s{S_G}, 19        ; g*512*1024")
    a(f"  s_lshl_b32 s{T0+1}, s{S_J}, 8")
    a(f"  s_add_u32 s{T0}, s{T0}, s{T0+1}")
    srd(a, R_WO, P_WO, f"s{T0}", "0x400000")
    a(f"  s_sub_u32 s{R_WO+2}, s{R_WO+2}, s{T0}")
    a(f"  s_lshl_b32 s{T0+1}, s{S_B}, 5")
    a(f"  s_lshl_b32 s{T0+2}, s{S_G}, 2")
    a(f"  s_add_u32 s{T0+1}, s{T0+1}, s{T0+2}")
    a(f"  s_lshl_b32 s{T0+1}, s{T0+1}, 14")
    a(f"  s_add_u32 s{T0+1}, s{T0+1}, {WS_OF}")
    srd(a, R_WS, P_WS, f"s{T0+1}", "0x10000")
    a("""  v_lshrrev_b32 v2, 4, v0
  v_and_b32 v3, 15, v0
  v_lshlrev_b32 v6, 2, v2
  v_xor_b32 v6, v6, v3
  v_lshlrev_b32 v6, 4, v6
  v_lshl_add_u32 v12, v2, 10, v6
  v_lshlrev_b32 v1, 4, v0""")
    a(f"  s_lshl_b32 s{T0+2}, s{S_W}, 15      ; lds w*32768")
    a(f"  s_lshl_b32 s{T0+3}, s{S_W}, 17      ; global w*128*1024")
    for i in range(32):
        a(f"  s_add_u32 m0, s{T0+2}, {i*1024}")
        a(f"  s_add_u32 s{T0+4}, s{T0+3}, {i*4096}")
        a(f"  buffer_load_dwordx4 v12, {R(R_WO)}, s{T0+4} offen lds")
    for n in range(64):
        off = n*1024
        a(f"  s_mov_b32 s{T0+4}, {off & ~4095}")
        a(f"  buffer_load_dwordx4 {ar(n*4,4)}, v1, {R(R_WS)}, s{T0+4} offen offset:{off & 4095}")
        if n == 30:
            a("  s_waitcnt vmcnt(30)")
    a(f"  s_lshl_b32 s{T0+4}, s{S_W}, 2")
    tr_addr(a, 13, f"s{T0+4}", True, 'pv', 4)
    a("  v_add_u32 v14, 0x10000, v13")
    ACC = 128
    for i in range(32):
        a(f"  v_mov_b32 v{ACC+i}, 0")
    a("  s_waitcnt vmcnt(0)")
    a("  s_barrier")
    AF = 32
    def rd(kk, buf):
        for r_ in range(2):
            off = kk*4096 + r_*2048
            a(f"  ds_read_b64_tr_b16 {vr(AF+buf*4+r_*2,2)}, v{13+(off>>16)} offset:{off & 65535}")
    NB = 8
    for kk in range(NB-1): rd(kk, kk % NB)
    for kk in range(32):
        if kk + NB - 1 < 32:
            rd(kk+NB-1, (kk+NB-1) % NB)
            a(f"  s_waitcnt lgkmcnt({2*(NB-1)})")
        else:
            a(f"  s_waitcnt lgkmcnt({2*(31-kk)})")
        hh, ks = kk >> 3, kk & 7
        for qt in range(2):
            a(f"  v_mfma_f32_32x32x16_bf16 {vr(ACC+16*qt,16)}, {vr(AF+(kk%NB)*4,4)}, {ar((hh*16+qt*8+ks)*4,4)}, {vr(ACC+16*qt,16)}")
    a("  s_nop 15")
    a(f"  s_lshl_b32 s{T0}, s{S_B}, 2")
    a(f"  s_add_u32 s{T0}, s{T0}, s{S_J}")
    a(f"  s_lshl_b32 s{T0}, s{T0}, 3")
    a(f"  s_add_u32 s{T0}, s{T0}, s{S_G}")
    a(f"  s_lshl_b32 s{T0}, s{T0}, 15")
    a(f"  s_add_u32 s{T0}, s{T0}, {WS_PO}")
    srd(a, R_OUT, P_WS, f"s{T0}", "0x8000")
    a(f"  s_lshl_b32 s{T0+1}, s{S_W}, 13")
    for n in range(8):
        off = n*1024
        a(f"  s_add_u32 s{T0+2}, s{T0+1}, {off & ~4095}")
        a(f"  buffer_store_dwordx4 {vr(ACC+n*4,4)}, v1, {R(R_OUT)}, s{T0+2} offen offset:{off & 4095}")
    a("  s_waitcnt vmcnt(0)")

def p5(a):
    a(f"  s_lshl_b32 s{T0}, s{S_B}, 2")
    a(f"  s_add_u32 s{T0}, s{T0}, s{S_J}")
    a(f"  s_lshl_b32 s{T0}, s{T0}, 18        ; (b*4+j)*8*32768")
    a(f"  s_add_u32 s{T0}, s{T0}, {WS_PO}")
    srd(a, R_WS, P_WS, f"s{T0}", "0x40000")
    a(f"  s_lshl_b32 s{T0+1}, s{S_G}, 12      ; (wn*2+qt)*4096")
    a(f"  s_lshl_b32 s{T0+2}, s{S_W}, 10")
    a(f"  s_add_u32 s{T0+1}, s{T0+1}, s{T0+2}")
    a("  v_lshlrev_b32 v1, 4, v0")
    for gp in range(8):
        a(f"  s_add_u32 s{T0+2}, s{T0+1}, {gp*32768}")
        a(f"  buffer_load_dwordx4 {vr(16+gp*4,4)}, v1, {R(R_WS)}, s{T0+2} offen")
    srd(a, R_OUT, P_OUT, None, "0x80000")
    a(f"  s_lshl_b32 s{T0+3}, s{S_B}, 6")
    a(f"  s_and_b32 s{T0+4}, s{S_G}, 1")
    a(f"  s_lshl_b32 s{T0+4}, s{T0+4}, 5")
    a(f"  s_add_u32 s{T0+3}, s{T0+3}, s{T0+4}")
    a(f"  s_lshl_b32 s{T0+3}, s{T0+3}, 10")
    a(f"  s_lshl_b32 s{T0+4}, s{S_J}, 7")
    a(f"  s_lshr_b32 s{T0+5}, s{S_G}, 1")
    a(f"  s_lshl_b32 s{T0+5}, s{T0+5}, 5")
    a(f"  s_add_u32 s{T0+4}, s{T0+4}, s{T0+5}")
    a(f"  s_lshr_b32 s{T0+5}, s{S_W}, 1")
    a(f"  s_lshl_b32 s{T0+5}, s{T0+5}, 4")
    a(f"  s_add_u32 s{T0+4}, s{T0+4}, s{T0+5}")
    a(f"  s_and_b32 s{T0+5}, s{S_W}, 1")
    a(f"  s_lshl_b32 s{T0+5}, s{T0+5}, 2")
    a(f"  s_add_u32 s{T0+4}, s{T0+4}, s{T0+5}   ; col")
    a(f"  s_lshl_b32 s{T0+4}, s{T0+4}, 1")
    a(f"  s_add_u32 s{T0+3}, s{T0+3}, s{T0+4}")
    a("""  v_and_b32 v2, 31, v0
  v_lshrrev_b32 v3, 5, v0
  v_lshlrev_b32 v2, 10, v2
  v_lshl_add_u32 v2, v3, 4, v2""")
    a("  s_waitcnt vmcnt(0)")
    for k in range(4):
        for gp in range(1, 8):
            a(f"  v_add_f32 v{16+k}, v{16+k}, v{16+gp*4+k}")
    a("  v_cvt_pk_bf16_f32 v4, v16, v17")
    a("  v_cvt_pk_bf16_f32 v5, v18, v19")
    a("  s_nop 1")
    a(f"  buffer_store_dwordx2 v[4:5], v2, {R(R_OUT)}, s{T0+3} offen")
    a("  s_waitcnt vmcnt(0)")

def build():
    a = Asm()
    a(HEADER_COMMENT.rstrip())
    names = ["p1_kernel", "p2_kernel", "p3_kernel", "p4_kernel", "p5_kernel"]
    lds = [98304, 131072, 0, 131072, 0]
    for n, l in zip(names, lds):
        a(f"; @launch kernel={n} grid=(256,1,1) block=(256,1,1) lds={l}")
    a('.amdgcn_target "amdgcn-amd-amdhsa--gfx950"')
    fns = [p1, p2, p3, p4, p5]
    for n, f in zip(names, fns):
        a(kernel_start(n).rstrip())
        prologue(a, f"L_done_{n}")
        f(a)
        a(f"L_done_{n}:")
        a("  s_endpgm")
    regs = [(160, 160), (512, 256), (192, 192), (512, 256), (64, 64)]
    for n, (tot, acc) in zip(names, regs):
        a(kernel_desc(n, tot, 96, acc))
    return a.text()

if __name__ == "__main__":
    out = sys.argv[1] if len(sys.argv) > 1 else "v1.s"
    open(out, "w").write(build())
```

```python
import sys
from asmlib import *

def gen(mode, NS, rot=0, nt=False, consume=True, interleave=False, flags=None, mix=None):
    a = Asm()
    a(HEADER_COMMENT.rstrip())
    a(f"; @launch grid=(256,1,1) block=(256,1,1) lds=163840")
    a('.amdgcn_target "amdgcn-amd-amdhsa--gfx950"')
    a(kernel_start(KNAME).rstrip())
    NT = " nt" if nt else ""
    if flags is not None: NT = (" " + flags) if flags else ""
    a("""
  s_cmp_ge_u32 s2, 256
  s_cbranch_scc1 L_done
  s_memrealtime s[40:41]
  s_load_dwordx4 s[4:7], s[0:1], 8
  s_load_dwordx2 s[12:13], s[0:1], 56
  v_lshrrev_b32 v1, 6, v0
  v_and_b32 v0, 63, v0
  s_nop 0
  v_readfirstlane_b32 s3, v1
  s_and_b32 s14, s2, 7                ; b
  s_lshr_b32 s15, s2, 3               ; h
  s_lshr_b32 s16, s15, 2              ; g
  s_and_b32 s17, s15, 3               ; j
  s_lshl_b32 s18, s14, 3
  s_add_u32 s18, s18, s16             ; b*8+g
  s_lshl_b32 s18, s18, 19
  s_waitcnt lgkmcnt(0)
  s_add_u32 s20, s4, s18
  s_addc_u32 s21, s5, 0
  s_mov_b32 s22, 0x80000
  s_mov_b32 s23, 0x20000
  s_add_u32 s24, s6, s18
  s_addc_u32 s25, s7, 0
  s_mov_b32 s26, 0x80000
  s_mov_b32 s27, 0x20000
  v_lshrrev_b32 v2, 4, v0             ; l>>4
  v_and_b32 v3, 15, v0                ; l&15
""")
    for i in range(4):
        a(f"  v_add_u32 v4, {4*i}, v2")
        a(f"  v_xor_b32 v4, v4, v3")
        a(f"  v_lshlrev_b32 v4, 4, v4")
        a(f"  v_lshl_add_u32 v{10+i}, v2, 8, v4")
    a("  v_lshlrev_b32 v4, 2, v2")
    a("  v_xor_b32 v4, v4, v3")
    a("  v_lshlrev_b32 v4, 4, v4")
    a("  v_lshl_add_u32 v14, v2, 8, v4")
    if mode == "a":
        a(f"  s_mul_i32 s28, s3, {NS*8192}")
        a("  v_lshlrev_b32 v15, 4, v0")
        a("  v_add_u32 v15, s28, v15")
        if interleave:
            a("  s_lshl_b32 s29, s3, 13")
        else:
            a("  s_lshl_b32 s29, s3, 17")
        nsteps = 32
        def issue(n):
            t = n >> 1; isv = n & 1
            slot = n % NS
            srd = "s[24:27]" if isv else "s[20:23]"
            if rot == 0:
                a(f"  s_mov_b32 s30, {t}")
            elif rot == 1:
                a(f"  s_add_u32 s30, s17, {t}")
                a(f"  s_and_b32 s30, s30, 3")
                a(f"  s_add_u32 s30, s30, {t & ~3}")
            elif rot == 2:
                a(f"  s_lshl_b32 s30, s17, 2")
                a(f"  s_add_u32 s30, s30, {t}")
                a(f"  s_and_b32 s30, s30, 15")
            elif rot == 3:
                a(f"  s_lshl_b32 s30, s17, 1")
                a(f"  s_add_u32 s30, s30, {t}")
                a(f"  s_and_b32 s30, s30, 7")
                a(f"  s_add_u32 s30, s30, {t & ~7}")
            sh = 15 if interleave else 13
            a(f"  s_lshl_b32 s30, s30, {sh}")
            a(f"  s_add_u32 s30, s30, s29")
            a(f"  s_add_u32 s31, s30, 4096")
            a(f"  s_add_u32 m0, s28, {slot*8192}")
            a("  s_nop 0")
            def body(fl):
                for i in range(8):
                    if i == 4:
                        a(f"  s_add_u32 m0, s28, {slot*8192+4096}")
                        a("  s_nop 0")
                    vo = "v14" if isv else f"v{10+(i&3)}"
                    so = "s30" if i < 4 else "s31"
                    a(f"  buffer_load_dwordx4 {vo}, {srd}, {so} offen offset:{(i&3)*1024}{fl} lds")
            if mix is None:
                body(NT)
            else:
                if mix == "j0":
                    a("  s_cmp_eq_u32 s17, 0")
                elif mix == "rot":
                    a(f"  s_cmp_eq_u32 s17, {(4 - t) & 3}")
                elif mix == "j3plain":
                    a("  s_cmp_lg_u32 s17, 3")
                a(f"  s_cbranch_scc1 L_nt{n}")
                body("")
                a(f"  s_branch L_e{n}")
                a(f"L_nt{n}:")
                body(" nt")
                a(f"L_e{n}:")
        for n in range(NS):
            issue(n)
        for n in range(nsteps):
            remaining = min(NS - 1, nsteps - 1 - n)
            a(f"  s_waitcnt vmcnt({8*remaining})")
            if consume:
                for i in range(8):
                    a(f"  ds_read_b128 v[{32+4*i}:{35+4*i}], v15 offset:{(n%NS)*8192+i*1024}")
                a("  s_waitcnt lgkmcnt(0)")
            if n + NS < nsteps:
                issue(n + NS)
    elif mode == "b" or mode == "c":
        nkeys = 512 if mode == "b" else 1024
        nsteps = 2 * nkeys // 32
        if mode == "b":
            a("  s_lshl_b32 s29, s17, 17")
        else:
            a("  s_and_b32 s29, s17, 1")
            a("  s_lshl_b32 s29, s29, 18")
        a("  s_lshl_b32 s33, s3, 11")
        a("  s_add_u32 s29, s29, s33")
        a("  v_lshlrev_b32 v15, 4, v0")
        a("  v_add_u32 v16, 0x10000, v15")
        a("  v_add_u32 v17, 0x20000, v15")
        a("  s_and_b32 s34, s3, 1")
        a("  s_lshl_b32 s34, s34, 3")
        for i in range(2):
            a(f"  v_add_u32 v4, {4*i}, v2")
            a(f"  v_add_u32 v4, s34, v4")
            a(f"  v_xor_b32 v4, v4, v3")
            a(f"  v_lshlrev_b32 v4, 4, v4")
            a(f"  v_lshl_add_u32 v{10+i}, v2, 8, v4")
        def issue(n):
            t = n >> 1; isv = n & 1
            slot = n % NS
            srd = "s[24:27]" if isv else "s[20:23]"
            if mode == "c" and rot:
                a(f"  s_lshr_b32 s30, s17, 1")
                a(f"  s_add_u32 s30, s30, {t}")
                a(f"  s_and_b32 s30, s30, 1")
                a(f"  s_add_u32 s30, s30, {t & ~1}")
                a(f"  s_lshl_b32 s30, s30, 13")
                a(f"  s_add_u32 s30, s30, s29")
            else:
                a(f"  s_add_u32 s30, s29, {t*8192}")
            a(f"  s_add_u32 m0, s33, {slot*8192}")
            a("  s_nop 0")
            for i in range(2):
                vo = "v14" if isv else f"v{10+i}"
                a(f"  buffer_load_dwordx4 {vo}, {srd}, s30 offen offset:{i*1024}{NT} lds")
        D = NS - 1
        for n in range(D):
            issue(n)
        for n in range(nsteps):
            remaining = min(D - 1, nsteps - 1 - n)
            a(f"  s_waitcnt vmcnt({2*remaining})")
            a("  s_barrier")
            if n + D < nsteps:
                issue(n + D)
            if consume:
                for i in range(8):
                    off = (n%NS)*8192+i*1024
                    a(f"  ds_read_b128 v[{32+4*i}:{35+4*i}], v{15+(off>>16)} offset:{off&65535}")
                a("  s_waitcnt lgkmcnt(0)")
    a("""
  s_waitcnt vmcnt(0)
  s_memrealtime s[42:43]
  s_lshl_b32 s35, s2, 2
  s_add_u32 s35, s35, s3
  s_lshl_b32 s35, s35, 4
  s_add_u32 s12, s12, s35
  s_addc_u32 s13, s13, 0
  s_waitcnt lgkmcnt(0)
  v_mov_b32 v4, s40
  v_mov_b32 v5, s41
  v_mov_b32 v6, s42
  v_mov_b32 v7, s43
  v_mov_b32 v8, 0
  global_store_dwordx4 v8, v[4:7], s[12:13]
  s_cmp_ge_u32 s2, 16
  s_cbranch_scc1 L_done
  s_cmp_lg_u32 s3, 0
  s_cbranch_scc1 L_done
  s_load_dwordx2 s[44:45], s[0:1], 48
  s_sub_u32 s46, s42, s40
  s_lshl_b32 s47, s2, 2
  v_mov_b32 v4, s46
  v_mov_b32 v8, s47
  s_waitcnt lgkmcnt(0)
  global_store_dword v8, v4, s[44:45]
L_done:
  s_endpgm
""")
    a(kernel_desc(KNAME, 128, 64, 128))
    return a.text()

if __name__ == "__main__":
    import os
    os.makedirs("mb", exist_ok=True)
    cfgs = {}
    for nm, fl in [("p", ""), ("sc0", "sc0"), ("sc1", "sc1"), ("sc01", "sc0 sc1"), ("nt", "nt"), ("sc0nt", "sc0 nt"), ("sc1nt", "sc1 nt"), ("sc01nt", "sc0 sc1 nt")]:
        cfgs["a_" + nm] = dict(mode="a", NS=5, flags=fl)
        cfgs["b_" + nm] = dict(mode="b", NS=16, flags=fl)
    cfgs["a_mix_j0"] = dict(mode="a", NS=5, mix="j0")
    cfgs["a_mix_rot"] = dict(mode="a", NS=5, mix="rot", rot=1)
    for n, c in cfgs.items():
        open(f"mb/{n}.s", "w").write(gen(**c))
    print(" ".join(f"mb/{n}.s" for n in cfgs))
    print(", ".join(f'"bench/mb/{n}.s"' for n in cfgs))
```

```python
import re, sys
sys.argv = ["x"]
import mb_stream
v1 = open("v1.s").read()
def merge(flags, out):
    k0 = mb_stream.gen(mode="b", NS=16, flags=flags)
    body = k0.split('.amdgcn_target "amdgcn-amd-amdhsa--gfx950"')[1]
    body = body.replace(mb_stream.KNAME, "p0_kernel").replace("L_done", "L_done_p0")
    text, desc = body.split('.section .rodata,"a"')
    head, rest = v1.split('.amdgcn_target "amdgcn-amd-amdhsa--gfx950"')
    head = head.replace("; @launch kernel=p1_kernel", "; @launch kernel=p0_kernel grid=(256,1,1) block=(256,1,1) lds=163840\n; @launch kernel=p1_kernel")
    i = rest.index('.section .rodata,"a"')
    s = head + '.amdgcn_target "amdgcn-amd-amdhsa--gfx950"' + text + rest[:i] + '.section .rodata,"a"' + desc + rest[i:]
    open(out, "w").write(s)
merge("nt", "v1_k0nt.s")
merge("", "v1_k0p.s")
```

```python
import sys, math, struct
from asmlib import *

WS_QF = 0x0000000
WS_OP = 0x0400000
WS_ML = 0x2400000
WS_OF = 0x2500000
WS_PO = 0x2900000
WS_FL = 0x3100000
FQ_OFF = WS_FL
F1_OFF = WS_FL + 0x4000
F2_OFF = WS_FL + 0x10000
F3_OFF = WS_FL + 0x14000
WS_ST = 0x3200000
WS_SIZE = 0x3400000

def vr(a, n=1): return f"v{a}" if n == 1 else f"v[{a}:{a+n-1}]"
def ar(a, n=1): return f"a{a}" if n == 1 else f"a[{a}:{a+n-1}]"
def R(r): return f"s[{r}:{r+3}]"
SCALE = math.log2(math.e) / math.sqrt(128.0)
def f32hex(x): return "0x%08x" % struct.unpack("<I", struct.pack("<f", x))[0]

S_W, S_G, S_B, S_J = 3, 4, 5, 6
S_N, S_LOC, S_XCC, S_BG = 8, 9, 10, 11
S_LW = 12
S_TILE = 13
S_SPIN = 14
P_X, P_K, P_V, P_WQ, P_WO, P_OUT, P_DBG, P_WS = 16, 18, 20, 22, 24, 26, 28, 30
R_K, R_V, R_X, R_WQ, R_WO, R_WS, R_OUT, R_DBG = 32, 36, 40, 44, 48, 52, 56, 60
T0 = 64
S_T = 80

L_K, L_V, L_X = 0x00000, 0x10000, 0x20000

AO, AQ, AK, AV = 0, 128, 192, 224
VKD, VVD, VKA, VVA, VL, VM = 10, 12, 16, 24, 28, 30
VS, VP, VN = 32, 96, 128
VXD, VWD, VWA, VXA = 160, 162, 163, 165
V_L16 = 14
V_FL = 15

class Opt:
    stamps = True
    nt = " nt"
    timeout = 1 << 16
opt = Opt()

def srd(a, r, p, off, size):
    if off is None:
        a(f"  s_mov_b32 s{r}, s{p}")
        a(f"  s_mov_b32 s{r+1}, s{p+1}")
    else:
        a(f"  s_add_u32 s{r}, s{p}, {off}")
        a(f"  s_addc_u32 s{r+1}, s{p+1}, 0")
    a(f"  s_mov_b32 s{r+2}, {size}")
    a(f"  s_mov_b32 s{r+3}, 0x20000")

nstamp = [0]
def stamp(a):
    if opt.stamps:
        k = nstamp[0]; nstamp[0] += 1
        assert k < 11
        a(f"  s_memrealtime s[{S_T+2*k}:{S_T+2*k+1}]")
def stamp_flush(a):
    if not opt.stamps: return
    n = nstamp[0]
    a("  s_waitcnt lgkmcnt(0)")
    a(f"  s_lshl_b32 s{T0}, s2, 2")
    a(f"  s_add_u32 s{T0}, s{T0}, s{S_W}")
    a(f"  s_mul_i32 s{T0}, s{T0}, 96")
    a(f"  s_add_u32 s{T0}, s{T0}, {WS_ST}")
    a("  v_mov_b32 v8, 0")
    for k in range(0, 12, 2):
        for u in range(2):
            kk = min(k+u, n-1)
            a(f"  v_mov_b32 v{4+2*u}, s{S_T+2*kk}")
            a(f"  v_mov_b32 v{5+2*u}, s{S_T+2*kk+1}")
        a(f"  s_add_u32 s{T0+1}, s{T0}, {k*8}")
        a(f"  s_mov_b64 exec, 1")
        a(f"  buffer_store_dwordx4 v[4:7], v8, {R(R_WS)}, s{T0+1} offen")
        a(f"  s_mov_b64 exec, -1")
        a("  s_nop 1")

def tr_addr(a, dst, tile, sigma, row_mode, tmp, base=0):
    t0, t1, t2, t3 = tmp, tmp+1, tmp+2, tmp+3
    a(f"  v_bfe_u32 v{t0}, v0, 4, 1")
    a(f"  v_and_b32 v{t1}, 3, v0")
    if sigma:
        a(f"  v_and_b32 v{t2}, 1, v{t1}")
        a(f"  v_lshrrev_b32 v{t1}, 1, v{t1}")
    else:
        a(f"  v_lshrrev_b32 v{t2}, 1, v{t1}")
        a(f"  v_and_b32 v{t1}, 1, v{t1}")
    a(f"  v_lshl_add_u32 v{t2}, v{t0}, 1, v{t2}")
    if isinstance(tile, int):
        a(f"  v_add_u32 v{t2}, {4*tile}, v{t2}")
    else:
        a(f"  v_add_u32 v{t2}, {tile}, v{t2}")
    a(f"  v_bfe_u32 v{t0}, v0, 2, 2")
    a(f"  v_lshlrev_b32 v{t3}, 2, v{t0}")
    a(f"  v_xor_b32 v{t2}, v{t2}, v{t3}")
    a(f"  v_lshlrev_b32 v{t2}, 4, v{t2}")
    a(f"  v_lshl_add_u32 v{t2}, v{t1}, 3, v{t2}")
    a(f"  v_lshrrev_b32 v{t3}, 5, v0")
    a(f"  v_lshl_add_u32 v{t3}, v{t3}, {3 if row_mode=='nat' else 2}, v{t0}")
    a(f"  v_lshl_add_u32 v{dst}, v{t3}, 8, v{t2}")
    if base:
        a(f"  v_add_u32 v{dst}, {hex(base)}, v{dst}")

lab = [0]
def newlabel(p):
    lab[0] += 1
    return f"L_{p}_{lab[0]}"

def poll(a, soff_expr_sgpr, nwords):
    L = newlabel("poll"); Lx = newlabel("pollx")
    mask = (1 << nwords) - 1
    a(f"  s_mov_b32 s{S_SPIN}, {opt.timeout}")
    a(f"{L}:")
    a(f"  buffer_load_dword v4, v{V_FL}, {R(R_WS)}, {soff_expr_sgpr} offen sc1")
    a(f"  s_sub_u32 s{S_SPIN}, s{S_SPIN}, 1")
    a(f"  s_cbranch_scc1 {Lx}         ; timeout")
    a(f"  s_waitcnt vmcnt(0)")
    a(f"  v_cmp_ne_u32 vcc, s{S_N}, v4")
    a(f"  s_nop 4")
    a(f"  s_and_b32 s{T0+15}, vcc_lo, {hex(mask)}")
    a(f"  s_cbranch_scc1 {L}")
    a(f"{Lx}:")

def set_flag(a, soff_sgpr, word_sgpr_x4, always_global=False):
    a(f"  v_mov_b32 v4, s{S_N}")
    a(f"  v_mov_b32 v5, 0")
    a(f"  s_mov_b64 exec, 1")
    if always_global:
        a(f"  buffer_store_dword v4, v5, {R(R_WS)}, {soff_sgpr} offen sc0 sc1")
    else:
        Lg = newlabel("fg"); Le = newlabel("fe")
        a(f"  s_cmp_eq_u32 s{S_LOC}, 0")
        a(f"  s_cbranch_scc1 {Lg}")
        a(f"  buffer_store_dword v4, v5, {R(R_WS)}, {soff_sgpr} offen")
        a(f"  s_branch {Le}")
        a(f"{Lg}:")
        a(f"  buffer_store_dword v4, v5, {R(R_WS)}, {soff_sgpr} offen sc0 sc1")
        a(f"{Le}:")
    a(f"  s_mov_b64 exec, -1")

def dual_stores(a, emit):
    Lg = newlabel("sg"); Le = newlabel("se")
    a(f"  s_cmp_eq_u32 s{S_LOC}, 0")
    a(f"  s_cbranch_scc1 {Lg}")
    emit("")
    a(f"  s_branch {Le}")
    a(f"{Lg}:")
    emit(" sc0 sc1")
    a(f"{Le}:")

class Fifo:
    def __init__(self): self.ops = []
    def push(self, tag, n=1): self.ops += [tag] * n
    def count_after(self, tags):
        idx = [i for i, t in enumerate(self.ops) if t in tags]
        if not idx: return 63
        return len(self.ops) - 1 - max(idx)

def interleave(a, mfmas, fillers, lead=0):
    n = len(mfmas); m = len(fillers); k = 0
    for i, mf in enumerate(mfmas):
        a(mf)
        tgt = (m * (i + 1) + n - 1) // n if i < n - 1 else m
        while k < tgt:
            a(fillers[k]); k += 1

def build():
    nstamp[0] = 0
    a = Asm()
    a(HEADER_COMMENT.rstrip())
    a("; @launch grid=(256,1,1) block=(256,1,1) lds=163840")
    a('.amdgcn_target "amdgcn-amd-amdhsa--gfx950"')
    a(kernel_start(KNAME).rstrip())
    fifo = Fifo()
    a(f"""  s_cmp_ge_u32 s2, 256
  s_cbranch_scc1 L_done
  s_load_dwordx16 s[16:31], s[0:1], 0
  s_memrealtime s[{T0}:{T0+1}]
  s_getreg_b32 s{S_XCC}, hwreg(HW_REG_XCC_ID)
  v_lshrrev_b32 v1, 6, v0
  v_and_b32 v0, 63, v0
  s_and_b32 s{S_G}, s2, 7
  v_readfirstlane_b32 s{S_W}, v1
  s_lshr_b32 s7, s2, 3
  s_lshr_b32 s{S_B}, s7, 2
  s_and_b32 s{S_J}, s7, 3
  s_and_b32 s{S_XCC}, s{S_XCC}, 7
  s_lshl_b32 s{S_BG}, s{S_B}, 3
  s_add_u32 s{S_BG}, s{S_BG}, s{S_G}
  v_lshlrev_b32 v{V_L16}, 4, v0
  v_lshlrev_b32 v{V_FL}, 2, v0
  s_lshl_b32 s{S_LW}, s{S_W}, 11
  s_waitcnt lgkmcnt(0)""")
    if opt.stamps:
        a(f"  s_mov_b32 s{S_T}, s{T0}")
        a(f"  s_mov_b32 s{S_T+1}, s{T0+1}")
        nstamp[0] = 1
    srd(a, R_WS, P_WS, None, hex(WS_SIZE))
    srd(a, R_DBG, P_DBG, None, "0x100")
    a(f"""  s_lshl_b32 s{T0+2}, s{S_BG}, 2
  s_add_u32 s{T0+2}, s{T0+2}, s{S_J}
  s_lshl_b32 s{T0+3}, s{T0+2}, 2            ; 4*index
  s_lshr_b32 s{T0+4}, s{T0}, s{T0+3}
  s_and_b32 s{T0+4}, s{T0+4}, 15
  s_cmp_lt_u32 s{T0+2}, 8
  s_cselect_b32 s{T0+4}, s{T0+4}, 0
  s_lshl_b32 s{T0+5}, s{S_XCC}, 4
  s_or_b32 s{T0+4}, s{T0+4}, s{T0+5}
  s_or_b32 s{T0+4}, s{T0+4}, 0x80
  s_cmp_lg_u32 s{S_W}, 0
  s_cbranch_scc1 L_nohello
  v_mov_b32 v4, s{T0+4}
  v_mov_b32 v5, 0
  s_mov_b64 exec, 1
  buffer_store_byte v4, v5, {R(R_DBG)}, s{T0+2} offen sc0 sc1
  s_mov_b64 exec, -1
L_nohello:""")
    a(f"  s_lshl_b32 s{T0}, s{S_B}, 16")
    srd(a, R_X, P_X, f"s{T0}", "0x10000")
    a(f"  s_lshl_b32 s{T0}, s{S_G}, 2")
    a(f"  s_add_u32 s{T0}, s{T0}, s{S_J}          ; h_own")
    a(f"  s_lshl_b32 s{T0+1}, s{T0}, 8")
    srd(a, R_WQ, P_WQ, f"s{T0+1}", "0x400000")
    a(f"  s_sub_u32 s{R_WQ+2}, s{R_WQ+2}, s{T0+1}")
    a(f"  s_lshl_b32 s{T0}, s{S_BG}, 19")
    a(f"  s_lshl_b32 s{T0+1}, s{S_J}, 17")
    a(f"  s_add_u32 s{T0}, s{T0}, s{T0+1}")
    srd(a, R_K, P_K, f"s{T0}", "0x20000")
    srd(a, R_V, P_V, f"s{T0}", "0x20000")
    a(f"""  v_lshrrev_b32 v2, 4, v0
  v_and_b32 v3, 15, v0
  v_lshrrev_b32 v4, 3, v0
  v_and_b32 v5, 7, v0
  v_xor_b32 v6, v5, v2
  v_lshlrev_b32 v6, 4, v6
  v_lshl_add_u32 v{VXD}, v4, 10, v6
  v_add_u32 v7, 4, v2
  v_xor_b32 v6, v5, v7
  v_lshlrev_b32 v6, 4, v6
  v_lshl_add_u32 v{VXD+1}, v4, 10, v6
  v_lshlrev_b32 v6, 2, v2
  v_xor_b32 v6, v6, v3
  v_lshlrev_b32 v6, 4, v6
  v_lshl_add_u32 v{VWD}, v2, 13, v6""")
    sXg, sXl, sWg, sWl, sO = T0+4, T0+5, T0+6, T0+7, T0+8
    a(f"  s_lshl_b32 s{sXg}, s{S_W}, 14")
    a(f"  s_lshl_b32 s{sXl}, s{S_W}, 11")
    a(f"  s_lshl_b32 s{sWg}, s{S_W}, 17")
    a(f"  s_lshl_b32 s{sWl}, s{S_W}, 12")
    NCH = 4
    WSLOT = [L_K + 0x8000, L_K + 0xC000, L_V + 0x8000, L_V + 0xC000]
    XSLOT = [L_X + i*0x2000 for i in range(4)]
    def issue_chunk(kc):
        slot = kc % NCH
        for ii in range(2):
            a(f"  s_add_u32 m0, s{sXl}, {XSLOT[slot] + ii*1024}")
            a(f"  s_add_u32 s{sO}, s{sXg}, {ii*8192 + kc*128}")
            a(f"  buffer_load_dwordx4 v{VXD+ii}, {R(R_X)}, s{sO} offen lds")
        for ii in range(4):
            a(f"  s_add_u32 m0, s{sWl}, {WSLOT[slot] + ii*1024}")
            a(f"  s_add_u32 s{sO}, s{sWg}, {kc*64*8192 + ii*32768}")
            a(f"  buffer_load_dwordx4 v{VWD}, {R(R_WQ)}, s{sO} offen lds")
        fifo.push(('C', kc), 6)
    for kc in range(4):
        issue_chunk(kc)
    a(f"  s_lshl_b32 s{T0+9}, s{S_W}, 3")
    for i in range(2):
        a(f"  v_add_u32 v4, s{T0+9}, v2")
        a(f"  v_add_u32 v5, {4*i}, v4")
        a(f"  v_and_b32 v5, 15, v5")
        a(f"  v_xor_b32 v5, v5, v3")
        a(f"  v_lshlrev_b32 v5, 4, v5")
        a(f"  v_lshl_add_u32 v{VKD+i}, v4, 8, v5")
    a(f"  v_lshlrev_b32 v5, 2, v2")
    a(f"  v_xor_b32 v5, v5, v3")
    a(f"  v_lshlrev_b32 v5, 4, v5")
    a(f"  v_lshl_add_u32 v{VVD}, v4, 8, v5")
    RKN = RVN = 8
    def dmaK(i):
        out = [f"  s_add_u32 m0, s{S_LW}, {L_K+(i%RKN)*8192}", f"  s_mov_b32 s{S_TILE}, {i*8192}"]
        for ii in range(2):
            out.append(f"  buffer_load_dwordx4 v{VKD+ii}, {R(R_K)}, s{S_TILE} offen offset:{ii*1024}{opt.nt} lds")
        fifo.push(('K', i), 2)
        return out
    def dmaV(i):
        out = [f"  s_add_u32 m0, s{S_LW}, {L_V+(i%RVN)*8192}", f"  s_mov_b32 s{S_TILE}, {i*8192}"]
        for ii in range(2):
            out.append(f"  buffer_load_dwordx4 v{VVD}, {R(R_V)}, s{S_TILE} offen offset:{ii*1024}{opt.nt} lds")
        fifo.push(('V', i), 2)
        return out
    def emit(lst):
        for l in lst: a(l)
    NPRO = opt.npro
    emit(dmaK(0))
    for i in range(1, NPRO):
        emit(dmaK(i)); emit(dmaV(i-1))
    emit(dmaV(NPRO-1))
    a(f"  s_lshl_b32 s{T0+9}, s{S_W}, 2")
    tr_addr(a, VWA, f"s{T0+9}", True, 'nat', 4, base=L_K + 0x8000)
    a(f"  v_add_u32 v{VWA+1}, 0x10000, v{VWA}")
    a("""  v_and_b32 v6, 31, v0
  v_lshrrev_b32 v7, 5, v0
  v_bfe_u32 v8, v0, 1, 3""")
    for ks in range(4):
        a(f"  v_add_u32 v9, {2*ks}, v7")
        a(f"  v_xor_b32 v9, v9, v8")
        a(f"  v_lshlrev_b32 v9, 4, v9")
        a(f"  v_lshl_add_u32 v{VXA+ks}, v6, 7, v9")
        a(f"  v_add_u32 v{VXA+ks}, {hex(L_X)}, v{VXA+ks}")
    a("""  v_and_b32 v4, 31, v0
  v_lshrrev_b32 v5, 5, v0
  v_and_b32 v6, 15, v0""")
    for ks in range(8):
        a(f"  v_add_u32 v7, {2*ks}, v5")
        a(f"  v_xor_b32 v7, v7, v6")
        a(f"  v_lshlrev_b32 v7, 4, v7")
        a(f"  v_lshl_add_u32 v{VKA+ks}, v4, 8, v7")
    for t in range(4):
        tr_addr(a, VVA+t, t, False, 'pv', 4, base=L_V)
    AF, BF, ACC = 32, 64, 128
    def reads(kc):
        slot = kc % NCH; buf = kc & 1
        wo = WSLOT[slot] - (L_K + 0x8000)
        for ks in range(4):
            for rd in range(2):
                off = wo + ks*4096 + rd*1024
                a(f"  ds_read_b64_tr_b16 {vr(AF+buf*16+ks*4+rd*2,2)}, v{VWA+(off>>16)} offset:{off & 65535}")
            for qt in range(2):
                a(f"  ds_read_b128 {vr(BF+buf*32+ks*8+qt*4,4)}, v{VXA+ks} offset:{slot*8192+qt*4096}")
    for i in range(32):
        a(f"  v_mov_b32 v{ACC+i}, 0")
    for r in range(128):
        a(f"  v_accvgpr_write_b32 a{AO+r}, 0")
    a(f"  s_waitcnt vmcnt({fifo.count_after([('C',0)])})")
    a("  s_barrier")
    reads(0)
    for c in range(8):
        if c + 1 < 8:
            a(f"  s_waitcnt vmcnt({fifo.count_after([('C',c+1)])})")
            a("  s_barrier")
            if c >= 1 and c + 3 < 8:
                issue_chunk(c + 3)
        a("  s_waitcnt lgkmcnt(0)")
        if c + 1 < 8:
            reads(c + 1)
        buf = c & 1
        for ks in range(4):
            for qt in range(2):
                a(f"  v_mfma_f32_32x32x16_bf16 {vr(ACC+16*qt,16)}, {vr(AF+buf*16+ks*4,4)}, {vr(BF+buf*32+ks*8+qt*4,4)}, {vr(ACC+16*qt,16)}")
    a(f"  s_lshl_b32 s{T0}, s{S_BG}, 2")
    a(f"  v_mov_b32 v5, 0")
    a(f"  s_nop 10")
    a(f"  s_mov_b32 s{sO}, {f32hex(SCALE)}")
    for i in range(32):
        a(f"  v_mul_f32 v{ACC+i}, s{sO}, v{ACC+i}")
    for qt in range(2):
        for s in range(2):
            for p in range(4):
                r = ACC + 16*qt + 8*s + 2*p
                a(f"  v_cvt_pk_bf16_f32 v{32+qt*8+s*4+p}, v{r}, v{r+1}")
    stamp(a)
    Lh = newlabel("hello"); Lhx = newlabel("hellox")
    a(f"  s_mov_b32 s{S_SPIN}, {opt.timeout}")
    a(f"{Lh}:")
    a(f"  buffer_load_dwordx2 v[6:7], v5, {R(R_DBG)}, 0 offen sc1")
    a(f"  buffer_load_dword v8, v5, {R(R_DBG)}, s{T0} offen sc1")
    a(f"  s_sub_u32 s{S_SPIN}, s{S_SPIN}, 1")
    a(f"  s_cbranch_scc1 {Lhx}")
    a(f"  s_waitcnt vmcnt(0)")
    a(f"  v_and_b32 v9, v6, v7")
    a(f"  v_and_b32 v9, v9, v8")
    a(f"  s_nop 0")
    a(f"  v_readfirstlane_b32 s{T0+1}, v9")
    a(f"  s_and_b32 s{T0+1}, s{T0+1}, 0x80808080")
    a(f"  s_cmp_lg_u32 s{T0+1}, 0x80808080")
    a(f"  s_cbranch_scc1 {Lh}")
    a(f"{Lhx}:")
    a(f"  v_readfirstlane_b32 s{T0+1}, v6")
    a(f"  v_readfirstlane_b32 s{T0+2}, v7")
    a(f"  v_readfirstlane_b32 s{T0+3}, v8")
    a(f"  s_and_b32 s{T0+1}, s{T0+1}, 0x0f0f0f0f")
    a(f"  s_and_b32 s{T0+2}, s{T0+2}, 0x0f0f0f0f")
    a(f"  s_lshl_b32 s{T0+2}, s{T0+2}, 4")
    a(f"  s_or_b32 s{S_N}, s{T0+1}, s{T0+2}")
    a(f"  s_or_b32 s{S_N}, s{S_N}, 0x80000000")
    a(f"  s_and_b32 s{T0+3}, s{T0+3}, 0x70707070")
    a(f"  s_mul_i32 s{T0+2}, s{S_XCC}, 0x10101010")
    a(f"  s_cmp_eq_u32 s{T0+3}, s{T0+2}")
    a(f"  s_cselect_b32 s{S_LOC}, 1, 0")
    if opt.force_global:
        a(f"  s_mov_b32 s{S_LOC}, 0")
    fifo.ops = []
    a(f"  s_lshl_b32 s{T0}, s{S_B}, 5")
    a(f"  s_lshl_b32 s{T0+1}, s{S_G}, 2")
    a(f"  s_add_u32 s{T0}, s{T0}, s{T0+1}       ; b*32 + 4g")
    a(f"  s_add_u32 s{T0+1}, s{T0}, s{S_J}")
    a(f"  s_lshl_b32 s{T0+1}, s{T0+1}, 14")
    a(f"  s_add_u32 s{T0+1}, s{T0+1}, s{S_LW}   ; + 2w*1024")
    def qst(fl):
        for qt in range(2):
            for s in range(2):
                a(f"  s_add_u32 s{T0+2}, s{T0+1}, {WS_QF + qt*8192+s*1024}")
                a(f"  buffer_store_dwordx4 {vr(32+qt*8+s*4,4)}, v{V_L16}, {R(R_WS)}, s{T0+2} offen{fl}")
    dual_stores(a, qst)
    a("  s_waitcnt vmcnt(0)")
    a(f"  s_lshl_b32 s{T0+2}, s{S_BG}, 7")
    a(f"  s_lshl_b32 s{T0+3}, s{S_J}, 4")
    a(f"  s_add_u32 s{T0+3}, s{T0+3}, s{T0+2}")
    a(f"  s_lshl_b32 s{T0+4}, s{S_W}, 2")
    a(f"  s_add_u32 s{T0+3}, s{T0+3}, s{T0+4}")
    a(f"  s_add_u32 s{T0+3}, s{T0+3}, {FQ_OFF}")
    set_flag(a, f"s{T0+3}", None)
    stamp(a)
    a("  s_barrier")
    a(f"  s_lshl_b32 s{T0+3}, s{S_W}, 4")
    a(f"  s_add_u32 s{T0+3}, s{T0+3}, s{T0+2}")
    a(f"  s_add_u32 s{T0+3}, s{T0+3}, {FQ_OFF}")
    poll(a, f"s{T0+3}", 4)
    a(f"  s_add_u32 s{T0+1}, s{T0}, s{S_W}")
    a(f"  s_lshl_b32 s{T0+1}, s{T0+1}, 14")
    for qt in range(2):
        for ks in range(8):
            off = qt*8192 + ks*1024
            if (off & 4095) == 0:
                a(f"  s_add_u32 s{T0+2}, s{T0+1}, {WS_QF + off}")
            a(f"  buffer_load_dwordx4 {ar(AQ+qt*32+ks*4,4)}, v{V_L16}, {R(R_WS)}, s{T0+2} offen offset:{off & 4095} sc1")
    fifo.push('Q', 16)
    for i in range(NPRO, 8):
        emit(dmaK(i))
        if i < 7: emit(dmaV(i))
    NSTEP = 16
    def readK(i):
        return [f"  ds_read_b128 {ar(AK+ks*4,4)}, v{VKA+ks} offset:{L_K+(i%RKN)*8192}" for ks in range(8)]
    def readV(i):
        out = []
        for s in range(2):
            for t in range(4):
                for rd in range(2):
                    out.append(f"  ds_read_b64_tr_b16 {ar(AV+(t*2+s)*4+rd*2,2)}, v{VVA+t} offset:{(i%RVN)*8192+s*4096+rd*2048}")
        return out
    def qk(i, first=False):
        buf = i & 1; out = []
        for qt in range(2):
            for ks in range(8):
                d = vr(VS+buf*32+qt*16, 16)
                c = d if ks > 0 else ("0" if first else vr(VN+qt*16, 16))
                out.append(f"  v_mfma_f32_32x32x16_bf16 {d}, {ar(AK+ks*4,4)}, {ar(AQ+qt*32+ks*4,4)}, {c}")
        return out
    def pv(i):
        buf = i & 1; out = []
        for qt in range(2):
            for s in range(2):
                for t in range(4):
                    d = ar(AO+(t*2+qt)*16, 16)
                    out.append(f"  v_mfma_f32_32x32x16_bf16 {d}, {ar(AV+(t*2+s)*4,4)}, {vr(VP+buf*16+qt*8+s*4,4)}, {d}")
        return out
    def sm(i, qt):
        buf = i & 1
        r0 = VS+buf*32+qt*16
        groups = []
        for k in range(17):
            g = []
            if k < 16: g.append(f"  v_exp_f32 v{r0+k}, v{r0+k}")
            if k >= 1: g.append(f"  v_add_f32 v{VL+qt}, v{VL+qt}, v{r0+k-1}")
            if k >= 2 and k % 2 == 0:
                p = k//2 - 1
                g.append(f"  v_cvt_pk_bf16_f32 v{VP+buf*16+qt*8+p}, v{r0+2*p}, v{r0+2*p+1}")
            groups.append(g)
        return groups
    def block(mfmas, groups, extra, pre=None, extra_start=0):
        n = len(mfmas)
        for i, mf in enumerate(mfmas):
            a(mf)
            if pre and i in pre:
                for l in pre[i]: a(l)
            if groups:
                for l in groups[i]: a(l)
            if i >= extra_start and extra:
                span = n - 1 - extra_start
                lo = (len(extra) * (i - extra_start)) // span if span > 0 else 0
                hi = (len(extra) * (i - extra_start + 1)) // span if i < n - 1 else len(extra)
                hi = min(hi, len(extra))
                for l in extra[lo:hi]: a(l)
        if groups:
            for l in groups[16]: a(l)
    stamp(a)
    a(f"  s_waitcnt vmcnt({fifo.count_after(['Q', ('K',0), ('K',1)])})")
    a("  s_barrier")
    emit(readK(0))
    a("  s_waitcnt lgkmcnt(0)")
    for m in qk(0, True): a(m)
    emit(readK(1))
    a("  s_nop 7")
    for qt in range(2):
        r = VS + qt*16
        a(f"  v_max3_f32 v{VM+qt}, v{r}, v{r+1}, v{r+2}")
        for k in range(3, 15, 2):
            a(f"  v_max3_f32 v{VM+qt}, v{VM+qt}, v{r+k}, v{r+k+1}")
        a(f"  v_max_f32 v{VM+qt}, v{VM+qt}, v{r+15}")
        a(f"  v_mov_b32 v4, v{VM+qt}")
        a("  s_nop 1")
        a(f"  v_permlane32_swap_b32 v{VM+qt}, v4")
        a("  s_nop 1")
        a(f"  v_max_f32 v{VM+qt}, v{VM+qt}, v4")
        for k in range(16):
            a(f"  v_sub_f32 v{VN+qt*16+k}, 0, v{VM+qt}")
        for k in range(16):
            a(f"  v_sub_f32 v{r+k}, v{r+k}, v{VM+qt}")
    a(f"  v_mov_b32 v{VL}, 0")
    a(f"  v_mov_b32 v{VL+1}, 0")
    for g in sm(0, 0):
        for l in g: a(l)
    wo_issued = []
    for i in range(NSTEP):
        need = [('V', i)] + ([('K', i+2)] if i+2 < NSTEP else [])
        sync = [f"  s_waitcnt vmcnt({fifo.count_after(need)}) lgkmcnt(0)", "  s_barrier"]
        dma = []
        if i == 0: dma += dmaK(RKN)
        if i + 1 + RKN < NSTEP: dma += dmaK(i+1+RKN)
        if i - 1 + RVN < NSTEP and i - 1 + RVN >= 7: dma += dmaV(i-1+RVN)
        if i + 1 < NSTEP:
            a("  s_waitcnt lgkmcnt(0)")
            block(qk(i+1), sm(i, 1), readV(i), pre={0: sync}, extra_start=1)
        else:
            emit(sync)
            emit(readV(i))
            for g in sm(i, 1):
                for l in g: a(l)
        a("  s_waitcnt lgkmcnt(0)")
        extra = dma + (readK(i+2) if i+2 < NSTEP else [])
        block(pv(i), sm(i+1, 0) if i+1 < NSTEP else None, extra, extra_start=0)
    stamp(a)
    a("  s_nop 7")
    for qt in range(2):
        a(f"  v_mov_b32 v4, v{VL+qt}")
        a("  s_nop 1")
        a(f"  v_permlane32_swap_b32 v{VL+qt}, v4")
        a("  s_nop 1")
        a(f"  v_add_f32 v{VL+qt}, v{VL+qt}, v4")
    a("  s_barrier")
    a(f"  s_lshl_b32 s{T0}, s{S_G}, 19")
    a(f"  s_lshl_b32 s{T0+1}, s{S_J}, 8")
    a(f"  s_add_u32 s{T0}, s{T0}, s{T0+1}")
    srd(a, R_WO, P_WO, f"s{T0}", "0x400000")
    a(f"  s_sub_u32 s{R_WO+2}, s{R_WO+2}, s{T0}")
    a(f"  s_lshl_b32 s{T0}, s{S_BG}, 2")
    a(f"  s_add_u32 s{T0}, s{T0}, s{S_J}")
    a(f"  s_lshl_b32 s{T0}, s{T0}, 2")
    a(f"  s_add_u32 s{T0}, s{T0}, s{S_W}        ; (bg*4+j)*4+w")
    a(f"  s_lshl_b32 s{T0+1}, s{T0}, 15")
    a(f"  s_lshl_b32 s{T0+2}, s{T0}, 9")
    a(f"  v_mov_b32 v4, v{VM}")
    a(f"  v_mov_b32 v5, v{VL}")
    a(f"  v_mov_b32 v6, v{VM+1}")
    a(f"  v_mov_b32 v7, v{VL+1}")
    def ost(fl):
        for n in range(32):
            off = n * 1024
            if (off & 4095) == 0:
                a(f"  s_add_u32 s{T0+4}, s{T0+1}, {WS_OP + off}")
            a(f"  buffer_store_dwordx4 {ar(AO+n*4,4)}, v{V_L16}, {R(R_WS)}, s{T0+4} offen offset:{off & 4095}{fl}")
        a(f"  s_add_u32 s{T0+4}, s{T0+2}, {WS_ML}")
        a(f"  s_mov_b32 exec_hi, 0")
        a(f"  buffer_store_dwordx4 v[4:7], v{V_L16}, {R(R_WS)}, s{T0+4} offen{fl}")
        a(f"  s_mov_b32 exec_hi, -1")
    dual_stores(a, ost)
    a("""  v_lshrrev_b32 v2, 4, v0
  v_and_b32 v3, 15, v0
  v_lshlrev_b32 v6, 2, v2
  v_xor_b32 v6, v6, v3
  v_lshlrev_b32 v6, 4, v6
  v_lshl_add_u32 v12, v2, 10, v6""")
    a(f"  s_lshl_b32 s{T0+5}, s{S_W}, 15")
    a(f"  s_lshl_b32 s{T0+6}, s{S_W}, 17")
    a("  s_waitcnt vmcnt(0)")
    a(f"  s_lshl_b32 s{T0+2}, s{S_BG}, 9")
    a(f"  s_lshl_b32 s{T0+3}, s{S_W}, 7")
    a(f"  s_add_u32 s{T0+3}, s{T0+3}, s{T0+2}")
    a(f"  s_lshl_b32 s{T0+4}, s{S_J}, 2")
    a(f"  s_add_u32 s{T0+3}, s{T0+3}, s{T0+4}")
    a(f"  s_add_u32 s{T0+3}, s{T0+3}, {F1_OFF}")
    set_flag(a, f"s{T0+3}", None)
    stamp(a)
    for i in range(32):
        a(f"  s_add_u32 m0, s{T0+5}, {i*1024}")
        a(f"  s_add_u32 s{T0+4}, s{T0+6}, {i*4096}")
        a(f"  buffer_load_dwordx4 v12, {R(R_WO)}, s{T0+4} offen lds")
    a(f"  s_lshl_b32 s{T0+3}, s{S_J}, 7")
    a(f"  s_add_u32 s{T0+3}, s{T0+3}, s{T0+2}")
    a(f"  s_add_u32 s{T0+3}, s{T0+3}, {F1_OFF}")
    poll(a, f"s{T0+3}", 4)
    stamp(a)
    a(f"  s_lshl_b32 s{T0}, s{S_BG}, 4")
    a(f"  s_add_u32 s{T0}, s{T0}, s{S_J}        ; bg*16 + j")
    a(f"  s_lshl_b32 s{T0+1}, s{T0}, 15")
    a(f"  s_lshl_b32 s{T0+2}, s{S_W}, 13")
    a(f"  s_add_u32 s{T0+1}, s{T0+1}, s{T0+2}")
    a(f"  s_lshl_b32 s{T0+2}, s{T0}, 9")
    a("  v_and_b32 v2, 31, v0")
    a("  v_lshlrev_b32 v2, 4, v2")
    VML, VO = 160, 32
    for jp in range(4):
        a(f"  s_add_u32 s{T0+3}, s{T0+2}, {WS_ML + jp*2048}")
        a(f"  buffer_load_dwordx4 {vr(VML+jp*4,4)}, v2, {R(R_WS)}, s{T0+3} offen sc1")
    for jp in range(4):
        for n in range(8):
            off = jp*4*32768 + n*1024
            if (off & 4095) == 0:
                a(f"  s_add_u32 s{T0+3}, s{T0+1}, {WS_OP + off}")
            a(f"  buffer_load_dwordx4 {vr(VO+jp*32+n*4,4)}, v{V_L16}, {R(R_WS)}, s{T0+3} offen offset:{off & 4095} sc1")
    a("  s_waitcnt vmcnt(32)")
    for qt in range(2):
        m = lambda jp: VML+jp*4+qt*2
        l = lambda jp: VML+jp*4+qt*2+1
        a(f"  v_max3_f32 v4, v{m(0)}, v{m(1)}, v{m(2)}")
        a(f"  v_max_f32 v4, v4, v{m(3)}")
        for jp in range(4):
            a(f"  v_sub_f32 v{m(jp)}, v{m(jp)}, v4")
        for jp in range(4):
            a(f"  v_exp_f32 v{m(jp)}, v{m(jp)}")
        a("  s_nop 0")
        a(f"  v_mul_f32 v5, v{m(0)}, v{l(0)}")
        for jp in range(1, 4):
            a(f"  v_fmac_f32 v5, v{m(jp)}, v{l(jp)}")
        a(f"  v_rcp_f32 v5, v5")
        a("  s_nop 0")
        for jp in range(4):
            a(f"  v_mul_f32 v{m(jp)}, v{m(jp)}, v5")
    for jp in range(4):
        a(f"  s_waitcnt vmcnt({8*(3-jp)})")
        for qt in range(2):
            for k in range(16):
                r = lambda j_: VO+j_*32+qt*16+k
                if jp == 0:
                    a(f"  v_mul_f32 v{r(0)}, v{VML+qt*2}, v{r(0)}")
                else:
                    a(f"  v_fmac_f32 v{r(0)}, v{VML+jp*4+qt*2}, v{r(jp)}")
    for qt in range(2):
        for s in range(2):
            for p in range(4):
                r = VO + qt*16 + s*8 + 2*p
                a(f"  v_cvt_pk_bf16_f32 v{176+qt*8+s*4+p}, v{r}, v{r+1}")
    a(f"  s_lshl_b32 s{T0}, s{S_B}, 5")
    a(f"  s_lshl_b32 s{T0+1}, s{S_G}, 2")
    a(f"  s_add_u32 s{T0}, s{T0}, s{T0+1}       ; b*32+4g")
    a(f"  s_add_u32 s{T0+1}, s{T0}, s{S_J}")
    a(f"  s_lshl_b32 s{T0+1}, s{T0+1}, 14")
    a(f"  s_add_u32 s{T0+1}, s{T0+1}, s{S_LW}")
    def ofst(fl):
        for qt in range(2):
            for s in range(2):
                a(f"  s_add_u32 s{T0+2}, s{T0+1}, {WS_OF + qt*8192+s*1024}")
                a(f"  buffer_store_dwordx4 {vr(176+qt*8+s*4,4)}, v{V_L16}, {R(R_WS)}, s{T0+2} offen{fl}")
    dual_stores(a, ofst)
    a("  s_waitcnt vmcnt(0)")
    a(f"  s_lshl_b32 s{T0+2}, s{S_BG}, 7")
    a(f"  s_lshl_b32 s{T0+3}, s{S_J}, 4")
    a(f"  s_add_u32 s{T0+3}, s{T0+3}, s{T0+2}")
    a(f"  s_lshl_b32 s{T0+4}, s{S_W}, 2")
    a(f"  s_add_u32 s{T0+3}, s{T0+3}, s{T0+4}")
    a(f"  s_add_u32 s{T0+3}, s{T0+3}, {F2_OFF}")
    set_flag(a, f"s{T0+3}", None)
    stamp(a)
    a("  s_barrier")
    a(f"  s_lshl_b32 s{T0+4}, s{S_W}, 2")
    tr_addr(a, 192, f"s{T0+4}", True, 'pv', 4)
    a("  v_add_u32 v193, 0x10000, v192")
    for kk in range(32):
        for r_ in range(2):
            off = kk*4096 + r_*2048
            a(f"  ds_read_b64_tr_b16 {ar(128+kk*4+r_*2,2)}, v{192+(off>>16)} offset:{off & 65535}")
        if kk % 4 == 3:
            a("  s_waitcnt lgkmcnt(8)")
    a("  s_waitcnt lgkmcnt(0)")
    a("  s_barrier")
    a(f"  s_add_u32 s{T0+3}, s{T0+2}, {F2_OFF}")
    poll(a, f"s{T0+3}", 16)
    stamp(a)
    a(f"  s_lshl_b32 s{T0+1}, s{T0}, 14        ; (b*32+4g)<<14")
    a(f"  s_lshl_b32 s{T0+2}, s{S_W}, 14")
    a(f"  s_add_u32 s{T0+1}, s{T0+1}, s{T0+2}")
    for n in range(16):
        a(f"  s_add_u32 m0, s{T0+2}, {n*1024}")
        a(f"  s_add_u32 s{T0+3}, s{T0+1}, {WS_OF + n*1024}")
        a(f"  buffer_load_dwordx4 v{V_L16}, {R(R_WS)}, s{T0+3} offen sc1 lds")
    ACC = 128
    for i in range(32):
        a(f"  v_mov_b32 v{ACC+i}, 0")
    a("  s_waitcnt vmcnt(0)")
    a("  s_barrier")
    NB = 6
    def rdB(kk):
        hh, ks = kk >> 3, kk & 7
        for qt in range(2):
            a(f"  ds_read_b128 {vr(32+((kk%NB)*2+qt)*4,4)}, v{V_L16} offset:{(hh*16+qt*8+ks)*1024}")
    for kk in range(NB-1): rdB(kk)
    for kk in range(32):
        if kk + NB - 1 < 32:
            rdB(kk+NB-1)
            a(f"  s_waitcnt lgkmcnt({2*(NB-1)})")
        else:
            a(f"  s_waitcnt lgkmcnt({2*(31-kk)})")
        for qt in range(2):
            a(f"  v_mfma_f32_32x32x16_bf16 {vr(ACC+16*qt,16)}, {ar(128+kk*4,4)}, {vr(32+((kk%NB)*2+qt)*4,4)}, {vr(ACC+16*qt,16)}")
    a("  s_nop 15")
    a(f"  s_lshl_b32 s{T0}, s{S_B}, 2")
    a(f"  s_add_u32 s{T0}, s{T0}, s{S_J}        ; b*4+j")
    a(f"  s_lshl_b32 s{T0+1}, s{T0}, 3")
    a(f"  s_add_u32 s{T0+1}, s{T0+1}, s{S_G}")
    a(f"  s_lshl_b32 s{T0+1}, s{T0+1}, 15")
    a(f"  s_lshl_b32 s{T0+2}, s{S_W}, 13")
    a(f"  s_add_u32 s{T0+1}, s{T0+1}, s{T0+2}")
    for n in range(8):
        off = n*1024
        if (off & 4095) == 0:
            a(f"  s_add_u32 s{T0+2}, s{T0+1}, {WS_PO + off}")
        a(f"  buffer_store_dwordx4 {vr(ACC+n*4,4)}, v{V_L16}, {R(R_WS)}, s{T0+2} offen offset:{off & 4095} sc0 sc1")
    a("  s_waitcnt vmcnt(0)")
    a(f"  s_lshl_b32 s{T0+2}, s{T0}, 9          ; (b*4+j)*4 lines")
    a(f"  s_lshl_b32 s{T0+3}, s{S_W}, 7")
    a(f"  s_add_u32 s{T0+3}, s{T0+3}, s{T0+2}")
    a(f"  s_lshl_b32 s{T0+4}, s{S_G}, 2")
    a(f"  s_add_u32 s{T0+3}, s{T0+3}, s{T0+4}")
    a(f"  s_add_u32 s{T0+3}, s{T0+3}, {F3_OFF}")
    set_flag(a, f"s{T0+3}", None, always_global=True)
    stamp(a)
    a(f"  s_lshr_b32 s{T0+3}, s{S_G}, 1")
    a(f"  s_lshl_b32 s{T0+3}, s{T0+3}, 7")
    a(f"  s_add_u32 s{T0+3}, s{T0+3}, s{T0+2}")
    a(f"  s_add_u32 s{T0+3}, s{T0+3}, {F3_OFF}")
    poll(a, f"s{T0+3}", 8)
    a(f"  s_lshl_b32 s{T0}, s{T0}, 18")
    a(f"  s_lshl_b32 s{T0+1}, s{S_G}, 12")
    a(f"  s_add_u32 s{T0}, s{T0}, s{T0+1}")
    a(f"  s_lshl_b32 s{T0+2}, s{S_W}, 10")
    a(f"  s_add_u32 s{T0}, s{T0}, s{T0+2}")
    for gp in range(8):
        a(f"  s_add_u32 s{T0+2}, s{T0}, {WS_PO + gp*32768}")
        a(f"  buffer_load_dwordx4 {vr(16+gp*4,4)}, v{V_L16}, {R(R_WS)}, s{T0+2} offen sc1")
    srd(a, R_OUT, P_OUT, None, "0x80000")
    a(f"  s_lshl_b32 s{T0+3}, s{S_B}, 6")
    a(f"  s_and_b32 s{T0+4}, s{S_G}, 1")
    a(f"  s_lshl_b32 s{T0+4}, s{T0+4}, 5")
    a(f"  s_add_u32 s{T0+3}, s{T0+3}, s{T0+4}")
    a(f"  s_lshl_b32 s{T0+3}, s{T0+3}, 10")
    a(f"  s_lshl_b32 s{T0+4}, s{S_J}, 7")
    a(f"  s_lshr_b32 s{T0+5}, s{S_G}, 1")
    a(f"  s_lshl_b32 s{T0+5}, s{T0+5}, 5")
    a(f"  s_add_u32 s{T0+4}, s{T0+4}, s{T0+5}")
    a(f"  s_lshr_b32 s{T0+5}, s{S_W}, 1")
    a(f"  s_lshl_b32 s{T0+5}, s{T0+5}, 4")
    a(f"  s_add_u32 s{T0+4}, s{T0+4}, s{T0+5}")
    a(f"  s_and_b32 s{T0+5}, s{S_W}, 1")
    a(f"  s_lshl_b32 s{T0+5}, s{T0+5}, 2")
    a(f"  s_add_u32 s{T0+4}, s{T0+4}, s{T0+5}")
    a(f"  s_lshl_b32 s{T0+4}, s{T0+4}, 1")
    a(f"  s_add_u32 s{T0+3}, s{T0+3}, s{T0+4}")
    a("""  v_and_b32 v2, 31, v0
  v_lshrrev_b32 v3, 5, v0
  v_lshlrev_b32 v2, 10, v2
  v_lshl_add_u32 v2, v3, 4, v2""")
    a("  s_waitcnt vmcnt(0)")
    for k in range(4):
        for gp in range(1, 8):
            a(f"  v_add_f32 v{16+k}, v{16+k}, v{16+gp*4+k}")
    a("  v_cvt_pk_bf16_f32 v4, v16, v17")
    a("  v_cvt_pk_bf16_f32 v5, v18, v19")
    a("  s_nop 1")
    a(f"  buffer_store_dwordx2 v[4:5], v2, {R(R_OUT)}, s{T0+3} offen")
    if opt.stamps:
        a("  s_waitcnt vmcnt(0)")
        stamp(a)
        stamp_flush(a)
    a("L_done:")
    a("  s_endpgm")
    a(kernel_desc(KNAME, 512, 102, 256))
    return a.text()

if __name__ == "__main__":
    import argparse
    ap = argparse.ArgumentParser()
    ap.add_argument("out")
    ap.add_argument("--nostamps", action="store_true")
    ap.add_argument("--plain", action="store_true")
    ap.add_argument("--global_", action="store_true")
    ap.add_argument("--npro", type=int, default=4)
    x = ap.parse_args()
    opt.stamps = not x.nostamps
    opt.nt = "" if x.plain else " nt"
    opt.force_global = x.global_
    opt.npro = x.npro
    open(x.out, "w").write(build())
```

```python
import sys, math, struct
from asmlib import *

WS_QF = 0x0000000
WS_MB = 0x0400000
WS_ML = 0x1400000
WS_OF = 0x1500000
WS_PO = 0x1900000
WS_FL = 0x2100000
FQ_OFF = WS_FL
F1_OFF = WS_FL + 0x4000
F2_OFF = WS_FL + 0x10000
F3_OFF = WS_FL + 0x14000
HL_OFF = WS_FL + 0x18000
WS_ST = 0x2200000
WS_SIZE = 0x2400000

def vr(a, n=1): return f"v{a}" if n == 1 else f"v[{a}:{a+n-1}]"
def ar(a, n=1): return f"a{a}" if n == 1 else f"a[{a}:{a+n-1}]"
def R(r): return f"s[{r}:{r+3}]"
SCALE = math.log2(math.e) / math.sqrt(128.0)
def f32hex(x): return "0x%08x" % struct.unpack("<I", struct.pack("<f", x))[0]

S_W, S_G, S_B, S_J = 3, 4, 5, 6
S_N, S_LOC, S_XCC, S_BG = 8, 9, 10, 11
S_LW, S_TILE, S_SPIN, S_T32 = 12, 13, 14, 15
P_X, P_K, P_V, P_WQ, P_WO, P_OUT, P_DBG, P_WS = 16, 18, 20, 22, 24, 26, 28, 30
R_K, R_V, R_X, R_WQ, R_WO, R_WS, R_OUT, R_DBG = 32, 36, 40, 44, 48, 52, 56, 60
T0 = 64
S_T = 80

L_K, L_V, L_X = 0x00000, 0x10000, 0x20000

V_DUM = 9
VKD, VVD, VWOD, V_L16, V_FL = 10, 12, 13, 14, 15
VKA, VVA, VL, VM = 16, 24, 28, 30
VS, VP, VN, VO0 = 32, 96, 128, 160
VXD, VWD, VWA, VXA = 224, 226, 227, 229
AO1, AQ, AK, AV = 0, 128, 192, 224
def Oreg(t, qt, k=0, n=16):
    return (vr(VO0+t*16+k, n) if qt == 0 else ar(AO1+t*16+k, n))

class Opt:
    stamps = True
    nt = " nt"
    timeout = 1 << 16
    force_global = False
    force_safe = False
    tstart = 9
    maxi = [2]
    kvpro = []
    kvmid = [('K',0), ('K',1)]
    kvpost = [('V',0), ('K',2), ('V',1), ('K',3)]
    bench = set()
opt = Opt()

def srd(a, r, p, off, size):
    if off is None:
        a(f"  s_mov_b32 s{r}, s{p}")
        a(f"  s_mov_b32 s{r+1}, s{p+1}")
    else:
        a(f"  s_add_u32 s{r}, s{p}, {off}")
        a(f"  s_addc_u32 s{r+1}, s{p+1}, 0")
    a(f"  s_mov_b32 s{r+2}, {size}")
    a(f"  s_mov_b32 s{r+3}, 0x20000")

nstamp = [0]
def stamp(a, name=""):
    if opt.stamps:
        k = nstamp[0]; nstamp[0] += 1
        assert k < 11, "too many stamps"
        a(f"  s_memrealtime s[{S_T+2*k}:{S_T+2*k+1}]")
def stamp_flush(a):
    if not opt.stamps: return
    n = nstamp[0]
    a("  s_waitcnt lgkmcnt(0)")
    a(f"  s_lshl_b32 s{T0}, s2, 2")
    a(f"  s_add_u32 s{T0}, s{T0}, s{S_W}")
    a(f"  s_mul_i32 s{T0}, s{T0}, 96")
    a(f"  s_add_u32 s{T0}, s{T0}, {WS_ST}")
    a("  v_mov_b32 v8, 0")
    for k in range(0, 12, 2):
        for u in range(2):
            kk = min(k+u, n-1)
            a(f"  v_mov_b32 v{4+2*u}, s{S_T+2*kk}")
            a(f"  v_mov_b32 v{5+2*u}, s{S_T+2*kk+1}")
        a(f"  s_add_u32 s{T0+1}, s{T0}, {k*8}")
        a(f"  s_mov_b64 exec, 1")
        a(f"  buffer_store_dwordx4 v[4:7], v8, {R(R_WS)}, s{T0+1} offen")
        a(f"  s_mov_b64 exec, -1")
        a("  s_nop 1")

def tr_addr(a, dst, tile, sigma, row_mode, tmp, base=0):
    t0, t1, t2, t3 = tmp, tmp+1, tmp+2, tmp+3
    a(f"  v_bfe_u32 v{t0}, v0, 4, 1")
    a(f"  v_and_b32 v{t1}, 3, v0")
    if sigma:
        a(f"  v_and_b32 v{t2}, 1, v{t1}")
        a(f"  v_lshrrev_b32 v{t1}, 1, v{t1}")
    else:
        a(f"  v_lshrrev_b32 v{t2}, 1, v{t1}")
        a(f"  v_and_b32 v{t1}, 1, v{t1}")
    a(f"  v_lshl_add_u32 v{t2}, v{t0}, 1, v{t2}")
    if isinstance(tile, int):
        a(f"  v_add_u32 v{t2}, {4*tile}, v{t2}")
    else:
        a(f"  v_add_u32 v{t2}, {tile}, v{t2}")
    a(f"  v_bfe_u32 v{t0}, v0, 2, 2")
    a(f"  v_lshlrev_b32 v{t3}, 2, v{t0}")
    a(f"  v_xor_b32 v{t2}, v{t2}, v{t3}")
    a(f"  v_lshlrev_b32 v{t2}, 4, v{t2}")
    a(f"  v_lshl_add_u32 v{t2}, v{t1}, 3, v{t2}")
    a(f"  v_lshrrev_b32 v{t3}, 5, v0")
    a(f"  v_lshl_add_u32 v{t3}, v{t3}, {3 if row_mode=='nat' else 2}, v{t0}")
    a(f"  v_lshl_add_u32 v{dst}, v{t3}, 8, v{t2}")
    if base:
        a(f"  v_add_u32 v{dst}, {hex(base)}, v{dst}")

lab = [0]
def newlabel(p):
    lab[0] += 1
    return f"L_{p}_{lab[0]}"

def poll(a, soff, nwords):
    L = newlabel("poll"); Lx = newlabel("pollx")
    mask = (1 << nwords) - 1
    a(f"  s_mov_b32 s{S_SPIN}, {opt.timeout}")
    a(f"{L}:")
    a(f"  buffer_load_dword v4, v{V_FL}, {R(R_WS)}, {soff} offen sc1")
    a(f"  s_sub_u32 s{S_SPIN}, s{S_SPIN}, 1")
    a(f"  s_cbranch_scc1 {Lx}")
    a(f"  s_waitcnt vmcnt(0)")
    a(f"  v_cmp_ne_u32 vcc, s{S_N}, v4")
    a(f"  s_nop 4")
    a(f"  s_and_b32 s{T0+15}, vcc_lo, {hex(mask)}")
    a(f"  s_cbranch_scc1 {L}")
    a(f"{Lx}:")

def set_flag(a, soff, always_global=False):
    a(f"  v_mov_b32 v4, s{S_N}")
    a(f"  v_mov_b32 v5, 0")
    a(f"  s_mov_b64 exec, 1")
    if always_global:
        a(f"  buffer_store_dword v4, v5, {R(R_WS)}, {soff} offen sc0 sc1")
    else:
        Lg = newlabel("fg"); Le = newlabel("fe")
        a(f"  s_cmp_eq_u32 s{S_LOC}, 0")
        a(f"  s_cbranch_scc1 {Lg}")
        a(f"  buffer_store_dword v4, v5, {R(R_WS)}, {soff} offen")
        a(f"  s_branch {Le}")
        a(f"{Lg}:")
        a(f"  buffer_store_dword v4, v5, {R(R_WS)}, {soff} offen sc0 sc1")
        a(f"{Le}:")
    a(f"  s_mov_b64 exec, -1")

def dual(a, emit):
    Lg = newlabel("sg"); Le = newlabel("se")
    a(f"  s_cmp_eq_u32 s{S_LOC}, 0")
    a(f"  s_cbranch_scc1 {Lg}")
    emit("")
    a(f"  s_branch {Le}")
    a(f"{Lg}:")
    emit(" sc0 sc1")
    a(f"{Le}:")

class Fifo:
    def __init__(self): self.ops = []
    def push(self, tag, n=1): self.ops += [tag] * n
    def after(self, tags):
        idx = [i for i, t in enumerate(self.ops) if t in tags]
        if not idx: return 63
        return min(63, len(self.ops) - 1 - max(idx))

def build():
    nstamp[0] = 0
    a = Asm()
    a(HEADER_COMMENT.rstrip())
    a("; @launch grid=(256,1,1) block=(256,1,1) lds=163840")
    a('.amdgcn_target "amdgcn-amd-amdhsa--gfx950"')
    a(kernel_start(KNAME).rstrip())
    fifo = Fifo()
    def emit(lst):
        for l in lst: a(l)
    a(f"""  s_cmp_ge_u32 s2, 256
  s_cbranch_scc1 L_done
  s_load_dwordx16 s[16:31], s[0:1], 0
  s_memrealtime s[{T0}:{T0+1}]
  s_getreg_b32 s{S_XCC}, hwreg(HW_REG_XCC_ID)
  v_lshrrev_b32 v1, 6, v0
  v_and_b32 v0, 63, v0
  s_and_b32 s{S_G}, s2, 7
  v_readfirstlane_b32 s{S_W}, v1
  s_lshr_b32 s{S_T32}, s2, 3
  s_lshr_b32 s{S_B}, s{S_T32}, 2
  s_and_b32 s{S_J}, s{S_T32}, 3
  s_and_b32 s{S_XCC}, s{S_XCC}, 7
  s_lshl_b32 s{S_BG}, s{S_B}, 3
  s_add_u32 s{S_BG}, s{S_BG}, s{S_G}
  v_lshlrev_b32 v{V_L16}, 4, v0
  v_lshlrev_b32 v{V_FL}, 2, v0
  s_lshl_b32 s{S_LW}, s{S_W}, 11
  v_lshrrev_b32 v2, 4, v0             ; l>>4
  v_and_b32 v3, 15, v0                ; l&15
  v_lshrrev_b32 v4, 3, v0             ; l>>3
  v_and_b32 v5, 7, v0                 ; l&7
  v_xor_b32 v6, v5, v2
  v_lshlrev_b32 v6, 4, v6
  v_lshl_add_u32 v{VXD}, v4, 10, v6
  v_add_u32 v7, 4, v2
  v_xor_b32 v6, v5, v7
  v_lshlrev_b32 v6, 4, v6
  v_lshl_add_u32 v{VXD+1}, v4, 10, v6
  v_lshlrev_b32 v6, 2, v2
  v_xor_b32 v6, v6, v3
  v_lshlrev_b32 v6, 4, v6
  v_lshl_add_u32 v{VWD}, v2, 13, v6
  v_lshlrev_b32 v8, 7, v5
  s_waitcnt lgkmcnt(0)""")
    if opt.stamps:
        a(f"  s_mov_b32 s{S_T}, s{T0}")
        a(f"  s_mov_b32 s{S_T+1}, s{T0+1}")
        nstamp[0] = 1
    a(f"  s_lshl_b32 s{T0+2}, s{S_T32}, 2")
    a(f"  s_add_u32 s{T0+2}, s{T0+2}, s{S_W}        ; id")
    srd(a, R_WQ, P_WQ, None, "0x400000")
    srd(a, R_X, P_X, None, "0x80000")
    if 'touch1' in opt.bench:
        a(f"  s_cmp_ge_u32 s{T0+2}, 64")
        a(f"  s_cbranch_scc1 L_touchx")
        a(f"  v_lshl_add_u32 v7, v4, 13, v8          ; (l>>3)*8192 + (l&7)*128")
        a(f"  s_lshl_b32 s{T0+3}, s{T0+2}, 16        ; 8*id*8192")
        a(f"  s_lshl_b32 s{T0+4}, s{S_G}, 10")
        a(f"  s_add_u32 s{T0+3}, s{T0+3}, s{T0+4}")
        a(f"  buffer_load_dword v{V_DUM}, v7, {R(R_WQ)}, s{T0+3} offen")
        a(f"  s_branch L_touchd")
        a(f"L_touchx:")
        a(f"  v_lshl_add_u32 v7, v4, 10, v8          ; (l>>3)*1024 + (l&7)*128")
        a(f"  s_sub_u32 s{T0+3}, s{T0+2}, 64")
        a(f"  s_lshl_b32 s{T0+3}, s{T0+3}, 13        ; 8*rows*1024")
        a(f"  buffer_load_dword v{V_DUM}, v7, {R(R_X)}, s{T0+3} offen")
        a(f"L_touchd:")
        fifo.push('T')
    srd(a, R_WS, P_WS, None, hex(WS_SIZE))
    srd(a, R_DBG, P_DBG, None, "0x100")
    a(f"  s_mov_b32 s{S_SPIN}, s{T0}")
    a(f"""  s_cmp_lg_u32 s2, 0
  s_cbranch_scc1 L_nononce
  s_cmp_lg_u32 s{S_W}, 0
  s_cbranch_scc1 L_nononce
  s_lshl_b32 s{T0+4}, s{S_SPIN}, 4
  s_or_b32 s{T0+4}, s{T0+4}, 0x80000000
  v_mov_b32 v6, s{T0+4}
  v_mov_b32 v7, 0
  s_mov_b64 exec, 1
  buffer_store_dword v6, v7, {R(R_DBG)}, 0 offen sc0 sc1
  s_mov_b64 exec, -1
L_nononce:""")
    a(f"  s_lshl_b32 s{T0+3}, s{S_B}, 16")
    srd(a, R_X, P_X, f"s{T0+3}", "0x10000")
    a(f"  s_lshl_b32 s{T0+3}, s{S_G}, 2")
    a(f"  s_add_u32 s{T0+3}, s{T0+3}, s{S_J}          ; h_own")
    a(f"  s_lshl_b32 s{T0+4}, s{T0+3}, 8")
    srd(a, R_WQ, P_WQ, f"s{T0+4}", "0x400000")
    a(f"  s_sub_u32 s{R_WQ+2}, s{R_WQ+2}, s{T0+4}")
    sXg, sXl, sWg, sWl, sO = T0+6, T0+7, T0+8, T0+9, T0+10
    a(f"  s_lshl_b32 s{sXg}, s{S_W}, 14")
    a(f"  s_lshl_b32 s{sWg}, s{S_W}, 17")
    a(f"  s_lshl_b32 s{sWl}, s{S_W}, 12")
    NCH = 4
    WSLOT = [L_K + 0x8000, L_K + 0xC000, L_V + 0x8000, L_V + 0xC000]
    XSLOT = [L_X + i*0x2000 for i in range(4)]
    sROT, sWc, sXc = T0+11, T0+12, T0+7
    a(f"  s_lshl_b32 s{sROT}, s{S_J}, 1")
    a(f"  s_add_u32 s{sROT}, s{sROT}, s{S_B}")
    def chunk_ops(c):
        slot = c % NCH
        out = [f"  s_add_u32 s{sWc}, s{sROT}, {c}",
               f"  s_and_b32 s{sWc}, s{sWc}, 7",
               f"  s_lshl_b32 s{sXc}, s{sWc}, 7",
               f"  s_add_u32 s{sXc}, s{sXc}, s{sXg}",
               f"  s_lshl_b32 s{sWc}, s{sWc}, 19",
               f"  s_add_u32 s{sWc}, s{sWc}, s{sWg}"]
        for ii in range(4):
            out.append(f"  s_add_u32 m0, s{sWl}, {WSLOT[slot] + ii*1024}")
            out.append(f"  s_add_u32 s{sO}, s{sWc}, {ii*32768}")
            out.append(f"  buffer_load_dwordx4 v{VWD}, {R(R_WQ)}, s{sO} offen lds")
        for ii in range(2):
            out.append(f"  s_add_u32 m0, s{S_LW}, {XSLOT[slot] + ii*1024}")
            out.append(f"  s_add_u32 s{sO}, s{sXc}, {ii*8192}")
            out.append(f"  buffer_load_dwordx4 v{VXD+ii}, {R(R_X)}, s{sO} offen lds")
        fifo.push(('C', c), 6)
        return out
    def issue_chunk(c):
        emit(chunk_ops(c))
    issue_chunk(0)
    a(f"  s_lshl_b32 s{T0}, s{S_B}, 5")
    a(f"  s_lshl_b32 s{T0+1}, s{S_G}, 2")
    a(f"  s_add_u32 s{T0}, s{T0}, s{T0+1}")
    a(f"  s_add_u32 s{T0+1}, s{T0}, s{S_J}")
    a(f"  s_lshl_b32 s{T0+1}, s{T0+1}, 14")
    a(f"  s_add_u32 s{T0+1}, s{T0+1}, s{S_LW}")
    VMBT = 233
    a(f"""  v_bfe_u32 v4, v0, 4, 1
  v_bfe_u32 v5, v0, 3, 1
  v_and_b32 v6, 7, v0
  v_lshlrev_b32 v4, 13, v4
  v_lshl_add_u32 v4, v5, 10, v4
  v_lshl_add_u32 v{VMBT}, v6, 7, v4        ; qt*8192 + s*1024 + u*128""")
    issue_chunk(1)
    a(f"  s_lshl_b32 s{T0+2}, s{S_W}, 2")
    tr_addr(a, VWA, f"s{T0+2}", True, 'nat', 4, base=L_K + 0x8000)
    a(f"  v_add_u32 v{VWA+1}, 0x10000, v{VWA}")
    a("""  v_and_b32 v6, 31, v0
  v_lshrrev_b32 v7, 5, v0
  v_bfe_u32 v8, v0, 1, 3""")
    for ks in range(4):
        a(f"  v_add_u32 v1, {2*ks}, v7")
        a(f"  v_xor_b32 v1, v1, v8")
        a(f"  v_lshlrev_b32 v1, 4, v1")
        a(f"  v_lshl_add_u32 v{VXA+ks}, v6, 7, v1")
        a(f"  v_add_u32 v{VXA+ks}, {hex(L_X)}, v{VXA+ks}")
    issue_chunk(2)
    a(f"  s_lshl_b32 s{T0+3}, s{S_BG}, 19")
    a(f"  s_lshl_b32 s{T0+4}, s{S_J}, 17")
    a(f"  s_add_u32 s{T0+3}, s{T0+3}, s{T0+4}")
    srd(a, R_K, P_K, f"s{T0+3}", "0x20000")
    srd(a, R_V, P_V, f"s{T0+3}", "0x20000")
    a(f"  s_lshl_b32 s{T0+2}, s{S_W}, 3")
    for i in range(2):
        a(f"  v_add_u32 v4, s{T0+2}, v2")
        a(f"  v_add_u32 v5, {4*i}, v4")
        a(f"  v_and_b32 v5, 15, v5")
        a(f"  v_xor_b32 v5, v5, v3")
        a(f"  v_lshlrev_b32 v5, 4, v5")
        a(f"  v_lshl_add_u32 v{VKD+i}, v4, 8, v5")
    a(f"  v_lshlrev_b32 v5, 2, v2")
    a(f"  v_xor_b32 v5, v5, v3")
    a(f"  v_lshlrev_b32 v5, 4, v5")
    a(f"  v_lshl_add_u32 v{VVD}, v4, 8, v5")
    a(f"  v_lshl_add_u32 v{VWOD}, v4, 10, v5")
    RKN = RVN = 8
    def dmaK(i):
        out = [f"  s_add_u32 m0, s{S_LW}, {L_K+(i%RKN)*8192}", f"  s_mov_b32 s{S_TILE}, {i*8192}"]
        for ii in range(2):
            out.append(f"  buffer_load_dwordx4 v{VKD+ii}, {R(R_K)}, s{S_TILE} offen offset:{ii*1024}{opt.nt} lds")
        fifo.push(('K', i), 2)
        if 'nodma' in opt.bench and i >= 8: return []
        return out
    def dmaV(i):
        out = [f"  s_add_u32 m0, s{S_LW}, {L_V+(i%RVN)*8192}", f"  s_mov_b32 s{S_TILE}, {i*8192}"]
        for ii in range(2):
            out.append(f"  buffer_load_dwordx4 v{VVD}, {R(R_V)}, s{S_TILE} offen offset:{ii*1024}{opt.nt} lds")
        fifo.push(('V', i), 2)
        if 'nodma' in opt.bench and i >= 8: return []
        return out
    if 'nowarm' not in opt.bench:
        a(f"  v_mov_b32 v5, 0")
        a(f"  s_add_u32 s{T0+2}, s{T0+1}, {WS_QF}")
        a(f"  buffer_load_dword v{V_DUM}, v{VMBT}, {R(R_WS)}, s{T0+2} offen")
        a(f"  s_lshl_b32 s{T0+2}, s{S_BG}, 7")
        a(f"  s_add_u32 s{T0+3}, s{T0+2}, {FQ_OFF}")
        a(f"  buffer_load_dword v{V_DUM}, v5, {R(R_WS)}, s{T0+3} offen")
        a(f"  buffer_load_dword v{V_DUM}, v5, {R(R_K)}, 0 offen")
        a(f"  buffer_load_dword v{V_DUM}, v5, {R(R_V)}, 0 offen")
        fifo.push('T', 4)
    AF, BF, ACC = 32, 64, 128
    def reads(kc):
        out = []
        slot = kc % NCH; buf = kc & 1
        wo = WSLOT[slot] - (L_K + 0x8000)
        for ks in range(4):
            for rd in range(2):
                off = wo + ks*4096 + rd*1024
                out.append(f"  ds_read_b64_tr_b16 {vr(AF+buf*16+ks*4+rd*2,2)}, v{VWA+(off>>16)} offset:{off & 65535}")
            for qt in range(2):
                out.append(f"  ds_read_b128 {vr(BF+buf*32+ks*8+qt*4,4)}, v{VXA+ks} offset:{slot*8192+qt*4096}")
        return out
    if 'p1st' in opt.bench: stamp(a, "before C0 wait")
    a(f"  s_waitcnt vmcnt({fifo.after([('C',0)])})")
    a("  s_barrier")
    if 'p1st' in opt.bench: stamp(a, "C0 landed")
    emit(reads(0))
    kvpro = list(opt.kvpro)
    for c in range(8):
        if c + 1 < 8:
            a(f"  s_waitcnt vmcnt({fifo.after([('C',c+1)])}) lgkmcnt(0)")
            a("  s_barrier")
            if 'p1st' in opt.bench: stamp(a, f"C{c+1} landed")
            if c == 3:
                Ln = newlabel("nonce"); Lnx = newlabel("noncex"); Lnc = newlabel("noncechk")
                a(f"  s_mov_b32 s{S_SPIN}, {opt.timeout}")
                a(f"  s_branch {Lnc}")
                a(f"{Ln}:")
                a(f"  buffer_load_dword v8, v5, {R(R_DBG)}, 0 offen sc1")
                a(f"  s_sub_u32 s{S_SPIN}, s{S_SPIN}, 1")
                a(f"  s_cbranch_scc1 {Lnx}")
                a(f"  s_waitcnt vmcnt(0)")
                a(f"{Lnc}:")
                a(f"  v_readfirstlane_b32 s{S_N}, v8")
                a(f"  s_nop 3")
                a(f"  s_cmp_eq_u32 s{S_N}, 0")
                a(f"  s_cbranch_scc1 {Ln}")
                a(f"{Lnx}:")
                Lw = newlabel("hw"); Lwd = newlabel("hwd")
                a(f"  s_lshl_b32 s{T0+2}, s{S_BG}, 7")
                a(f"  s_lshl_b32 s{T0+3}, s{S_J}, 2")
                a(f"  s_add_u32 s{T0+2}, s{T0+2}, s{T0+3}")
                a(f"  s_add_u32 s{T0+2}, s{T0+2}, {HL_OFF}")
                a(f"  s_cmp_lg_u32 s{S_W}, 0")
                a(f"  s_cbranch_scc1 {Lw}")
                a(f"  s_or_b32 s{T0+3}, s{S_N}, s{S_XCC}")
                a(f"  v_mov_b32 v8, s{T0+3}")
                a(f"  s_mov_b64 exec, 1")
                a(f"  buffer_store_dword v8, v5, {R(R_WS)}, s{T0+2} offen sc0 sc1")
                a(f"  s_mov_b64 exec, -1")
                a(f"  s_branch {Lwd}")
                a(f"{Lw}:")
                a(f"  buffer_load_dword v{V_DUM}, v5, {R(R_DBG)}, 0 offen")
                a(f"{Lwd}:")
                fifo.push('H')
        else:
            a("  s_waitcnt lgkmcnt(0)")
        fill = []
        if c + 1 < 8: fill += reads(c + 1)
        dm = []
        if c + 3 < 8: dm += chunk_ops(c + 3)
        for (cc, kind, i) in kvpro:
            if cc == c: dm += (dmaK(i) if kind == 'K' else dmaV(i))
        if c == 0:
            dm += [f"  v_mov_b32 v5, 0", f"  buffer_load_dword v8, v5, {R(R_DBG)}, 0 offen sc1"]
            fifo.push('NL')
        if c == 6:
            dm += [f"  s_lshl_b32 s{T0+2}, s{S_BG}, 7", f"  s_add_u32 s{T0+2}, s{T0+2}, {HL_OFF}",
                   f"  buffer_load_dwordx4 v[4:7], v5, {R(R_WS)}, s{T0+2} offen sc1"]
            fifo.push('HL')
        buf = c & 1
        mf = []
        for ks in range(4):
            for qt in range(2):
                cc_ = vr(ACC+16*qt,16) if (c or ks) else "0"
                mf.append(f"  v_mfma_f32_32x32x16_bf16 {vr(ACC+16*qt,16)}, {vr(AF+buf*16+ks*4,4)}, {vr(BF+buf*32+ks*8+qt*4,4)}, {cc_}")
        allf = fill + dm
        n = len(mf)
        for i_, m_ in enumerate(mf):
            a(m_)
            lo = len(allf)*i_//n; hi = len(allf)*(i_+1)//n
            emit(allf[lo:hi])
    Lh = newlabel("hello"); Lhx = newlabel("hellox"); Lh2 = newlabel("hellochk")
    a(f"  s_mov_b32 s{S_SPIN}, {opt.timeout}")
    a(f"  s_waitcnt vmcnt({fifo.after(['HL'])})")
    a(f"  s_branch {Lh2}")
    a(f"{Lh}:")
    a(f"  buffer_load_dwordx4 v[4:7], v5x, {R(R_WS)}, s{T0+2} offen sc1".replace("v5x", "v1"))
    a(f"  s_sub_u32 s{S_SPIN}, s{S_SPIN}, 1")
    a(f"  s_cbranch_scc1 {Lhx}")
    a(f"  s_waitcnt vmcnt(0)")
    a(f"{Lh2}:")
    a(f"  v_mov_b32 v1, 0")
    a(f"  v_xor_b32 v4, s{S_N}, v4")
    a(f"  v_xor_b32 v5, s{S_N}, v5")
    a(f"  v_xor_b32 v6, s{S_N}, v6")
    a(f"  v_xor_b32 v7, s{S_N}, v7")
    a(f"  v_or_b32 v8, v4, v5")
    a(f"  v_or3_b32 v8, v8, v6, v7")
    a(f"  s_nop 0")
    a(f"  v_readfirstlane_b32 s{T0+3}, v8")
    a(f"  s_nop 3")
    a(f"  s_cmp_gt_u32 s{T0+3}, 7")
    a(f"  s_cbranch_scc1 {Lh}")
    a(f"{Lhx}:")
    a(f"  v_xor_b32 v4, s{S_XCC}, v4")
    a(f"  v_xor_b32 v5, s{S_XCC}, v5")
    a(f"  v_xor_b32 v6, s{S_XCC}, v6")
    a(f"  v_xor_b32 v7, s{S_XCC}, v7")
    a(f"  v_or_b32 v8, v4, v5")
    a(f"  v_or3_b32 v8, v8, v6, v7")
    a(f"  s_nop 0")
    a(f"  v_readfirstlane_b32 s{T0+3}, v8")
    a(f"  s_nop 3")
    a(f"  s_cmp_eq_u32 s{T0+3}, 0")
    a(f"  s_cselect_b32 s{S_LOC}, 1, 0")
    if opt.force_global:
        a(f"  s_mov_b32 s{S_LOC}, 0")
    a(f"  s_mov_b32 s{sO}, {f32hex(SCALE)}")
    for i in range(32):
        a(f"  v_mul_f32 v{ACC+i}, s{sO}, v{ACC+i}")
    for qt in range(2):
        for s in range(2):
            for p in range(4):
                r = ACC + 16*qt + 8*s + 2*p
                a(f"  v_cvt_pk_bf16_f32 v{32+qt*8+s*4+p}, v{r}, v{r+1}")
    if 'p2st' not in opt.bench: stamp(a, "P1 done")
    if 'p1st' in opt.bench:
        stamp_flush(a); a("L_done:"); a("  s_endpgm"); a(kernel_desc(KNAME, 512, 102, 256)); return a.text()
    def qst(fl):
        for qt in range(2):
            for s in range(2):
                a(f"  s_add_u32 s{T0+2}, s{T0+1}, {WS_QF + qt*8192+s*1024}")
                a(f"  buffer_store_dwordx4 {vr(32+qt*8+s*4,4)}, v{V_L16}, {R(R_WS)}, s{T0+2} offen{fl}")
    dual(a, qst)
    fifo.push('QS', 4)
    for kind, i in opt.kvmid:
        emit(dmaK(i) if kind == 'K' else dmaV(i))
    a("""  v_and_b32 v4, 31, v0
  v_lshrrev_b32 v5, 5, v0
  v_and_b32 v6, 15, v0""")
    for ks in range(8):
        a(f"  v_add_u32 v7, {2*ks}, v5")
        a(f"  v_xor_b32 v7, v7, v6")
        a(f"  v_lshlrev_b32 v7, 4, v7")
        a(f"  v_lshl_add_u32 v{VKA+ks}, v4, 8, v7")
    a(f"  s_lshl_b32 s{T0+2}, s{S_BG}, 7")
    a(f"  s_lshl_b32 s{T0+3}, s{S_J}, 4")
    a(f"  s_add_u32 s{T0+3}, s{T0+3}, s{T0+2}")
    a(f"  s_lshl_b32 s{T0+4}, s{S_W}, 2")
    a(f"  s_add_u32 s{T0+3}, s{T0+3}, s{T0+4}")
    a(f"  s_add_u32 s{T0+3}, s{T0+3}, {FQ_OFF}")
    a(f"  s_waitcnt vmcnt({fifo.after(['QS'])})")
    set_flag(a, f"s{T0+3}")
    if 'p2st' not in opt.bench: stamp(a, "Q published")
    for t in range(4):
        tr_addr(a, VVA+t, t, False, 'pv', 4, base=L_V)
    a(f"  s_lshl_b32 s{T0+3}, s{S_W}, 4")
    a(f"  s_add_u32 s{T0+3}, s{T0+3}, s{T0+2}")
    a(f"  s_add_u32 s{T0+3}, s{T0+3}, {FQ_OFF}")
    poll(a, f"s{T0+3}", 4)
    fifo.ops = []
    a(f"  s_add_u32 s{T0+1}, s{T0}, s{S_W}")
    a(f"  s_lshl_b32 s{T0+1}, s{T0+1}, 14")
    for qt in range(2):
        for ks in range(8):
            off = qt*8192 + ks*1024
            if (off & 4095) == 0:
                a(f"  s_add_u32 s{T0+2}, s{T0+1}, {WS_QF + off}")
            a(f"  buffer_load_dwordx4 {ar(AQ+qt*32+ks*4,4)}, v{V_L16}, {R(R_WS)}, s{T0+2} offen offset:{off & 4095} sc1")
    fifo.push('Q', 16)
    a("  s_barrier")
    for l in [f"  ds_read_b128 {ar(AK+ks*4,4)}, v{VKA+ks} offset:{L_K}" for ks in range(8)]: a(l)
    for kind, i in opt.kvpost:
        emit(dmaK(i) if kind == 'K' else dmaV(i))
    a(f"  s_lshl_b32 s{T0}, s{S_G}, 19")
    a(f"  s_lshl_b32 s{T0+1}, s{S_J}, 8")
    a(f"  s_add_u32 s{T0}, s{T0}, s{T0+1}")
    srd(a, R_WO, P_WO, f"s{T0}", "0x400000")
    a(f"  s_sub_u32 s{R_WO+2}, s{R_WO+2}, s{T0}")
    NSTEP = 16
    def readK(i):
        if 'nolds' in opt.bench and i > 1: return []
        return [f"  ds_read_b128 {ar(AK+ks*4,4)}, v{VKA+ks} offset:{L_K+(i%RKN)*8192}" for ks in range(8)]
    def readV(i):
        out = []
        for s in range(2):
            for t in range(4):
                for rd in range(2):
                    out.append(f"  ds_read_b64_tr_b16 {ar(AV+(t*2+s)*4+rd*2,2)}, v{VVA+t} offset:{(i%RVN)*8192+s*4096+rd*2048}")
        return out
    def qk(i, first=False):
        buf = i & 1; out = []
        for qt in range(2):
            for ks in range(8):
                d = vr(VS+buf*32+qt*16, 16)
                c = d if ks > 0 else ("0" if first else vr(VN+qt*16, 16))
                out.append(f"  v_mfma_f32_32x32x16_bf16 {d}, {ar(AK+ks*4,4)}, {ar(AQ+qt*32+ks*4,4)}, {c}")
        return out
    def pv(i):
        buf = i & 1; out = []
        for qt in range(2):
            for s in range(2):
                for t in range(4):
                    d = Oreg(t, qt)
                    c = "0" if (i == 0 and s == 0) else d
                    out.append(f"  v_mfma_f32_32x32x16_bf16 {d}, {ar(AV+(t*2+s)*4,4)}, {vr(VP+buf*16+qt*8+s*4,4)}, {c}")
        return out
    def sm(i, qt):
        buf = i & 1
        r0 = VS+buf*32+qt*16
        groups = []
        for k in range(17):
            g = []
            if k < 16: g.append(f"  v_exp_f32 v{r0+k}, v{r0+k}")
            if k >= 1: g.append(f"  v_add_f32 v{VL+qt}, v{VL+qt}, v{r0+k-1}")
            if k >= 2 and k % 2 == 0:
                p = k//2 - 1
                g.append(f"  v_cvt_pk_bf16_f32 v{VP+buf*16+qt*8+p}, v{r0+2*p}, v{r0+2*p+1}")
            groups.append(g)
        return groups
    def block(mfmas, groups, extra, pre=None, extra_start=0):
        n = len(mfmas)
        for i, mf in enumerate(mfmas):
            a(mf)
            if pre and i in pre:
                for l in pre[i]: a(l)
            if groups:
                for l in groups[i]: a(l)
            if i >= extra_start and extra:
                span = n - extra_start
                lo = (len(extra) * (i - extra_start)) // span
                hi = (len(extra) * (i - extra_start + 1)) // span
                for l in extra[lo:hi]: a(l)
        if groups:
            for l in groups[16]: a(l)
    WOLOC = [L_X + u*8192 for u in range(4)] + [L_K + s_*8192 for s_ in range(8)] + [L_V + s_*8192 for s_ in range(4)]
    wo_at = {}
    for u in range(4): wo_at.setdefault(2+u, []).append(u)
    for s_ in range(8): wo_at.setdefault(7+s_, []).append(4+s_)
    for s_ in range(4): wo_at.setdefault(9+s_, []).append(12+s_)
    sWOg = T0+12
    def dmaWO(u):
        out = []
        for ii in range(2):
            out.append(f"  s_add_u32 m0, s{S_LW}, {WOLOC[u] + ii*1024}")
            out.append(f"  s_mov_b32 s{S_TILE}, {u*32768 + ii*4096}")
            out.append(f"  buffer_load_dwordx4 v{VWOD}, {R(R_WO)}, s{S_TILE} offen lds")
        fifo.push(('W', u), 2)
        return out
    sMB, sML = T0+13, T0+14
    a(f"  s_lshl_b32 s{sMB}, s{S_BG}, 2")
    a(f"  s_add_u32 s{sMB}, s{sMB}, s{S_W}")
    a(f"  s_lshl_b32 s{sMB}, s{sMB}, 2")
    a(f"  s_add_u32 s{sMB}, s{sMB}, s{S_J}        ; (bg*4+w)*4+j")
    a(f"  s_lshl_b32 s{sML}, s{sMB}, 9")
    a(f"  s_add_u32 s{sML}, s{sML}, {WS_ML}")
    a(f"  s_lshl_b32 s{sMB}, s{sMB}, 14")
    a(f"  s_add_u32 s{sMB}, s{sMB}, {WS_MB}")
    VT128 = 234
    a(f"  v_lshlrev_b32 v{VT128}, 7, v0           ; lane*128")
    VT4 = 235
    a(f"  v_and_b32 v{VT4}, 3, v0")
    a(f"  v_lshlrev_b32 v{VT4}, 7, v{VT4}         ; (lane&3)*128")
    VT16 = 236
    a(f"  v_and_b32 v{VT16}, 15, v0")
    a(f"  v_lshlrev_b32 v{VT16}, 7, v{VT16}       ; (lane&15)*128")
    sOFp = T0+11
    a(f"  s_lshl_b32 s{sOFp}, s{S_B}, 5")
    a(f"  s_lshl_b32 s{S_TILE}, s{S_G}, 2")
    a(f"  s_add_u32 s{sOFp}, s{sOFp}, s{S_TILE}")
    a(f"  s_add_u32 s{sOFp}, s{sOFp}, s{S_J}")
    a(f"  s_lshl_b32 s{sOFp}, s{sOFp}, 14")
    a(f"  s_add_u32 s{sOFp}, s{sOFp}, s{S_LW}")
    a(f"  s_add_u32 s{sOFp}, s{sOFp}, {WS_OF}")
    tl = []
    for n in range(8):
        tl.append([f"  s_add_u32 s{S_TILE}, s{sMB}, {n*2048}", f"  buffer_load_dword v{V_DUM}, v{VT16}, {R(R_WS)}, s{S_TILE} offen"])
    tl.append([f"  buffer_load_dword v{V_DUM}, v{VT4}, {R(R_WS)}, s{sML} offen"])
    tl.append([f"  buffer_load_dword v{V_DUM}, v{VMBT}, {R(R_WS)}, s{sOFp} offen"])
    tl.append([f"  s_lshl_b32 s{S_TILE}, s{S_BG}, 9", f"  s_add_u32 s{S_TILE}, s{S_TILE}, {F1_OFF}",
               f"  buffer_load_dword v{V_DUM}, v{VT4}, {R(R_WS)}, s{S_TILE} offen"])
    tl.append([f"  s_lshl_b32 s{S_TILE}, s{S_BG}, 7", f"  s_add_u32 s{S_TILE}, s{S_TILE}, {F2_OFF}",
               f"  buffer_load_dword v{V_DUM}, v{V_FL}, {R(R_WS)}, s{S_TILE} offen"])
    TSTART = opt.tstart
    def touches(i):
        out = []
        if 'notouch2' in opt.bench: return out
        if i >= TSTART:
            per = -(-len(tl) // (NSTEP - 1 - TSTART))
            for g in tl[(i-TSTART)*per:(i-TSTART+1)*per]:
                out += g; fifo.push('T')
        return out
    stamp(a, "P2 start")
    if 'p2st' in opt.bench: a("  s_memtime s[14:15]")
    a(f"  s_waitcnt vmcnt({fifo.after(['Q'])}) lgkmcnt(0)")
    emit(qk(0, True))
    emit(readK(1))
    a("  s_nop 7")
    for qt in range(2):
        r = VS + qt*16
        a(f"  v_max3_f32 v{VM+qt}, v{r}, v{r+1}, v{r+2}")
        for k in range(3, 15, 2):
            a(f"  v_max3_f32 v{VM+qt}, v{VM+qt}, v{r+k}, v{r+k+1}")
        a(f"  v_max_f32 v{VM+qt}, v{VM+qt}, v{r+15}")
        a(f"  v_mov_b32 v4, v{VM+qt}")
        a("  s_nop 1")
        a(f"  v_permlane32_swap_b32 v{VM+qt}, v4")
        a("  s_nop 1")
        a(f"  v_max_f32 v{VM+qt}, v{VM+qt}, v4")
        for k in range(16):
            a(f"  v_sub_f32 v{VN+qt*16+k}, 0, v{VM+qt}")
        for k in range(16):
            a(f"  v_sub_f32 v{r+k}, v{r+k}, v{VM+qt}")
    a(f"  v_mov_b32 v{VL}, 0")
    a(f"  v_mov_b32 v{VL+1}, 0")
    for g in sm(0, 0): emit(g)
    allpro = [(k_, i_) for (_, k_, i_) in opt.kvpro] + list(opt.kvmid) + list(opt.kvpost)
    nextK = [1 + max(i_ for k_, i_ in allpro if k_ == 'K')]
    nextV = [1 + max(i_ for k_, i_ in allpro if k_ == 'V')]
    for i in range(NSTEP):
        need = [('V', i)] + ([('K', i+2)] if i+2 < NSTEP else [])
        sync = [f"  s_waitcnt vmcnt({fifo.after(need)}) lgkmcnt(0)", "  s_barrier"]
        dma = []
        cand = []
        if nextK[0] < NSTEP and nextK[0] - RKN <= i + 1: pass
        cnt = 0
        MAXI = opt.maxi[min(i, len(opt.maxi)-1)]
        while cnt < MAXI:
            kfree = nextK[0] < NSTEP and (nextK[0] < RKN or nextK[0] - RKN <= i + 1)
            vfree = nextV[0] < NSTEP and (nextV[0] < RVN or nextV[0] - RVN <= i - 1)
            if not kfree and not vfree: break
            if kfree and (not vfree or nextK[0] - 2 <= nextV[0]):
                dma += dmaK(nextK[0]); nextK[0] += 1
            else:
                dma += dmaV(nextV[0]); nextV[0] += 1
            cnt += 1
        for u in wo_at.get(i, []): dma += dmaWO(u)
        dma += touches(i)
        if i + 1 < NSTEP:
            a("  s_waitcnt lgkmcnt(0)")
            block(qk(i+1), sm(i, 1), readV(i), pre={0: sync}, extra_start=1)
        else:
            emit(sync)
            emit(readV(i))
            for g in sm(i, 1): emit(g)
        a("  s_waitcnt lgkmcnt(0)")
        extra = dma + (readK(i+2) if i+2 < NSTEP else [])
        block(pv(i), sm(i+1, 0) if i+1 < NSTEP else None, extra, extra_start=0)
        if 'p2st' in opt.bench and i in (0, 2, 4, 6, 8, 11, 13): stamp(a, f"it{i} done")
    stamp(a, "P2 done")
    if 'p2st' in opt.bench:
        a(f"  s_memtime s[{T0}:{T0+1}]")
        a("  s_waitcnt lgkmcnt(0)")
        k = nstamp[0]; nstamp[0] += 1
        a(f"  s_sub_u32 s{T0}, s{T0}, s14")
        a(f"  s_mul_i32 s{T0}, s{T0}, 100")
        a(f"  s_add_u32 s{S_T+2*k}, s{S_T}, s{T0}")
        a(f"  s_addc_u32 s{S_T+2*k+1}, s{S_T+1}, 0")
    if 'p2exit' in opt.bench:
        stamp_flush(a); a("L_done:"); a("  s_endpgm"); a(kernel_desc(KNAME, 512, 102, 256)); return a.text()
    def lreduce():
        for qt in range(2):
            a(f"  v_mov_b32 v4, v{VL+qt}")
            a("  s_nop 1")
            a(f"  v_permlane32_swap_b32 v{VL+qt}, v4")
            a("  s_nop 1")
            a(f"  v_add_f32 v{VL+qt}, v{VL+qt}, v4")
    lreduce()
    a(f"  v_max_f32 v4, v{VL}, v{VL+1}")
    a(f"  v_add_f32 v5, v{VL}, v{VL+1}")
    a(f"  s_mov_b32 s{T0}, {f32hex(2.0**24)}")
    a(f"  v_cmp_nge_f32 vcc, s{T0}, v4        ; !(2^24 >= max(l0,l1))")
    a(f"  v_cmp_u_f32 s[{T0+2}:{T0+3}], v5, v5")
    a("  s_nop 4")
    a(f"  s_or_b64 vcc, vcc, s[{T0+2}:{T0+3}]")
    a(f"  s_cselect_b32 s{T0+1}, 1, 0")
    if opt.force_safe:
        a(f"  s_mov_b32 s{T0+1}, 1")
    VOTE = L_V + 4*8192
    a(f"  v_mov_b32 v4, s{T0+1}")
    a(f"  s_lshl_b32 s{T0+2}, s{S_W}, 2")
    a(f"  v_mov_b32 v5, s{T0+2}")
    a(f"  v_add_u32 v5, {hex(VOTE)}, v5")
    a(f"  ds_write_b32 v5, v4")
    a("  s_waitcnt lgkmcnt(0)")
    a("  s_barrier")
    a(f"  v_mov_b32 v5, {hex(VOTE)}")
    a(f"  ds_read_b128 v[4:7], v5")
    a("  s_waitcnt lgkmcnt(0)")
    a("  v_or_b32 v4, v4, v5")
    a("  v_or3_b32 v4, v4, v6, v7")
    a("  s_nop 0")
    a(f"  v_readfirstlane_b32 s{T0+1}, v4")
    a(f"  s_cmp_lg_u32 s{T0+1}, 0")
    a(f"  s_cbranch_scc1 L_safe")
    a("L_safe_back:")
    VPK = 32
    for t in range(4):
        for s in range(2):
            for p in range(4):
                r = VO0 + t*16 + s*8 + 2*p
                a(f"  v_cvt_pk_bf16_f32 v{VPK+(t*2+s)*4+p}, v{r}, v{r+1}")
    OWN = L_V + 5*8192
    Lown = newlabel("own"); Lpub = newlabel("pub")
    a(f"  s_cmp_eq_u32 s{S_W}, s{S_J}")
    a(f"  s_cbranch_scc1 {Lown}")
    def st_half(qt):
        def f(fl):
            for n in range(8):
                off = qt*8192 + n*1024
                if (off & 4095) == 0:
                    a(f"  s_add_u32 s{T0+4}, s{sMB}, {off}")
                a(f"  buffer_store_dwordx4 {vr(VPK+(qt*8+n)*4,4)}, v{V_L16}, {R(R_WS)}, s{T0+4} offen offset:{off & 4095}{fl}")
        return f
    def cvt_q1():
        for t in range(4):
            for k in range(16):
                a(f"  v_accvgpr_read_b32 v{96+k}, a{AO1+t*16+k}")
            for s in range(2):
                for p in range(4):
                    a(f"  v_cvt_pk_bf16_f32 v{VPK+32+(t*2+s)*4+p}, v{96+s*8+2*p}, v{96+s*8+2*p+1}")
    dual(a, st_half(0))
    cvt_q1()
    dual(a, st_half(1))
    a(f"  s_branch {Lpub}")
    a(f"{Lown}:")
    a(f"  v_add_u32 v8, {hex(OWN)}, v{V_L16}")
    for n in range(8):
        a(f"  ds_write_b128 v8, {vr(VPK+n*4,4)} offset:{n*1024}")
    cvt_q1()
    for n in range(8):
        a(f"  ds_write_b128 v8, {vr(VPK+32+n*4,4)} offset:{8192+n*1024}")
    a(f"{Lpub}:")
    a(f"  v_mov_b32 v4, v{VM}")
    a(f"  v_mov_b32 v5, v{VL}")
    a(f"  v_mov_b32 v6, v{VM+1}")
    a(f"  v_mov_b32 v7, v{VL+1}")
    def mlst(fl):
        a(f"  s_mov_b32 exec_hi, 0")
        a(f"  buffer_store_dwordx4 v[4:7], v{V_L16}, {R(R_WS)}, s{sML} offen{fl}")
        a(f"  s_mov_b32 exec_hi, -1")
    dual(a, mlst)
    a("  s_waitcnt vmcnt(0) lgkmcnt(0)")
    a(f"  s_lshl_b32 s{T0+2}, s{S_BG}, 9")
    a(f"  s_lshl_b32 s{T0+3}, s{S_W}, 7")
    a(f"  s_add_u32 s{T0+3}, s{T0+3}, s{T0+2}")
    a(f"  s_lshl_b32 s{T0+4}, s{S_J}, 2")
    a(f"  s_add_u32 s{T0+3}, s{T0+3}, s{T0+4}")
    a(f"  s_add_u32 s{T0+3}, s{T0+3}, {F1_OFF}")
    set_flag(a, f"s{T0+3}")
    stamp(a, "H1 published")
    a("  s_barrier")
    VWR = 192
    a(f"  s_lshl_b32 s{T0+4}, s{S_W}, 2")
    tr_addr(a, VWR, f"s{T0+4}", True, 'pv', 4)
    a(f"  v_add_u32 v{VWR+1}, 0x10000, v{VWR}")
    a(f"  v_add_u32 v{VWR+2}, 0x20000, v{VWR}")
    for kk in range(32):
        for r_ in range(2):
            off = WOLOC[kk >> 1] + (kk & 1)*4096 + r_*2048
            a(f"  ds_read_b64_tr_b16 {ar(128+kk*4+r_*2,2)}, v{VWR+(off>>16)} offset:{off & 65535}")
        if kk % 4 == 3:
            a("  s_waitcnt lgkmcnt(4)")
    a(f"  s_lshl_b32 s{T0+4}, s{S_W}, 11")
    a(f"  v_add_u32 v8, s{T0+4}, v{V_L16}")
    a(f"  v_add_u32 v8, {hex(OWN)}, v8")
    a("  s_waitcnt lgkmcnt(4)")
    a(f"  s_lshl_b32 s{T0+3}, s{S_J}, 7")
    a(f"  s_add_u32 s{T0+3}, s{T0+3}, s{T0+2}")
    a(f"  s_add_u32 s{T0+3}, s{T0+3}, {F1_OFF}")
    VPA, VML, VAC = 32, 128, 96
    for qt in range(2):
        for s in range(2):
            a(f"  ds_read_b128 {vr(208+(qt*2+s)*4,4)}, v8 offset:{qt*8192+s*1024}")
    poll(a, f"s{T0+3}", 4)
    stamp(a, "H1 flags seen")
    a(f"  s_lshl_b32 s{T0}, s{S_BG}, 2")
    a(f"  s_add_u32 s{T0}, s{T0}, s{S_J}")
    a(f"  s_lshl_b32 s{T0}, s{T0}, 2             ; (bg*4+j)*4")
    a(f"  s_lshl_b32 s{T0+1}, s{T0}, 14")
    a(f"  s_add_u32 s{T0+1}, s{T0+1}, s{S_LW}    ; + 2w*1024")
    a(f"  s_lshl_b32 s{T0+2}, s{T0}, 9")
    a("  v_and_b32 v2, 31, v0")
    a("  v_lshlrev_b32 v2, 4, v2")
    for jp in range(4):
        a(f"  s_add_u32 s{T0+3}, s{T0+2}, {WS_ML + jp*512}")
        a(f"  buffer_load_dwordx4 {vr(VML+jp*4,4)}, v2, {R(R_WS)}, s{T0+3} offen sc1")
    for jp in range(4):
        Ls = newlabel("skipown")
        a(f"  s_cmp_eq_u32 s{S_J}, {jp}")
        a(f"  s_cbranch_scc1 {Ls}")
        for qt in range(2):
            for s in range(2):
                a(f"  s_add_u32 s{T0+3}, s{T0+1}, {WS_MB + jp*16384 + qt*8192 + s*1024}")
                a(f"  buffer_load_dwordx4 {vr(VPA+jp*16+(qt*2+s)*4,4)}, v{V_L16}, {R(R_WS)}, s{T0+3} offen sc1")
        a(f"{Ls}:")
    a("  s_waitcnt vmcnt(12) lgkmcnt(0)")
    for qt in range(2):
        m = lambda jp: VML+jp*4+qt*2
        l = lambda jp: VML+jp*4+qt*2+1
        a(f"  v_max3_f32 v4, v{m(0)}, v{m(1)}, v{m(2)}")
        a(f"  v_max_f32 v4, v4, v{m(3)}")
        for jp in range(4):
            a(f"  v_sub_f32 v{m(jp)}, v{m(jp)}, v4")
        for jp in range(4):
            a(f"  v_exp_f32 v{m(jp)}, v{m(jp)}")
        a("  s_nop 0")
        a(f"  v_mul_f32 v5, v{m(0)}, v{l(0)}")
        for jp in range(1, 4):
            a(f"  v_fmac_f32 v5, v{m(jp)}, v{l(jp)}")
        a(f"  v_rcp_f32 v5, v5")
        a("  s_nop 0")
        for jp in range(4):
            a(f"  v_mul_f32 v{m(jp)}, v{m(jp)}, v5")
    for jp in range(4):
        Ls = newlabel("ownsc")
        a(f"  s_cmp_lg_u32 s{S_J}, {jp}")
        a(f"  s_cbranch_scc1 {Ls}")
        a(f"  v_mov_b32 v144, v{VML+jp*4}")
        a(f"  v_mov_b32 v145, v{VML+jp*4+2}")
        a(f"{Ls}:")
    a(f"  s_mov_b32 s{T0+4}, 0xffff0000")
    def acc_from(src, sc0, sc1, first):
        for qt in range(2):
            sc = sc0 if qt == 0 else sc1
            for s in range(2):
                for p in range(4):
                    r = src + (qt*2+s)*4 + p
                    d = VAC + qt*16 + s*8 + 2*p
                    a(f"  v_lshlrev_b32 v4, 16, v{r}")
                    a(f"  v_and_b32 v5, s{T0+4}, v{r}")
                    if first:
                        a(f"  v_mul_f32 v{d}, v{sc}, v4")
                        a(f"  v_mul_f32 v{d+1}, v{sc}, v5")
                    else:
                        a(f"  v_fmac_f32 v{d}, v{sc}, v4")
                        a(f"  v_fmac_f32 v{d+1}, v{sc}, v5")
    acc_from(208, 144, 145, True)
    a("  s_waitcnt vmcnt(0)")
    for jp in range(4):
        Ls = newlabel("skipown2")
        a(f"  s_cmp_eq_u32 s{S_J}, {jp}")
        a(f"  s_cbranch_scc1 {Ls}")
        acc_from(VPA+jp*16, VML+jp*4, VML+jp*4+2, False)
        a(f"{Ls}:")
    VOF = 176
    for qt in range(2):
        for s in range(2):
            for p in range(4):
                r = VAC + qt*16 + s*8 + 2*p
                a(f"  v_cvt_pk_bf16_f32 v{VOF+(qt*2+s)*4+p}, v{r}, v{r+1}")
    a(f"  s_lshl_b32 s{T0}, s{S_B}, 5")
    a(f"  s_lshl_b32 s{T0+1}, s{S_G}, 2")
    a(f"  s_add_u32 s{T0}, s{T0}, s{T0+1}       ; b*32+4g")
    a(f"  s_add_u32 s{T0+1}, s{T0}, s{S_J}")
    a(f"  s_lshl_b32 s{T0+1}, s{T0+1}, 14")
    a(f"  s_add_u32 s{T0+1}, s{T0+1}, s{S_LW}")
    def ofst(fl):
        for qt in range(2):
            for s in range(2):
                a(f"  s_add_u32 s{T0+2}, s{T0+1}, {WS_OF + qt*8192+s*1024}")
                a(f"  buffer_store_dwordx4 {vr(VOF+(qt*2+s)*4,4)}, v{V_L16}, {R(R_WS)}, s{T0+2} offen{fl}")
    dual(a, ofst)
    a("  s_waitcnt vmcnt(0)")
    a(f"  s_lshl_b32 s{T0+2}, s{S_BG}, 7")
    a(f"  s_lshl_b32 s{T0+3}, s{S_J}, 4")
    a(f"  s_add_u32 s{T0+3}, s{T0+3}, s{T0+2}")
    a(f"  s_lshl_b32 s{T0+4}, s{S_W}, 2")
    a(f"  s_add_u32 s{T0+3}, s{T0+3}, s{T0+4}")
    a(f"  s_add_u32 s{T0+3}, s{T0+3}, {F2_OFF}")
    set_flag(a, f"s{T0+3}")
    stamp(a, "OF published")
    a("  s_barrier")
    a(f"  s_add_u32 s{T0+3}, s{T0+2}, {F2_OFF}")
    poll(a, f"s{T0+3}", 16)
    stamp(a, "H2 flags seen")
    a(f"  s_lshl_b32 s{T0+1}, s{T0}, 14")
    a(f"  s_lshl_b32 s{T0+2}, s{S_W}, 14")
    a(f"  s_add_u32 s{T0+1}, s{T0+1}, s{T0+2}")
    for n in range(16):
        a(f"  s_add_u32 m0, s{T0+2}, {n*1024}")
        a(f"  s_add_u32 s{T0+3}, s{T0+1}, {WS_OF + n*1024}")
        a(f"  buffer_load_dwordx4 v{V_L16}, {R(R_WS)}, s{T0+3} offen sc1 lds")
    ACC = 128
    a("  s_waitcnt vmcnt(0)")
    a("  s_barrier")
    NB = 6
    def rdB(kk):
        hh, ks = kk >> 3, kk & 7
        for qt in range(2):
            a(f"  ds_read_b128 {vr(32+((kk%NB)*2+qt)*4,4)}, v{V_L16} offset:{(hh*16+qt*8+ks)*1024}")
    for kk in range(NB-1): rdB(kk)
    for kk in range(32):
        if kk + NB - 1 < 32:
            rdB(kk+NB-1)
            a(f"  s_waitcnt lgkmcnt({2*(NB-1)})")
        else:
            a(f"  s_waitcnt lgkmcnt({2*(31-kk)})")
        for qt in range(2):
            c = vr(ACC+16*qt,16) if kk else "0"
            a(f"  v_mfma_f32_32x32x16_bf16 {vr(ACC+16*qt,16)}, {ar(128+kk*4,4)}, {vr(32+((kk%NB)*2+qt)*4,4)}, {c}")
    a(f"  s_lshl_b32 s{T0}, s{S_B}, 2")
    a(f"  s_add_u32 s{T0}, s{T0}, s{S_J}        ; b*4+j")
    a(f"  s_lshl_b32 s{T0+1}, s{T0}, 3")
    a(f"  s_add_u32 s{T0+1}, s{T0+1}, s{S_G}")
    a(f"  s_lshl_b32 s{T0+1}, s{T0+1}, 15")
    a(f"  s_lshl_b32 s{T0+2}, s{S_W}, 13")
    a(f"  s_add_u32 s{T0+1}, s{T0+1}, s{T0+2}")
    a("  s_nop 7")
    for n in range(8):
        off = n*1024
        if (off & 4095) == 0:
            a(f"  s_add_u32 s{T0+2}, s{T0+1}, {WS_PO + off}")
        a(f"  buffer_store_dwordx4 {vr(ACC+n*4,4)}, v{V_L16}, {R(R_WS)}, s{T0+2} offen offset:{off & 4095} sc0 sc1")
    a("  s_waitcnt vmcnt(0)")
    a(f"  s_lshl_b32 s{T0+2}, s{T0}, 9")
    a(f"  s_lshl_b32 s{T0+3}, s{S_W}, 7")
    a(f"  s_add_u32 s{T0+3}, s{T0+3}, s{T0+2}")
    a(f"  s_lshl_b32 s{T0+4}, s{S_G}, 2")
    a(f"  s_add_u32 s{T0+3}, s{T0+3}, s{T0+4}")
    a(f"  s_add_u32 s{T0+3}, s{T0+3}, {F3_OFF}")
    set_flag(a, f"s{T0+3}", always_global=True)
    stamp(a, "PO published")
    a(f"  s_lshr_b32 s{T0+3}, s{S_G}, 1")
    a(f"  s_lshl_b32 s{T0+3}, s{T0+3}, 7")
    a(f"  s_add_u32 s{T0+3}, s{T0+3}, s{T0+2}")
    a(f"  s_add_u32 s{T0+3}, s{T0+3}, {F3_OFF}")
    poll(a, f"s{T0+3}", 8)
    a(f"  s_lshl_b32 s{T0}, s{T0}, 18")
    a(f"  s_lshl_b32 s{T0+1}, s{S_G}, 12")
    a(f"  s_add_u32 s{T0}, s{T0}, s{T0+1}")
    a(f"  s_lshl_b32 s{T0+2}, s{S_W}, 10")
    a(f"  s_add_u32 s{T0}, s{T0}, s{T0+2}")
    for gp in range(8):
        a(f"  s_add_u32 s{T0+2}, s{T0}, {WS_PO + gp*32768}")
        a(f"  buffer_load_dwordx4 {vr(16+gp*4,4)}, v{V_L16}, {R(R_WS)}, s{T0+2} offen sc1")
    srd(a, R_OUT, P_OUT, None, "0x80000")
    a(f"  s_lshl_b32 s{T0+3}, s{S_B}, 6")
    a(f"  s_and_b32 s{T0+4}, s{S_G}, 1")
    a(f"  s_lshl_b32 s{T0+4}, s{T0+4}, 5")
    a(f"  s_add_u32 s{T0+3}, s{T0+3}, s{T0+4}")
    a(f"  s_lshl_b32 s{T0+3}, s{T0+3}, 10")
    a(f"  s_lshl_b32 s{T0+4}, s{S_J}, 7")
    a(f"  s_lshr_b32 s{T0+5}, s{S_G}, 1")
    a(f"  s_lshl_b32 s{T0+5}, s{T0+5}, 5")
    a(f"  s_add_u32 s{T0+4}, s{T0+4}, s{T0+5}")
    a(f"  s_lshr_b32 s{T0+5}, s{S_W}, 1")
    a(f"  s_lshl_b32 s{T0+5}, s{T0+5}, 4")
    a(f"  s_add_u32 s{T0+4}, s{T0+4}, s{T0+5}")
    a(f"  s_and_b32 s{T0+5}, s{S_W}, 1")
    a(f"  s_lshl_b32 s{T0+5}, s{T0+5}, 2")
    a(f"  s_add_u32 s{T0+4}, s{T0+4}, s{T0+5}")
    a(f"  s_lshl_b32 s{T0+4}, s{T0+4}, 1")
    a(f"  s_add_u32 s{T0+3}, s{T0+3}, s{T0+4}")
    a("""  v_and_b32 v2, 31, v0
  v_lshrrev_b32 v3, 5, v0
  v_lshlrev_b32 v2, 10, v2
  v_lshl_add_u32 v2, v3, 4, v2""")
    a("  s_waitcnt vmcnt(0)")
    for k in range(4):
        for gp in range(1, 8):
            a(f"  v_add_f32 v{16+k}, v{16+k}, v{16+gp*4+k}")
    a("  v_cvt_pk_bf16_f32 v4, v16, v17")
    a("  v_cvt_pk_bf16_f32 v5, v18, v19")
    a("  s_nop 1")
    a(f"  buffer_store_dwordx2 v[4:5], v2, {R(R_OUT)}, s{T0+3} offen")
    if opt.stamps:
        a("  s_waitcnt vmcnt(0)")
        stamp(a, "end")
        stamp_flush(a)
    a("L_done:")
    a("  s_endpgm")
    a("L_safe:")
    SK, SV = L_V + 6*8192, L_V + 7*8192
    a("  s_waitcnt vmcnt(0)")
    a("  s_barrier")
    for ks in range(8):
        a(f"  v_add_u32 v{224+ks}, {hex(SK)}, v{VKA+ks}")
    for qt in range(2):
        a(f"  v_mov_b32 v{VM+qt}, 0xff800000      ; -inf")
        a(f"  v_mov_b32 v{VL+qt}, 0")
    for r in range(64):
        a(f"  v_mov_b32 v{VO0+r}, 0")
        a(f"  v_accvgpr_write_b32 a{AO1+r}, 0")
    sI = T0+11
    a(f"  s_mov_b32 s{sI}, 0")
    a("L_safe_loop:")
    a(f"  s_add_u32 m0, s{S_LW}, {SK}")
    a(f"  s_nop 0")
    for ii in range(2):
        a(f"  buffer_load_dwordx4 v{VKD+ii}, {R(R_K)}, s{sI} offen offset:{ii*1024} lds")
    a(f"  s_add_u32 m0, s{S_LW}, {SV}")
    a(f"  s_nop 0")
    for ii in range(2):
        a(f"  buffer_load_dwordx4 v{VVD}, {R(R_V)}, s{sI} offen offset:{ii*1024} lds")
    a("  s_waitcnt vmcnt(0)")
    a("  s_barrier")
    for ks in range(8):
        a(f"  ds_read_b128 {ar(AK+ks*4,4)}, v{224+ks}")
    for s in range(2):
        for t in range(4):
            for rd in range(2):
                a(f"  ds_read_b64_tr_b16 {ar(AV+(t*2+s)*4+rd*2,2)}, v{VVA+t} offset:{7*8192+s*4096+rd*2048}")
    a("  s_waitcnt lgkmcnt(0)")
    a("  s_barrier")
    for qt in range(2):
        for ks in range(8):
            d = vr(VS+qt*16, 16)
            a(f"  v_mfma_f32_32x32x16_bf16 {d}, {ar(AK+ks*4,4)}, {ar(AQ+qt*32+ks*4,4)}, {d if ks else '0'}")
    a("  s_nop 15")
    for qt in range(2):
        r = VS + qt*16
        a(f"  v_max3_f32 v4, v{r}, v{r+1}, v{r+2}")
        for k in range(3, 15, 2):
            a(f"  v_max3_f32 v4, v4, v{r+k}, v{r+k+1}")
        a(f"  v_max_f32 v4, v4, v{r+15}")
        a(f"  v_mov_b32 v5, v4")
        a("  s_nop 1")
        a(f"  v_permlane32_swap_b32 v4, v5")
        a("  s_nop 1")
        a(f"  v_max3_f32 v4, v4, v5, v{VM+qt}")
        a(f"  v_sub_f32 v5, v{VM+qt}, v4")
        a(f"  v_exp_f32 v5, v5")
        a(f"  v_mov_b32 v{VM+qt}, v4")
        a(f"  v_mul_f32 v{VL+qt}, v{VL+qt}, v5")
        for k in range(16):
            a(f"  v_sub_f32 v{r+k}, v{r+k}, v4")
        for k in range(16):
            a(f"  v_exp_f32 v{r+k}, v{r+k}")
        a("  s_nop 0")
        for k in range(16):
            a(f"  v_add_f32 v{VL+qt}, v{VL+qt}, v{r+k}")
        for p in range(8):
            a(f"  v_cvt_pk_bf16_f32 v{VP+qt*8+p}, v{r+2*p}, v{r+2*p+1}")
        for t in range(4):
            for k in range(16):
                if qt == 0:
                    a(f"  v_mul_f32 v{VO0+t*16+k}, v{VO0+t*16+k}, v5")
                else:
                    a(f"  v_accvgpr_read_b32 v6, a{AO1+t*16+k}")
                    a(f"  v_mul_f32 v6, v6, v5")
                    a(f"  v_accvgpr_write_b32 a{AO1+t*16+k}, v6")
    a("  s_nop 1")
    for qt in range(2):
        for s in range(2):
            for t in range(4):
                d = Oreg(t, qt)
                a(f"  v_mfma_f32_32x32x16_bf16 {d}, {ar(AV+(t*2+s)*4,4)}, {vr(VP+qt*8+s*4,4)}, {d}")
    a(f"  s_add_u32 s{sI}, s{sI}, 8192")
    a(f"  s_cmp_lt_u32 s{sI}, {16*8192}")
    a("  s_nop 15")
    a(f"  s_cbranch_scc1 L_safe_loop")
    lreduce()
    a("  s_nop 7")
    a("  s_branch L_safe_back")
    a(kernel_desc(KNAME, 512, 102, 256))
    return a.text()

if __name__ == "__main__":
    import argparse
    ap = argparse.ArgumentParser()
    ap.add_argument("out")
    ap.add_argument("--nostamps", action="store_true")
    ap.add_argument("--plain", action="store_true")
    ap.add_argument("--global_", action="store_true")
    ap.add_argument("--safe", action="store_true")
    ap.add_argument("--bench", type=str, default="")
    ap.add_argument("--tstart", type=int, default=11)
    ap.add_argument("--maxi", type=str, default="3")
    ap.add_argument("--kvpro", type=str, default="")
    ap.add_argument("--kvpost", type=str, default="")
    ap.add_argument("--kvmid", type=str, default="")
    x = ap.parse_args()
    opt.stamps = not x.nostamps
    opt.nt = "" if x.plain else " nt"
    opt.force_global = x.global_
    opt.force_safe = x.safe
    opt.tstart = x.tstart
    opt.maxi = [int(t) for t in x.maxi.split(',')]
    if x.kvpro: opt.kvpro = [(int(t[0]), t[1], int(t[2:])) for t in x.kvpro.split(',')]
    if x.kvmid: opt.kvmid = [(t[0], int(t[1:])) for t in x.kvmid.split(',')]
    if x.kvpost: opt.kvpost = [(t[0], int(t[1:])) for t in x.kvpost.split(',')]
    opt.bench = set(x.bench.split(",")) if x.bench else set()
    open(x.out, "w").write(build())
```

```python
import sys, math, struct
from asmlib import *

WS_QF = 0x0000000
WS_MB = 0x0400000
WS_ML = 0x1400000
WS_OF = 0x1500000
WS_PO = 0x1900000
WS_FL = 0x2100000
FQ_OFF = WS_FL
F1_OFF = WS_FL + 0x4000
F2_OFF = WS_FL + 0x10000
F3_OFF = WS_FL + 0x14000
HL_OFF = WS_FL + 0x18000
WS_ST = 0x2200000
WS_SIZE = 0x2400000

def vr(a, n=1): return f"v{a}" if n == 1 else f"v[{a}:{a+n-1}]"
def ar(a, n=1): return f"a{a}" if n == 1 else f"a[{a}:{a+n-1}]"
def R(r): return f"s[{r}:{r+3}]"
SCALE = math.log2(math.e) / math.sqrt(128.0)
def f32hex(x): return "0x%08x" % struct.unpack("<I", struct.pack("<f", x))[0]

S_W, S_G, S_B, S_J = 3, 4, 5, 6
S_N, S_LOC, S_XCC, S_BG = 8, 9, 10, 11
S_LW, S_TILE, S_SPIN, S_T32 = 12, 13, 14, 15
P_X, P_K, P_V, P_WQ, P_WO, P_OUT, P_DBG, P_WS = 16, 18, 20, 22, 24, 26, 28, 30
R_K, R_V, R_X, R_WQ, R_WO, R_WS, R_OUT, R_DBG = 32, 36, 40, 44, 48, 52, 56, 60
T0 = 64
S_T = 80

L_K, L_V, L_X = 0x00000, 0x10000, 0x20000

V_DUM = 9
VKD, VVD, VWOD, V_L16, V_FL = 10, 12, 13, 14, 15
VKA, VVA, VL, VM = 16, 24, 28, 30
VS, VP, VN, VO0 = 32, 96, 128, 160
VXD, VWD, VWA, VXA = 224, 226, 227, 229
AO1, AQ, AK, AV = 0, 128, 192, 224
def Oreg(t, qt, k=0, n=16):
    return (vr(VO0+t*16+k, n) if qt == 0 else ar(AO1+t*16+k, n))

class Opt:
    stamps = True
    nt = " nt"
    timeout = 1 << 16
    force_global = False
    force_safe = False
    tstart = 9
    maxi = [2]
    kvpro = []
    kvmid = [('K',0), ('K',1)]
    kvpost = [('V',0), ('K',2), ('V',1), ('K',3)]
    bench = set()
opt = Opt()

def srd(a, r, p, off, size):
    if off is None:
        a(f"  s_mov_b32 s{r}, s{p}")
        a(f"  s_mov_b32 s{r+1}, s{p+1}")
    else:
        a(f"  s_add_u32 s{r}, s{p}, {off}")
        a(f"  s_addc_u32 s{r+1}, s{p+1}, 0")
    a(f"  s_mov_b32 s{r+2}, {size}")
    a(f"  s_mov_b32 s{r+3}, 0x20000")

nstamp = [0]
def stamp(a, name=""):
    if opt.stamps:
        k = nstamp[0]; nstamp[0] += 1
        assert k < 11, "too many stamps"
        a(f"  s_memrealtime s[{S_T+2*k}:{S_T+2*k+1}]")
def stamp_flush(a):
    if not opt.stamps: return
    n = nstamp[0]
    a("  s_waitcnt lgkmcnt(0)")
    a(f"  s_lshl_b32 s{T0}, s2, 2")
    a(f"  s_add_u32 s{T0}, s{T0}, s{S_W}")
    a(f"  s_mul_i32 s{T0}, s{T0}, 96")
    a(f"  s_add_u32 s{T0}, s{T0}, {WS_ST}")
    a("  v_mov_b32 v8, 0")
    for k in range(0, 12, 2):
        for u in range(2):
            kk = min(k+u, n-1)
            a(f"  v_mov_b32 v{4+2*u}, s{S_T+2*kk}")
            a(f"  v_mov_b32 v{5+2*u}, s{S_T+2*kk+1}")
        a(f"  s_add_u32 s{T0+1}, s{T0}, {k*8}")
        a(f"  s_mov_b64 exec, 1")
        a(f"  buffer_store_dwordx4 v[4:7], v8, {R(R_WS)}, s{T0+1} offen")
        a(f"  s_mov_b64 exec, -1")
        a("  s_nop 1")

def tr_addr(a, dst, tile, sigma, row_mode, tmp, base=0):
    t0, t1, t2, t3 = tmp, tmp+1, tmp+2, tmp+3
    a(f"  v_bfe_u32 v{t0}, v0, 4, 1")
    a(f"  v_and_b32 v{t1}, 3, v0")
    if sigma:
        a(f"  v_and_b32 v{t2}, 1, v{t1}")
        a(f"  v_lshrrev_b32 v{t1}, 1, v{t1}")
    else:
        a(f"  v_lshrrev_b32 v{t2}, 1, v{t1}")
        a(f"  v_and_b32 v{t1}, 1, v{t1}")
    a(f"  v_lshl_add_u32 v{t2}, v{t0}, 1, v{t2}")
    if isinstance(tile, int):
        a(f"  v_add_u32 v{t2}, {4*tile}, v{t2}")
    else:
        a(f"  v_add_u32 v{t2}, {tile}, v{t2}")
    a(f"  v_bfe_u32 v{t0}, v0, 2, 2")
    a(f"  v_lshlrev_b32 v{t3}, 2, v{t0}")
    a(f"  v_xor_b32 v{t2}, v{t2}, v{t3}")
    a(f"  v_lshlrev_b32 v{t2}, 4, v{t2}")
    a(f"  v_lshl_add_u32 v{t2}, v{t1}, 3, v{t2}")
    a(f"  v_lshrrev_b32 v{t3}, 5, v0")
    a(f"  v_lshl_add_u32 v{t3}, v{t3}, {3 if row_mode=='nat' else 2}, v{t0}")
    a(f"  v_lshl_add_u32 v{dst}, v{t3}, 8, v{t2}")
    if base:
        a(f"  v_add_u32 v{dst}, {hex(base)}, v{dst}")

lab = [0]
def newlabel(p):
    lab[0] += 1
    return f"L_{p}_{lab[0]}"

def poll(a, soff, nwords):
    L = newlabel("poll"); Lx = newlabel("pollx")
    mask = (1 << nwords) - 1
    a(f"  s_mov_b32 s{S_SPIN}, {opt.timeout}")
    a(f"{L}:")
    a(f"  buffer_load_dword v4, v{V_FL}, {R(R_WS)}, {soff} offen sc1")
    a(f"  s_sub_u32 s{S_SPIN}, s{S_SPIN}, 1")
    a(f"  s_cbranch_scc1 {Lx}")
    a(f"  s_waitcnt vmcnt(0)")
    a(f"  v_cmp_ne_u32 vcc, s{S_N}, v4")
    a(f"  s_nop 4")
    a(f"  s_and_b32 s{T0+15}, vcc_lo, {hex(mask)}")
    a(f"  s_cbranch_scc1 {L}")
    a(f"{Lx}:")

def set_flag(a, soff, always_global=False):
    a(f"  v_mov_b32 v4, s{S_N}")
    a(f"  v_mov_b32 v5, 0")
    a(f"  s_mov_b64 exec, 1")
    if always_global:
        a(f"  buffer_store_dword v4, v5, {R(R_WS)}, {soff} offen sc0 sc1")
    else:
        Lg = newlabel("fg"); Le = newlabel("fe")
        a(f"  s_cmp_eq_u32 s{S_LOC}, 0")
        a(f"  s_cbranch_scc1 {Lg}")
        a(f"  buffer_store_dword v4, v5, {R(R_WS)}, {soff} offen")
        a(f"  s_branch {Le}")
        a(f"{Lg}:")
        a(f"  buffer_store_dword v4, v5, {R(R_WS)}, {soff} offen sc0 sc1")
        a(f"{Le}:")
    a(f"  s_mov_b64 exec, -1")

def dual(a, emit):
    Lg = newlabel("sg"); Le = newlabel("se")
    a(f"  s_cmp_eq_u32 s{S_LOC}, 0")
    a(f"  s_cbranch_scc1 {Lg}")
    emit("")
    a(f"  s_branch {Le}")
    a(f"{Lg}:")
    emit(" sc0 sc1")
    a(f"{Le}:")

class Fifo:
    def __init__(self): self.ops = []
    def push(self, tag, n=1): self.ops += [tag] * n
    def after(self, tags):
        idx = [i for i, t in enumerate(self.ops) if t in tags]
        if not idx: return 63
        return min(63, len(self.ops) - 1 - max(idx))

def build():
    nstamp[0] = 0
    a = Asm()
    a(HEADER_COMMENT.rstrip())
    a("; @launch grid=(256,1,1) block=(256,1,1) lds=163840")
    a('.amdgcn_target "amdgcn-amd-amdhsa--gfx950"')
    a(kernel_start(KNAME).rstrip())
    fifo = Fifo()
    def emit(lst):
        for l in lst: a(l)
    a(f"""  s_cmp_ge_u32 s2, 256
  s_cbranch_scc1 L_done
  s_load_dwordx16 s[16:31], s[0:1], 0
  s_memrealtime s[{T0}:{T0+1}]
  s_getreg_b32 s{S_XCC}, hwreg(HW_REG_XCC_ID)
  v_lshrrev_b32 v1, 6, v0
  v_and_b32 v0, 63, v0
  s_and_b32 s{S_G}, s2, 7
  v_readfirstlane_b32 s{S_W}, v1
  s_lshr_b32 s{S_T32}, s2, 3
  s_lshr_b32 s{S_B}, s{S_T32}, 2
  s_and_b32 s{S_J}, s{S_T32}, 3
  s_and_b32 s{S_XCC}, s{S_XCC}, 7
  s_lshl_b32 s{S_BG}, s{S_B}, 3
  s_add_u32 s{S_BG}, s{S_BG}, s{S_G}
  v_lshlrev_b32 v{V_L16}, 4, v0
  v_lshlrev_b32 v{V_FL}, 2, v0
  s_lshl_b32 s{S_LW}, s{S_W}, 11
  v_lshrrev_b32 v2, 4, v0             ; l>>4
  v_and_b32 v3, 15, v0                ; l&15
  v_lshrrev_b32 v4, 3, v0             ; l>>3
  v_and_b32 v5, 7, v0                 ; l&7
  v_xor_b32 v6, v5, v2
  v_lshlrev_b32 v6, 4, v6
  v_lshl_add_u32 v{VXD}, v4, 10, v6
  v_add_u32 v7, 4, v2
  v_xor_b32 v6, v5, v7
  v_lshlrev_b32 v6, 4, v6
  v_lshl_add_u32 v{VXD+1}, v4, 10, v6
  v_lshlrev_b32 v6, 2, v2
  v_xor_b32 v6, v6, v3
  v_lshlrev_b32 v6, 4, v6
  v_lshl_add_u32 v{VWD}, v2, 13, v6
  v_lshlrev_b32 v8, 7, v5
  s_waitcnt lgkmcnt(0)""")
    if opt.stamps:
        a(f"  s_mov_b32 s{S_T}, s{T0}")
        a(f"  s_mov_b32 s{S_T+1}, s{T0+1}")
        nstamp[0] = 1
    a(f"  s_lshl_b32 s{T0+2}, s{S_T32}, 2")
    a(f"  s_add_u32 s{T0+2}, s{T0+2}, s{S_W}        ; id")
    srd(a, R_WQ, P_WQ, None, "0x400000")
    srd(a, R_X, P_X, None, "0x80000")
    if 'touch1' in opt.bench:
        a(f"  s_cmp_ge_u32 s{T0+2}, 64")
        a(f"  s_cbranch_scc1 L_touchx")
        a(f"  v_lshl_add_u32 v7, v4, 13, v8          ; (l>>3)*8192 + (l&7)*128")
        a(f"  s_lshl_b32 s{T0+3}, s{T0+2}, 16        ; 8*id*8192")
        a(f"  s_lshl_b32 s{T0+4}, s{S_G}, 10")
        a(f"  s_add_u32 s{T0+3}, s{T0+3}, s{T0+4}")
        a(f"  buffer_load_dword v{V_DUM}, v7, {R(R_WQ)}, s{T0+3} offen")
        a(f"  s_branch L_touchd")
        a(f"L_touchx:")
        a(f"  v_lshl_add_u32 v7, v4, 10, v8          ; (l>>3)*1024 + (l&7)*128")
        a(f"  s_sub_u32 s{T0+3}, s{T0+2}, 64")
        a(f"  s_lshl_b32 s{T0+3}, s{T0+3}, 13        ; 8*rows*1024")
        a(f"  buffer_load_dword v{V_DUM}, v7, {R(R_X)}, s{T0+3} offen")
        a(f"L_touchd:")
        fifo.push('T')
    srd(a, R_WS, P_WS, None, hex(WS_SIZE))
    srd(a, R_DBG, P_DBG, None, "0x100")
    a(f"  s_mov_b32 s{S_SPIN}, s{T0}")
    a(f"""  s_cmp_lg_u32 s2, 0
  s_cbranch_scc1 L_nononce
  s_cmp_lg_u32 s{S_W}, 0
  s_cbranch_scc1 L_nononce
  s_lshl_b32 s{T0+4}, s{S_SPIN}, 4
  s_or_b32 s{T0+4}, s{T0+4}, 0x80000000
  v_mov_b32 v6, s{T0+4}
  v_mov_b32 v7, 0
  s_mov_b64 exec, 1
  buffer_store_dword v6, v7, {R(R_DBG)}, 0 offen sc0 sc1
  s_mov_b64 exec, -1
L_nononce:""")
    a(f"  s_lshl_b32 s{T0+3}, s{S_B}, 16")
    srd(a, R_X, P_X, f"s{T0+3}", "0x10000")
    a(f"  s_lshl_b32 s{T0+3}, s{S_G}, 2")
    a(f"  s_add_u32 s{T0+3}, s{T0+3}, s{S_J}          ; h_own")
    a(f"  s_lshl_b32 s{T0+4}, s{T0+3}, 8")
    srd(a, R_WQ, P_WQ, f"s{T0+4}", "0x400000")
    a(f"  s_sub_u32 s{R_WQ+2}, s{R_WQ+2}, s{T0+4}")
    sXg, sXl, sWg, sWl, sO = T0+6, T0+7, T0+8, T0+9, T0+10
    a(f"  s_lshl_b32 s{sXg}, s{S_W}, 14")
    a(f"  s_lshl_b32 s{sWg}, s{S_W}, 17")
    a(f"  s_lshl_b32 s{sWl}, s{S_W}, 12")
    NCH = 4
    WSLOT = [L_K + 0x8000, L_K + 0xC000, L_V + 0x8000, L_V + 0xC000]
    XSLOT = [L_X + i*0x2000 for i in range(4)]
    sROT, sWc, sXc = T0+11, T0+12, T0+7
    a(f"  s_lshl_b32 s{sROT}, s{S_J}, 1")
    a(f"  s_add_u32 s{sROT}, s{sROT}, s{S_B}")
    def chunk_ops(c):
        slot = c % NCH
        out = [f"  s_add_u32 s{sWc}, s{sROT}, {c}",
               f"  s_and_b32 s{sWc}, s{sWc}, 7",
               f"  s_lshl_b32 s{sXc}, s{sWc}, 7",
               f"  s_add_u32 s{sXc}, s{sXc}, s{sXg}",
               f"  s_lshl_b32 s{sWc}, s{sWc}, 19",
               f"  s_add_u32 s{sWc}, s{sWc}, s{sWg}"]
        for ii in range(4):
            out.append(f"  s_add_u32 m0, s{sWl}, {WSLOT[slot] + ii*1024}")
            out.append(f"  s_add_u32 s{sO}, s{sWc}, {ii*32768}")
            out.append(f"  buffer_load_dwordx4 v{VWD}, {R(R_WQ)}, s{sO} offen lds")
        for ii in range(2):
            out.append(f"  s_add_u32 m0, s{S_LW}, {XSLOT[slot] + ii*1024}")
            out.append(f"  s_add_u32 s{sO}, s{sXc}, {ii*8192}")
            out.append(f"  buffer_load_dwordx4 v{VXD+ii}, {R(R_X)}, s{sO} offen lds")
        fifo.push(('C', c), 6)
        return out
    def issue_chunk(c):
        emit(chunk_ops(c))
    issue_chunk(0)
    a(f"  s_lshl_b32 s{T0}, s{S_B}, 5")
    a(f"  s_lshl_b32 s{T0+1}, s{S_G}, 2")
    a(f"  s_add_u32 s{T0}, s{T0}, s{T0+1}")
    a(f"  s_add_u32 s{T0+1}, s{T0}, s{S_J}")
    a(f"  s_lshl_b32 s{T0+1}, s{T0+1}, 14")
    a(f"  s_add_u32 s{T0+1}, s{T0+1}, s{S_LW}")
    VMBT = 233
    a(f"""  v_bfe_u32 v4, v0, 4, 1
  v_bfe_u32 v5, v0, 3, 1
  v_and_b32 v6, 7, v0
  v_lshlrev_b32 v4, 13, v4
  v_lshl_add_u32 v4, v5, 10, v4
  v_lshl_add_u32 v{VMBT}, v6, 7, v4        ; qt*8192 + s*1024 + u*128""")
    issue_chunk(1)
    a(f"  s_lshl_b32 s{T0+2}, s{S_W}, 2")
    tr_addr(a, VWA, f"s{T0+2}", True, 'nat', 4, base=L_K + 0x8000)
    a(f"  v_add_u32 v{VWA+1}, 0x10000, v{VWA}")
    a("""  v_and_b32 v6, 31, v0
  v_lshrrev_b32 v7, 5, v0
  v_bfe_u32 v8, v0, 1, 3""")
    for ks in range(4):
        a(f"  v_add_u32 v1, {2*ks}, v7")
        a(f"  v_xor_b32 v1, v1, v8")
        a(f"  v_lshlrev_b32 v1, 4, v1")
        a(f"  v_lshl_add_u32 v{VXA+ks}, v6, 7, v1")
        a(f"  v_add_u32 v{VXA+ks}, {hex(L_X)}, v{VXA+ks}")
    issue_chunk(2)
    a(f"  s_lshl_b32 s{T0+3}, s{S_BG}, 19")
    a(f"  s_lshl_b32 s{T0+4}, s{S_J}, 17")
    a(f"  s_add_u32 s{T0+3}, s{T0+3}, s{T0+4}")
    srd(a, R_K, P_K, f"s{T0+3}", "0x20000")
    srd(a, R_V, P_V, f"s{T0+3}", "0x20000")
    a(f"  s_lshl_b32 s{T0+2}, s{S_W}, 3")
    for i in range(2):
        a(f"  v_add_u32 v4, s{T0+2}, v2")
        a(f"  v_add_u32 v5, {4*i}, v4")
        a(f"  v_and_b32 v5, 15, v5")
        a(f"  v_xor_b32 v5, v5, v3")
        a(f"  v_lshlrev_b32 v5, 4, v5")
        a(f"  v_lshl_add_u32 v{VKD+i}, v4, 8, v5")
    a(f"  v_lshlrev_b32 v5, 2, v2")
    a(f"  v_xor_b32 v5, v5, v3")
    a(f"  v_lshlrev_b32 v5, 4, v5")
    a(f"  v_lshl_add_u32 v{VVD}, v4, 8, v5")
    a(f"  v_lshl_add_u32 v{VWOD}, v4, 10, v5")
    RKN = RVN = 8
    def dmaK(i):
        out = [f"  s_add_u32 m0, s{S_LW}, {L_K+(i%RKN)*8192}", f"  s_mov_b32 s{S_TILE}, {i*8192}"]
        for ii in range(2):
            out.append(f"  buffer_load_dwordx4 v{VKD+ii}, {R(R_K)}, s{S_TILE} offen offset:{ii*1024}{opt.nt} lds")
        fifo.push(('K', i), 2)
        if 'nodma' in opt.bench and i >= 8: return []
        return out
    def dmaV(i):
        out = [f"  s_add_u32 m0, s{S_LW}, {L_V+(i%RVN)*8192}", f"  s_mov_b32 s{S_TILE}, {i*8192}"]
        for ii in range(2):
            out.append(f"  buffer_load_dwordx4 v{VVD}, {R(R_V)}, s{S_TILE} offen offset:{ii*1024}{opt.nt} lds")
        fifo.push(('V', i), 2)
        if 'nodma' in opt.bench and i >= 8: return []
        return out
    if 'nowarm' not in opt.bench:
        a(f"  v_mov_b32 v5, 0")
        a(f"  s_add_u32 s{T0+2}, s{T0+1}, {WS_QF}")
        a(f"  buffer_load_dword v{V_DUM}, v{VMBT}, {R(R_WS)}, s{T0+2} offen")
        a(f"  s_lshl_b32 s{T0+2}, s{S_BG}, 7")
        a(f"  s_add_u32 s{T0+3}, s{T0+2}, {FQ_OFF}")
        a(f"  buffer_load_dword v{V_DUM}, v5, {R(R_WS)}, s{T0+3} offen")
        a(f"  buffer_load_dword v{V_DUM}, v5, {R(R_K)}, 0 offen")
        a(f"  buffer_load_dword v{V_DUM}, v5, {R(R_V)}, 0 offen")
        fifo.push('T', 4)
    AF, BF, ACC = 32, 64, 128
    def reads(kc):
        out = []
        slot = kc % NCH; buf = kc & 1
        wo = WSLOT[slot] - (L_K + 0x8000)
        for ks in range(4):
            for rd in range(2):
                off = wo + ks*4096 + rd*1024
                out.append(f"  ds_read_b64_tr_b16 {vr(AF+buf*16+ks*4+rd*2,2)}, v{VWA+(off>>16)} offset:{off & 65535}")
            for qt in range(2):
                out.append(f"  ds_read_b128 {vr(BF+buf*32+ks*8+qt*4,4)}, v{VXA+ks} offset:{slot*8192+qt*4096}")
        return out
    if 'p1st' in opt.bench: stamp(a, "before C0 wait")
    a(f"  s_waitcnt vmcnt({fifo.after([('C',0)])})")
    a("  s_barrier")
    if 'p1st' in opt.bench: stamp(a, "C0 landed")
    emit(reads(0))
    kvpro = list(opt.kvpro)
    for c in range(8):
        if c + 1 < 8:
            a(f"  s_waitcnt vmcnt({fifo.after([('C',c+1)])}) lgkmcnt(0)")
            a("  s_barrier")
            if 'p1st' in opt.bench: stamp(a, f"C{c+1} landed")
            if c == 3:
                Ln = newlabel("nonce"); Lnx = newlabel("noncex"); Lnc = newlabel("noncechk")
                a(f"  s_mov_b32 s{S_SPIN}, {opt.timeout}")
                a(f"  s_branch {Lnc}")
                a(f"{Ln}:")
                a(f"  buffer_load_dword v8, v5, {R(R_DBG)}, 0 offen sc1")
                a(f"  s_sub_u32 s{S_SPIN}, s{S_SPIN}, 1")
                a(f"  s_cbranch_scc1 {Lnx}")
                a(f"  s_waitcnt vmcnt(0)")
                a(f"{Lnc}:")
                a(f"  v_readfirstlane_b32 s{S_N}, v8")
                a(f"  s_nop 3")
                a(f"  s_cmp_eq_u32 s{S_N}, 0")
                a(f"  s_cbranch_scc1 {Ln}")
                a(f"{Lnx}:")
                Lw = newlabel("hw"); Lwd = newlabel("hwd")
                a(f"  s_lshl_b32 s{T0+2}, s{S_BG}, 7")
                a(f"  s_lshl_b32 s{T0+3}, s{S_J}, 2")
                a(f"  s_add_u32 s{T0+2}, s{T0+2}, s{T0+3}")
                a(f"  s_add_u32 s{T0+2}, s{T0+2}, {HL_OFF}")
                a(f"  s_cmp_lg_u32 s{S_W}, 0")
                a(f"  s_cbranch_scc1 {Lw}")
                a(f"  s_or_b32 s{T0+3}, s{S_N}, s{S_XCC}")
                a(f"  v_mov_b32 v8, s{T0+3}")
                a(f"  s_mov_b64 exec, 1")
                a(f"  buffer_store_dword v8, v5, {R(R_WS)}, s{T0+2} offen sc0 sc1")
                a(f"  s_mov_b64 exec, -1")
                a(f"  s_branch {Lwd}")
                a(f"{Lw}:")
                a(f"  buffer_load_dword v{V_DUM}, v5, {R(R_DBG)}, 0 offen")
                a(f"{Lwd}:")
                fifo.push('H')
        else:
            a("  s_waitcnt lgkmcnt(0)")
        fill = []
        if c + 1 < 8: fill += reads(c + 1)
        dm = []
        if c + 3 < 8: dm += chunk_ops(c + 3)
        for (cc, kind, i) in kvpro:
            if cc == c: dm += (dmaK(i) if kind == 'K' else dmaV(i))
        if c == 0:
            dm += [f"  v_mov_b32 v5, 0", f"  buffer_load_dword v8, v5, {R(R_DBG)}, 0 offen sc1"]
            fifo.push('NL')
        if c == 6:
            dm += [f"  s_lshl_b32 s{T0+2}, s{S_BG}, 7", f"  s_add_u32 s{T0+2}, s{T0+2}, {HL_OFF}",
                   f"  buffer_load_dwordx4 v[4:7], v5, {R(R_WS)}, s{T0+2} offen sc1"]
            fifo.push('HL')
        buf = c & 1
        mf = []
        for ks in range(4):
            for qt in range(2):
                cc_ = vr(ACC+16*qt,16) if (c or ks) else "0"
                mf.append(f"  v_mfma_f32_32x32x16_bf16 {vr(ACC+16*qt,16)}, {vr(AF+buf*16+ks*4,4)}, {vr(BF+buf*32+ks*8+qt*4,4)}, {cc_}")
        allf = fill + dm
        n = len(mf)
        for i_, m_ in enumerate(mf):
            a(m_)
            lo = len(allf)*i_//n; hi = len(allf)*(i_+1)//n
            emit(allf[lo:hi])
    Lh = newlabel("hello"); Lhx = newlabel("hellox"); Lh2 = newlabel("hellochk")
    a(f"  s_mov_b32 s{S_SPIN}, {opt.timeout}")
    a(f"  s_waitcnt vmcnt({fifo.after(['HL'])})")
    a(f"  s_branch {Lh2}")
    a(f"{Lh}:")
    a(f"  buffer_load_dwordx4 v[4:7], v5x, {R(R_WS)}, s{T0+2} offen sc1".replace("v5x", "v1"))
    a(f"  s_sub_u32 s{S_SPIN}, s{S_SPIN}, 1")
    a(f"  s_cbranch_scc1 {Lhx}")
    a(f"  s_waitcnt vmcnt(0)")
    a(f"{Lh2}:")
    a(f"  v_mov_b32 v1, 0")
    a(f"  v_xor_b32 v4, s{S_N}, v4")
    a(f"  v_xor_b32 v5, s{S_N}, v5")
    a(f"  v_xor_b32 v6, s{S_N}, v6")
    a(f"  v_xor_b32 v7, s{S_N}, v7")
    a(f"  v_or_b32 v8, v4, v5")
    a(f"  v_or3_b32 v8, v8, v6, v7")
    a(f"  s_nop 0")
    a(f"  v_readfirstlane_b32 s{T0+3}, v8")
    a(f"  s_nop 3")
    a(f"  s_cmp_gt_u32 s{T0+3}, 7")
    a(f"  s_cbranch_scc1 {Lh}")
    a(f"{Lhx}:")
    a(f"  v_xor_b32 v4, s{S_XCC}, v4")
    a(f"  v_xor_b32 v5, s{S_XCC}, v5")
    a(f"  v_xor_b32 v6, s{S_XCC}, v6")
    a(f"  v_xor_b32 v7, s{S_XCC}, v7")
    a(f"  v_or_b32 v8, v4, v5")
    a(f"  v_or3_b32 v8, v8, v6, v7")
    a(f"  s_nop 0")
    a(f"  v_readfirstlane_b32 s{T0+3}, v8")
    a(f"  s_nop 3")
    a(f"  s_cmp_eq_u32 s{T0+3}, 0")
    a(f"  s_cselect_b32 s{S_LOC}, 1, 0")
    if opt.force_global:
        a(f"  s_mov_b32 s{S_LOC}, 0")
    a(f"  s_mov_b32 s{sO}, {f32hex(SCALE)}")
    for i in range(32):
        a(f"  v_mul_f32 v{ACC+i}, s{sO}, v{ACC+i}")
    for qt in range(2):
        for s in range(2):
            for p in range(4):
                r = ACC + 16*qt + 8*s + 2*p
                a(f"  v_cvt_pk_bf16_f32 v{32+qt*8+s*4+p}, v{r}, v{r+1}")
    if 'p2st' not in opt.bench: stamp(a, "P1 done")
    if 'p1st' in opt.bench:
        stamp_flush(a); a("L_done:"); a("  s_endpgm"); a(kernel_desc(KNAME, 512, 102, 256)); return a.text()
    def qst(fl):
        for qt in range(2):
            for s in range(2):
                a(f"  s_add_u32 s{T0+2}, s{T0+1}, {WS_QF + qt*8192+s*1024}")
                a(f"  buffer_store_dwordx4 {vr(32+qt*8+s*4,4)}, v{V_L16}, {R(R_WS)}, s{T0+2} offen{fl}")
    dual(a, qst)
    fifo.push('QS', 4)
    for kind, i in opt.kvmid:
        emit(dmaK(i) if kind == 'K' else dmaV(i))
    a("""  v_and_b32 v4, 31, v0
  v_lshrrev_b32 v5, 5, v0
  v_and_b32 v6, 15, v0""")
    for ks in range(8):
        a(f"  v_add_u32 v7, {2*ks}, v5")
        a(f"  v_xor_b32 v7, v7, v6")
        a(f"  v_lshlrev_b32 v7, 4, v7")
        a(f"  v_lshl_add_u32 v{VKA+ks}, v4, 8, v7")
    a(f"  s_lshl_b32 s{T0+2}, s{S_BG}, 7")
    a(f"  s_lshl_b32 s{T0+3}, s{S_J}, 4")
    a(f"  s_add_u32 s{T0+3}, s{T0+3}, s{T0+2}")
    a(f"  s_lshl_b32 s{T0+4}, s{S_W}, 2")
    a(f"  s_add_u32 s{T0+3}, s{T0+3}, s{T0+4}")
    a(f"  s_add_u32 s{T0+3}, s{T0+3}, {FQ_OFF}")
    a(f"  s_waitcnt vmcnt({fifo.after(['QS'])})")
    set_flag(a, f"s{T0+3}")
    if 'p2st' not in opt.bench: stamp(a, "Q published")
    for t in range(4):
        tr_addr(a, VVA+t, t, False, 'pv', 4, base=L_V)
    a(f"  s_lshl_b32 s{T0+3}, s{S_W}, 4")
    a(f"  s_add_u32 s{T0+3}, s{T0+3}, s{T0+2}")
    a(f"  s_add_u32 s{T0+3}, s{T0+3}, {FQ_OFF}")
    poll(a, f"s{T0+3}", 4)
    fifo.ops = []
    a(f"  s_add_u32 s{T0+1}, s{T0}, s{S_W}")
    a(f"  s_lshl_b32 s{T0+1}, s{T0+1}, 14")
    for qt in range(2):
        for ks in range(8):
            off = qt*8192 + ks*1024
            if (off & 4095) == 0:
                a(f"  s_add_u32 s{T0+2}, s{T0+1}, {WS_QF + off}")
            a(f"  buffer_load_dwordx4 {ar(AQ+qt*32+ks*4,4)}, v{V_L16}, {R(R_WS)}, s{T0+2} offen offset:{off & 4095} sc1")
    fifo.push('Q', 16)
    a("  s_barrier")
    for l in [f"  ds_read_b128 {ar(AK+ks*4,4)}, v{VKA+ks} offset:{L_K}" for ks in range(8)]: a(l)
    for kind, i in opt.kvpost:
        emit(dmaK(i) if kind == 'K' else dmaV(i))
    a(f"  s_lshl_b32 s{T0}, s{S_G}, 19")
    a(f"  s_lshl_b32 s{T0+1}, s{S_J}, 8")
    a(f"  s_add_u32 s{T0}, s{T0}, s{T0+1}")
    srd(a, R_WO, P_WO, f"s{T0}", "0x400000")
    a(f"  s_sub_u32 s{R_WO+2}, s{R_WO+2}, s{T0}")
    NSTEP = 16
    def readK(i):
        if 'nolds' in opt.bench and i > 1: return []
        return [f"  ds_read_b128 {ar(AK+ks*4,4)}, v{VKA+ks} offset:{L_K+(i%RKN)*8192}" for ks in range(8)]
    def readV(i):
        out = []
        for s in range(2):
            for t in range(4):
                for rd in range(2):
                    out.append(f"  ds_read_b64_tr_b16 {ar(AV+(t*2+s)*4+rd*2,2)}, v{VVA+t} offset:{(i%RVN)*8192+s*4096+rd*2048}")
        return out
    def qk(i, first=False):
        buf = i & 1; out = []
        for qt in range(2):
            for ks in range(8):
                d = vr(VS+buf*32+qt*16, 16)
                c = d if ks > 0 else ("0" if first else vr(VN+qt*16, 16))
                out.append(f"  v_mfma_f32_32x32x16_bf16 {d}, {ar(AK+ks*4,4)}, {ar(AQ+qt*32+ks*4,4)}, {c}")
        return out
    def pv(i):
        buf = i & 1; out = []
        for qt in range(2):
            for s in range(2):
                for t in range(4):
                    d = Oreg(t, qt)
                    c = "0" if (i == 0 and s == 0) else d
                    out.append(f"  v_mfma_f32_32x32x16_bf16 {d}, {ar(AV+(t*2+s)*4,4)}, {vr(VP+buf*16+qt*8+s*4,4)}, {c}")
        return out
    def sm(i, qt):
        buf = i & 1
        r0 = VS+buf*32+qt*16
        groups = []
        for k in range(17):
            g = []
            if k < 16: g.append(f"  v_exp_f32 v{r0+k}, v{r0+k}")
            if k >= 1: g.append(f"  v_add_f32 v{VL+qt}, v{VL+qt}, v{r0+k-1}")
            if k >= 2 and k % 2 == 0:
                p = k//2 - 1
                g.append(f"  v_cvt_pk_bf16_f32 v{VP+buf*16+qt*8+p}, v{r0+2*p}, v{r0+2*p+1}")
            groups.append(g)
        return groups
    def block(mfmas, groups, extra, pre=None, extra_start=0):
        n = len(mfmas)
        for i, mf in enumerate(mfmas):
            a(mf)
            if pre and i in pre:
                for l in pre[i]: a(l)
            if groups:
                for l in groups[i]: a(l)
            if i >= extra_start and extra:
                span = n - extra_start
                lo = (len(extra) * (i - extra_start)) // span
                hi = (len(extra) * (i - extra_start + 1)) // span
                for l in extra[lo:hi]: a(l)
        if groups:
            for l in groups[16]: a(l)
    WOLOC = [L_X + u*8192 for u in range(4)] + [L_K + s_*8192 for s_ in range(8)] + [L_V + s_*8192 for s_ in range(4)]
    wo_at = {}
    for u in range(4): wo_at.setdefault(2+u, []).append(u)
    for s_ in range(8): wo_at.setdefault(7+s_, []).append(4+s_)
    for s_ in range(4): wo_at.setdefault(9+s_, []).append(12+s_)
    sWOg = T0+12
    def dmaWO(u):
        out = []
        for ii in range(2):
            out.append(f"  s_add_u32 m0, s{S_LW}, {WOLOC[u] + ii*1024}")
            out.append(f"  s_mov_b32 s{S_TILE}, {u*32768 + ii*4096}")
            out.append(f"  buffer_load_dwordx4 v{VWOD}, {R(R_WO)}, s{S_TILE} offen lds")
        fifo.push(('W', u), 2)
        return out
    sMB, sML = T0+13, T0+14
    a(f"  s_lshl_b32 s{sMB}, s{S_BG}, 2")
    a(f"  s_add_u32 s{sMB}, s{sMB}, s{S_W}")
    a(f"  s_lshl_b32 s{sMB}, s{sMB}, 2")
    a(f"  s_add_u32 s{sMB}, s{sMB}, s{S_J}        ; (bg*4+w)*4+j")
    a(f"  s_lshl_b32 s{sML}, s{sMB}, 9")
    a(f"  s_add_u32 s{sML}, s{sML}, {WS_ML}")
    a(f"  s_lshl_b32 s{sMB}, s{sMB}, 14")
    a(f"  s_add_u32 s{sMB}, s{sMB}, {WS_MB}")
    VT128 = 234
    a(f"  v_lshlrev_b32 v{VT128}, 7, v0           ; lane*128")
    VT4 = 235
    a(f"  v_and_b32 v{VT4}, 3, v0")
    a(f"  v_lshlrev_b32 v{VT4}, 7, v{VT4}         ; (lane&3)*128")
    VT16 = 236
    a(f"  v_and_b32 v{VT16}, 15, v0")
    a(f"  v_lshlrev_b32 v{VT16}, 7, v{VT16}       ; (lane&15)*128")
    sOFp = T0+11
    a(f"  s_lshl_b32 s{sOFp}, s{S_B}, 5")
    a(f"  s_lshl_b32 s{S_TILE}, s{S_G}, 2")
    a(f"  s_add_u32 s{sOFp}, s{sOFp}, s{S_TILE}")
    a(f"  s_add_u32 s{sOFp}, s{sOFp}, s{S_J}")
    a(f"  s_lshl_b32 s{sOFp}, s{sOFp}, 14")
    a(f"  s_add_u32 s{sOFp}, s{sOFp}, s{S_LW}")
    a(f"  s_add_u32 s{sOFp}, s{sOFp}, {WS_OF}")
    tl = []
    for n in range(8):
        tl.append([f"  s_add_u32 s{S_TILE}, s{sMB}, {n*2048}", f"  buffer_load_dword v{V_DUM}, v{VT16}, {R(R_WS)}, s{S_TILE} offen"])
    tl.append([f"  buffer_load_dword v{V_DUM}, v{VT4}, {R(R_WS)}, s{sML} offen"])
    tl.append([f"  buffer_load_dword v{V_DUM}, v{VMBT}, {R(R_WS)}, s{sOFp} offen"])
    tl.append([f"  s_lshl_b32 s{S_TILE}, s{S_BG}, 9", f"  s_add_u32 s{S_TILE}, s{S_TILE}, {F1_OFF}",
               f"  buffer_load_dword v{V_DUM}, v{VT4}, {R(R_WS)}, s{S_TILE} offen"])
    tl.append([f"  s_lshl_b32 s{S_TILE}, s{S_BG}, 7", f"  s_add_u32 s{S_TILE}, s{S_TILE}, {F2_OFF}",
               f"  buffer_load_dword v{V_DUM}, v{V_FL}, {R(R_WS)}, s{S_TILE} offen"])
    TSTART = opt.tstart
    def touches(i):
        out = []
        if 'notouch2' in opt.bench: return out
        if i >= TSTART:
            per = -(-len(tl) // (NSTEP - 1 - TSTART))
            for g in tl[(i-TSTART)*per:(i-TSTART+1)*per]:
                out += g; fifo.push('T')
        return out
    stamp(a, "P2 start")
    if 'p2st' in opt.bench: a("  s_memtime s[14:15]")
    a(f"  s_waitcnt vmcnt({fifo.after(['Q'])}) lgkmcnt(0)")
    emit(qk(0, True))
    emit(readK(1))
    a("  s_nop 7")
    for qt in range(2):
        r = VS + qt*16
        a(f"  v_max3_f32 v{VM+qt}, v{r}, v{r+1}, v{r+2}")
        for k in range(3, 15, 2):
            a(f"  v_max3_f32 v{VM+qt}, v{VM+qt}, v{r+k}, v{r+k+1}")
        a(f"  v_max_f32 v{VM+qt}, v{VM+qt}, v{r+15}")
        a(f"  v_mov_b32 v4, v{VM+qt}")
        a("  s_nop 1")
        a(f"  v_permlane32_swap_b32 v{VM+qt}, v4")
        a("  s_nop 1")
        a(f"  v_max_f32 v{VM+qt}, v{VM+qt}, v4")
        for k in range(16):
            a(f"  v_sub_f32 v{VN+qt*16+k}, 0, v{VM+qt}")
        for k in range(16):
            a(f"  v_sub_f32 v{r+k}, v{r+k}, v{VM+qt}")
    a(f"  v_mov_b32 v{VL}, 0")
    a(f"  v_mov_b32 v{VL+1}, 0")
    for g in sm(0, 0): emit(g)
    allpro = [(k_, i_) for (_, k_, i_) in opt.kvpro] + list(opt.kvmid) + list(opt.kvpost)
    nextK = [1 + max(i_ for k_, i_ in allpro if k_ == 'K')]
    nextV = [1 + max(i_ for k_, i_ in allpro if k_ == 'V')]
    for i in range(NSTEP):
        need = [('V', i)] + ([('K', i+2)] if i+2 < NSTEP else [])
        sync = [f"  s_waitcnt vmcnt({fifo.after(need)}) lgkmcnt(0)", "  s_barrier"]
        dma = []
        cand = []
        if nextK[0] < NSTEP and nextK[0] - RKN <= i + 1: pass
        cnt = 0
        MAXI = opt.maxi[min(i, len(opt.maxi)-1)]
        while cnt < MAXI:
            kfree = nextK[0] < NSTEP and (nextK[0] < RKN or nextK[0] - RKN <= i + 1)
            vfree = nextV[0] < NSTEP and (nextV[0] < RVN or nextV[0] - RVN <= i - 1)
            if not kfree and not vfree: break
            if kfree and (not vfree or nextK[0] - 2 <= nextV[0]):
                dma += dmaK(nextK[0]); nextK[0] += 1
            else:
                dma += dmaV(nextV[0]); nextV[0] += 1
            cnt += 1
        for u in wo_at.get(i, []): dma += dmaWO(u)
        dma += touches(i)
        if i + 1 < NSTEP:
            a("  s_waitcnt lgkmcnt(0)")
            block(qk(i+1), sm(i, 1), readV(i), pre={0: sync}, extra_start=1)
        else:
            emit(sync)
            emit(readV(i))
            for g in sm(i, 1): emit(g)
        a("  s_waitcnt lgkmcnt(0)")
        extra = dma + (readK(i+2) if i+2 < NSTEP else [])
        block(pv(i), sm(i+1, 0) if i+1 < NSTEP else None, extra, extra_start=0)
        if 'p2st' in opt.bench and i in (0, 2, 4, 6, 8, 11, 13): stamp(a, f"it{i} done")
    stamp(a, "P2 done")
    if 'p2st' in opt.bench:
        a(f"  s_memtime s[{T0}:{T0+1}]")
        a("  s_waitcnt lgkmcnt(0)")
        k = nstamp[0]; nstamp[0] += 1
        a(f"  s_sub_u32 s{T0}, s{T0}, s14")
        a(f"  s_mul_i32 s{T0}, s{T0}, 100")
        a(f"  s_add_u32 s{S_T+2*k}, s{S_T}, s{T0}")
        a(f"  s_addc_u32 s{S_T+2*k+1}, s{S_T+1}, 0")
    if 'p2exit' in opt.bench:
        stamp_flush(a); a("L_done:"); a("  s_endpgm"); a(kernel_desc(KNAME, 512, 102, 256)); return a.text()
    def lreduce():
        for qt in range(2):
            a(f"  v_mov_b32 v4, v{VL+qt}")
            a("  s_nop 1")
            a(f"  v_permlane32_swap_b32 v{VL+qt}, v4")
            a("  s_nop 1")
            a(f"  v_add_f32 v{VL+qt}, v{VL+qt}, v4")
    lreduce()
    a(f"  v_max_f32 v4, v{VL}, v{VL+1}")
    a(f"  v_add_f32 v5, v{VL}, v{VL+1}")
    a(f"  s_mov_b32 s{T0}, {f32hex(2.0**24)}")
    a(f"  v_cmp_nge_f32 vcc, s{T0}, v4        ; !(2^24 >= max(l0,l1))")
    a(f"  v_cmp_u_f32 s[{T0+2}:{T0+3}], v5, v5")
    a("  s_nop 4")
    a(f"  s_or_b64 vcc, vcc, s[{T0+2}:{T0+3}]")
    a(f"  s_cselect_b32 s{T0+1}, 1, 0")
    if opt.force_safe:
        a(f"  s_mov_b32 s{T0+1}, 1")
    VOTE = L_V + 4*8192
    a(f"  v_mov_b32 v4, s{T0+1}")
    a(f"  s_lshl_b32 s{T0+2}, s{S_W}, 2")
    a(f"  v_mov_b32 v5, s{T0+2}")
    a(f"  v_add_u32 v5, {hex(VOTE)}, v5")
    a(f"  ds_write_b32 v5, v4")
    a("  s_waitcnt lgkmcnt(0)")
    a("  s_barrier")
    a(f"  v_mov_b32 v5, {hex(VOTE)}")
    a(f"  ds_read_b128 v[4:7], v5")
    a("  s_waitcnt lgkmcnt(0)")
    a("  v_or_b32 v4, v4, v5")
    a("  v_or3_b32 v4, v4, v6, v7")
    a("  s_nop 0")
    a(f"  v_readfirstlane_b32 s{T0+1}, v4")
    a(f"  s_cmp_lg_u32 s{T0+1}, 0")
    a(f"  s_cbranch_scc1 L_safe")
    a("L_safe_back:")
    VPK = 32
    for t in range(4):
        for s in range(2):
            for p in range(4):
                r = VO0 + t*16 + s*8 + 2*p
                a(f"  v_cvt_pk_bf16_f32 v{VPK+(t*2+s)*4+p}, v{r}, v{r+1}")
    OWN = L_V + 5*8192
    Lown = newlabel("own"); Lpub = newlabel("pub")
    a(f"  s_cmp_eq_u32 s{S_W}, s{S_J}")
    a(f"  s_cbranch_scc1 {Lown}")
    def st_half(qt):
        def f(fl):
            for n in range(8):
                off = qt*8192 + n*1024
                if (off & 4095) == 0:
                    a(f"  s_add_u32 s{T0+4}, s{sMB}, {off}")
                a(f"  buffer_store_dwordx4 {vr(VPK+(qt*8+n)*4,4)}, v{V_L16}, {R(R_WS)}, s{T0+4} offen offset:{off & 4095}{fl}")
        return f
    def cvt_q1():
        for t in range(4):
            for k in range(16):
                a(f"  v_accvgpr_read_b32 v{96+k}, a{AO1+t*16+k}")
            for s in range(2):
                for p in range(4):
                    a(f"  v_cvt_pk_bf16_f32 v{VPK+32+(t*2+s)*4+p}, v{96+s*8+2*p}, v{96+s*8+2*p+1}")
    dual(a, st_half(0))
    cvt_q1()
    dual(a, st_half(1))
    a(f"  s_branch {Lpub}")
    a(f"{Lown}:")
    a(f"  v_add_u32 v8, {hex(OWN)}, v{V_L16}")
    for n in range(8):
        a(f"  ds_write_b128 v8, {vr(VPK+n*4,4)} offset:{n*1024}")
    cvt_q1()
    for n in range(8):
        a(f"  ds_write_b128 v8, {vr(VPK+32+n*4,4)} offset:{8192+n*1024}")
    a(f"{Lpub}:")
    a(f"  v_mov_b32 v4, v{VM}")
    a(f"  v_mov_b32 v5, v{VL}")
    a(f"  v_mov_b32 v6, v{VM+1}")
    a(f"  v_mov_b32 v7, v{VL+1}")
    def mlst(fl):
        a(f"  s_mov_b32 exec_hi, 0")
        a(f"  buffer_store_dwordx4 v[4:7], v{V_L16}, {R(R_WS)}, s{sML} offen{fl}")
        a(f"  s_mov_b32 exec_hi, -1")
    dual(a, mlst)
    a("  s_waitcnt vmcnt(0) lgkmcnt(0)")
    a(f"  s_lshl_b32 s{T0+2}, s{S_BG}, 9")
    a(f"  s_lshl_b32 s{T0+3}, s{S_W}, 7")
    a(f"  s_add_u32 s{T0+3}, s{T0+3}, s{T0+2}")
    a(f"  s_lshl_b32 s{T0+4}, s{S_J}, 2")
    a(f"  s_add_u32 s{T0+3}, s{T0+3}, s{T0+4}")
    a(f"  s_add_u32 s{T0+3}, s{T0+3}, {F1_OFF}")
    set_flag(a, f"s{T0+3}")
    stamp(a, "H1 published")
    a("  s_barrier")
    VWR = 192
    a(f"  s_lshl_b32 s{T0+4}, s{S_W}, 2")
    tr_addr(a, VWR, f"s{T0+4}", True, 'pv', 4)
    a(f"  v_add_u32 v{VWR+1}, 0x10000, v{VWR}")
    a(f"  v_add_u32 v{VWR+2}, 0x20000, v{VWR}")
    for kk in range(32):
        for r_ in range(2):
            off = WOLOC[kk >> 1] + (kk & 1)*4096 + r_*2048
            a(f"  ds_read_b64_tr_b16 {ar(128+kk*4+r_*2,2)}, v{VWR+(off>>16)} offset:{off & 65535}")
        if kk % 4 == 3:
            a("  s_waitcnt lgkmcnt(4)")
    a(f"  s_lshl_b32 s{T0+4}, s{S_W}, 11")
    a(f"  v_add_u32 v8, s{T0+4}, v{V_L16}")
    a(f"  v_add_u32 v8, {hex(OWN)}, v8")
    a("  s_waitcnt lgkmcnt(4)")
    a(f"  s_lshl_b32 s{T0+3}, s{S_J}, 7")
    a(f"  s_add_u32 s{T0+3}, s{T0+3}, s{T0+2}")
    a(f"  s_add_u32 s{T0+3}, s{T0+3}, {F1_OFF}")
    VPA, VML, VAC = 32, 128, 96
    for qt in range(2):
        for s in range(2):
            a(f"  ds_read_b128 {vr(208+(qt*2+s)*4,4)}, v8 offset:{qt*8192+s*1024}")
    poll(a, f"s{T0+3}", 4)
    stamp(a, "H1 flags seen")
    a(f"  s_lshl_b32 s{T0}, s{S_BG}, 2")
    a(f"  s_add_u32 s{T0}, s{T0}, s{S_J}")
    a(f"  s_lshl_b32 s{T0}, s{T0}, 2             ; (bg*4+j)*4")
    a(f"  s_lshl_b32 s{T0+1}, s{T0}, 14")
    a(f"  s_add_u32 s{T0+1}, s{T0+1}, s{S_LW}    ; + 2w*1024")
    a(f"  s_lshl_b32 s{T0+2}, s{T0}, 9")
    a("  v_and_b32 v2, 31, v0")
    a("  v_lshlrev_b32 v2, 4, v2")
    for jp in range(4):
        a(f"  s_add_u32 s{T0+3}, s{T0+2}, {WS_ML + jp*512}")
        a(f"  buffer_load_dwordx4 {vr(VML+jp*4,4)}, v2, {R(R_WS)}, s{T0+3} offen sc1")
    for jp in range(4):
        Ls = newlabel("skipown")
        a(f"  s_cmp_eq_u32 s{S_J}, {jp}")
        a(f"  s_cbranch_scc1 {Ls}")
        for qt in range(2):
            for s in range(2):
                a(f"  s_add_u32 s{T0+3}, s{T0+1}, {WS_MB + jp*16384 + qt*8192 + s*1024}")
                a(f"  buffer_load_dwordx4 {vr(VPA+jp*16+(qt*2+s)*4,4)}, v{V_L16}, {R(R_WS)}, s{T0+3} offen sc1")
        a(f"{Ls}:")
    a("  s_waitcnt vmcnt(12) lgkmcnt(0)")
    for qt in range(2):
        m = lambda jp: VML+jp*4+qt*2
        l = lambda jp: VML+jp*4+qt*2+1
        a(f"  v_max3_f32 v4, v{m(0)}, v{m(1)}, v{m(2)}")
        a(f"  v_max_f32 v4, v4, v{m(3)}")
        for jp in range(4):
            a(f"  v_sub_f32 v{m(jp)}, v{m(jp)}, v4")
        for jp in range(4):
            a(f"  v_exp_f32 v{m(jp)}, v{m(jp)}")
        a("  s_nop 0")
        a(f"  v_mul_f32 v5, v{m(0)}, v{l(0)}")
        for jp in range(1, 4):
            a(f"  v_fmac_f32 v5, v{m(jp)}, v{l(jp)}")
        a(f"  v_rcp_f32 v5, v5")
        a("  s_nop 0")
        for jp in range(4):
            a(f"  v_mul_f32 v{m(jp)}, v{m(jp)}, v5")
    for jp in range(4):
        Ls = newlabel("ownsc")
        a(f"  s_cmp_lg_u32 s{S_J}, {jp}")
        a(f"  s_cbranch_scc1 {Ls}")
        a(f"  v_mov_b32 v144, v{VML+jp*4}")
        a(f"  v_mov_b32 v145, v{VML+jp*4+2}")
        a(f"{Ls}:")
    a(f"  s_mov_b32 s{T0+4}, 0xffff0000")
    def acc_from(src, sc0, sc1, first):
        for qt in range(2):
            sc = sc0 if qt == 0 else sc1
            for s in range(2):
                for p in range(4):
                    r = src + (qt*2+s)*4 + p
                    d = VAC + qt*16 + s*8 + 2*p
                    a(f"  v_lshlrev_b32 v4, 16, v{r}")
                    a(f"  v_and_b32 v5, s{T0+4}, v{r}")
                    if first:
                        a(f"  v_mul_f32 v{d}, v{sc}, v4")
                        a(f"  v_mul_f32 v{d+1}, v{sc}, v5")
                    else:
                        a(f"  v_fmac_f32 v{d}, v{sc}, v4")
                        a(f"  v_fmac_f32 v{d+1}, v{sc}, v5")
    acc_from(208, 144, 145, True)
    a("  s_waitcnt vmcnt(0)")
    for jp in range(4):
        Ls = newlabel("skipown2")
        a(f"  s_cmp_eq_u32 s{S_J}, {jp}")
        a(f"  s_cbranch_scc1 {Ls}")
        acc_from(VPA+jp*16, VML+jp*4, VML+jp*4+2, False)
        a(f"{Ls}:")
    VOF = 176
    for qt in range(2):
        for s in range(2):
            for p in range(4):
                r = VAC + qt*16 + s*8 + 2*p
                a(f"  v_cvt_pk_bf16_f32 v{VOF+(qt*2+s)*4+p}, v{r}, v{r+1}")
    a(f"  s_lshl_b32 s{T0}, s{S_B}, 5")
    a(f"  s_lshl_b32 s{T0+1}, s{S_G}, 2")
    a(f"  s_add_u32 s{T0}, s{T0}, s{T0+1}       ; b*32+4g")
    a(f"  s_add_u32 s{T0+1}, s{T0}, s{S_J}")
    a(f"  s_lshl_b32 s{T0+1}, s{T0+1}, 14")
    a(f"  s_add_u32 s{T0+1}, s{T0+1}, s{S_LW}")
    def ofst(fl):
        for qt in range(2):
            for s in range(2):
                a(f"  s_add_u32 s{T0+2}, s{T0+1}, {WS_OF + qt*8192+s*1024}")
                a(f"  buffer_store_dwordx4 {vr(VOF+(qt*2+s)*4,4)}, v{V_L16}, {R(R_WS)}, s{T0+2} offen{fl}")
    dual(a, ofst)
    a("  s_waitcnt vmcnt(0)")
    a(f"  s_lshl_b32 s{T0+2}, s{S_BG}, 7")
    a(f"  s_lshl_b32 s{T0+3}, s{S_J}, 4")
    a(f"  s_add_u32 s{T0+3}, s{T0+3}, s{T0+2}")
    a(f"  s_lshl_b32 s{T0+4}, s{S_W}, 2")
    a(f"  s_add_u32 s{T0+3}, s{T0+3}, s{T0+4}")
    a(f"  s_add_u32 s{T0+3}, s{T0+3}, {F2_OFF}")
    set_flag(a, f"s{T0+3}")
    stamp(a, "OF published")
    a("  s_barrier")
    a(f"  s_add_u32 s{T0+3}, s{T0+2}, {F2_OFF}")
    poll(a, f"s{T0+3}", 16)
    stamp(a, "H2 flags seen")
    a(f"  s_lshl_b32 s{T0+1}, s{T0}, 14")
    a(f"  s_lshl_b32 s{T0+2}, s{S_W}, 14")
    a(f"  s_add_u32 s{T0+1}, s{T0+1}, s{T0+2}")
    for n in range(16):
        a(f"  s_add_u32 m0, s{T0+2}, {n*1024}")
        a(f"  s_add_u32 s{T0+3}, s{T0+1}, {WS_OF + n*1024}")
        a(f"  buffer_load_dwordx4 v{V_L16}, {R(R_WS)}, s{T0+3} offen sc1 lds")
    ACC = 128
    a("  s_waitcnt vmcnt(0)")
    a("  s_barrier")
    NB = 6
    def rdB(kk):
        hh, ks = kk >> 3, kk & 7
        for qt in range(2):
            a(f"  ds_read_b128 {vr(32+((kk%NB)*2+qt)*4,4)}, v{V_L16} offset:{(hh*16+qt*8+ks)*1024}")
    for kk in range(NB-1): rdB(kk)
    for kk in range(32):
        if kk + NB - 1 < 32:
            rdB(kk+NB-1)
            a(f"  s_waitcnt lgkmcnt({2*(NB-1)})")
        else:
            a(f"  s_waitcnt lgkmcnt({2*(31-kk)})")
        for qt in range(2):
            c = vr(ACC+16*qt,16) if kk else "0"
            a(f"  v_mfma_f32_32x32x16_bf16 {vr(ACC+16*qt,16)}, {ar(128+kk*4,4)}, {vr(32+((kk%NB)*2+qt)*4,4)}, {c}")
    a(f"  s_lshl_b32 s{T0}, s{S_B}, 2")
    a(f"  s_add_u32 s{T0}, s{T0}, s{S_J}        ; b*4+j")
    a(f"  s_lshl_b32 s{T0+1}, s{T0}, 3")
    a(f"  s_add_u32 s{T0+1}, s{T0+1}, s{S_G}")
    a(f"  s_lshl_b32 s{T0+1}, s{T0+1}, 15")
    a(f"  s_lshl_b32 s{T0+2}, s{S_W}, 13")
    a(f"  s_add_u32 s{T0+1}, s{T0+1}, s{T0+2}")
    a("  s_nop 7")
    for n in range(8):
        off = n*1024
        if (off & 4095) == 0:
            a(f"  s_add_u32 s{T0+2}, s{T0+1}, {WS_PO + off}")
        a(f"  buffer_store_dwordx4 {vr(ACC+n*4,4)}, v{V_L16}, {R(R_WS)}, s{T0+2} offen offset:{off & 4095} sc0 sc1")
    a("  s_waitcnt vmcnt(0)")
    a(f"  s_lshl_b32 s{T0+2}, s{T0}, 9")
    a(f"  s_lshl_b32 s{T0+3}, s{S_W}, 7")
    a(f"  s_add_u32 s{T0+3}, s{T0+3}, s{T0+2}")
    a(f"  s_lshl_b32 s{T0+4}, s{S_G}, 2")
    a(f"  s_add_u32 s{T0+3}, s{T0+3}, s{T0+4}")
    a(f"  s_add_u32 s{T0+3}, s{T0+3}, {F3_OFF}")
    set_flag(a, f"s{T0+3}", always_global=True)
    stamp(a, "PO published")
    a(f"  s_lshr_b32 s{T0+3}, s{S_G}, 1")
    a(f"  s_lshl_b32 s{T0+3}, s{T0+3}, 7")
    a(f"  s_add_u32 s{T0+3}, s{T0+3}, s{T0+2}")
    a(f"  s_add_u32 s{T0+3}, s{T0+3}, {F3_OFF}")
    poll(a, f"s{T0+3}", 8)
    a(f"  s_lshl_b32 s{T0}, s{T0}, 18")
    a(f"  s_lshl_b32 s{T0+1}, s{S_G}, 12")
    a(f"  s_add_u32 s{T0}, s{T0}, s{T0+1}")
    a(f"  s_lshl_b32 s{T0+2}, s{S_W}, 10")
    a(f"  s_add_u32 s{T0}, s{T0}, s{T0+2}")
    for gp in range(8):
        a(f"  s_add_u32 s{T0+2}, s{T0}, {WS_PO + gp*32768}")
        a(f"  buffer_load_dwordx4 {vr(16+gp*4,4)}, v{V_L16}, {R(R_WS)}, s{T0+2} offen sc1")
    srd(a, R_OUT, P_OUT, None, "0x80000")
    a(f"  s_lshl_b32 s{T0+3}, s{S_B}, 6")
    a(f"  s_and_b32 s{T0+4}, s{S_G}, 1")
    a(f"  s_lshl_b32 s{T0+4}, s{T0+4}, 5")
    a(f"  s_add_u32 s{T0+3}, s{T0+3}, s{T0+4}")
    a(f"  s_lshl_b32 s{T0+3}, s{T0+3}, 10")
    a(f"  s_lshl_b32 s{T0+4}, s{S_J}, 7")
    a(f"  s_lshr_b32 s{T0+5}, s{S_G}, 1")
    a(f"  s_lshl_b32 s{T0+5}, s{T0+5}, 5")
    a(f"  s_add_u32 s{T0+4}, s{T0+4}, s{T0+5}")
    a(f"  s_lshr_b32 s{T0+5}, s{S_W}, 1")
    a(f"  s_lshl_b32 s{T0+5}, s{T0+5}, 4")
    a(f"  s_add_u32 s{T0+4}, s{T0+4}, s{T0+5}")
    a(f"  s_and_b32 s{T0+5}, s{S_W}, 1")
    a(f"  s_lshl_b32 s{T0+5}, s{T0+5}, 2")
    a(f"  s_add_u32 s{T0+4}, s{T0+4}, s{T0+5}")
    a(f"  s_lshl_b32 s{T0+4}, s{T0+4}, 1")
    a(f"  s_add_u32 s{T0+3}, s{T0+3}, s{T0+4}")
    a("""  v_and_b32 v2, 31, v0
  v_lshrrev_b32 v3, 5, v0
  v_lshlrev_b32 v2, 10, v2
  v_lshl_add_u32 v2, v3, 4, v2""")
    a("  s_waitcnt vmcnt(0)")
    for k in range(4):
        for gp in range(1, 8):
            a(f"  v_add_f32 v{16+k}, v{16+k}, v{16+gp*4+k}")
    a("  v_cvt_pk_bf16_f32 v4, v16, v17")
    a("  v_cvt_pk_bf16_f32 v5, v18, v19")
    a("  s_nop 1")
    a(f"  buffer_store_dwordx2 v[4:5], v2, {R(R_OUT)}, s{T0+3} offen")
    if opt.stamps:
        a("  s_waitcnt vmcnt(0)")
        stamp(a, "end")
        stamp_flush(a)
        if 'dbgst' in opt.bench:
            a("  s_cmp_lg_u32 s3, 0")
            a("  s_cbranch_scc1 L_done")
            for wg, base, idx in [(0, 1, [1, 3, 4, 5, 7, 9, 10]), (133, 8, [1, 3, 4, 5, 7, 9, 10])]:
                Lx = newlabel("dbg")
                a(f"  s_cmp_lg_u32 s2, {wg}")
                a(f"  s_cbranch_scc1 {Lx}")
                a("  s_mov_b64 exec, 1")
                for n_, k in enumerate(idx):
                    a(f"  s_sub_u32 s{T0}, s{S_T+2*k}, s{S_T}")
                    a(f"  v_mov_b32 v4, s{T0}")
                    a(f"  v_mov_b32 v5, {4*(base+n_)}")
                    a(f"  buffer_store_dword v4, v5, {R(R_DBG)}, 0 offen")
                    a("  s_nop 1")
                a(f"{Lx}:")
    a("L_done:")
    a("  s_endpgm")
    a("L_safe:")
    SK, SV = L_V + 6*8192, L_V + 7*8192
    a("  s_waitcnt vmcnt(0)")
    a("  s_barrier")
    for ks in range(8):
        a(f"  v_add_u32 v{224+ks}, {hex(SK)}, v{VKA+ks}")
    for qt in range(2):
        a(f"  v_mov_b32 v{VM+qt}, 0xff800000      ; -inf")
        a(f"  v_mov_b32 v{VL+qt}, 0")
    for r in range(64):
        a(f"  v_mov_b32 v{VO0+r}, 0")
        a(f"  v_accvgpr_write_b32 a{AO1+r}, 0")
    sI = T0+11
    a(f"  s_mov_b32 s{sI}, 0")
    a("L_safe_loop:")
    a(f"  s_add_u32 m0, s{S_LW}, {SK}")
    a(f"  s_nop 0")
    for ii in range(2):
        a(f"  buffer_load_dwordx4 v{VKD+ii}, {R(R_K)}, s{sI} offen offset:{ii*1024} lds")
    a(f"  s_add_u32 m0, s{S_LW}, {SV}")
    a(f"  s_nop 0")
    for ii in range(2):
        a(f"  buffer_load_dwordx4 v{VVD}, {R(R_V)}, s{sI} offen offset:{ii*1024} lds")
    a("  s_waitcnt vmcnt(0)")
    a("  s_barrier")
    for ks in range(8):
        a(f"  ds_read_b128 {ar(AK+ks*4,4)}, v{224+ks}")
    for s in range(2):
        for t in range(4):
            for rd in range(2):
                a(f"  ds_read_b64_tr_b16 {ar(AV+(t*2+s)*4+rd*2,2)}, v{VVA+t} offset:{7*8192+s*4096+rd*2048}")
    a("  s_waitcnt lgkmcnt(0)")
    a("  s_barrier")
    for qt in range(2):
        for ks in range(8):
            d = vr(VS+qt*16, 16)
            a(f"  v_mfma_f32_32x32x16_bf16 {d}, {ar(AK+ks*4,4)}, {ar(AQ+qt*32+ks*4,4)}, {d if ks else '0'}")
    a("  s_nop 15")
    for qt in range(2):
        r = VS + qt*16
        a(f"  v_max3_f32 v4, v{r}, v{r+1}, v{r+2}")
        for k in range(3, 15, 2):
            a(f"  v_max3_f32 v4, v4, v{r+k}, v{r+k+1}")
        a(f"  v_max_f32 v4, v4, v{r+15}")
        a(f"  v_mov_b32 v5, v4")
        a("  s_nop 1")
        a(f"  v_permlane32_swap_b32 v4, v5")
        a("  s_nop 1")
        a(f"  v_max3_f32 v4, v4, v5, v{VM+qt}")
        a(f"  v_sub_f32 v5, v{VM+qt}, v4")
        a(f"  v_exp_f32 v5, v5")
        a(f"  v_mov_b32 v{VM+qt}, v4")
        a(f"  v_mul_f32 v{VL+qt}, v{VL+qt}, v5")
        for k in range(16):
            a(f"  v_sub_f32 v{r+k}, v{r+k}, v4")
        for k in range(16):
            a(f"  v_exp_f32 v{r+k}, v{r+k}")
        a("  s_nop 0")
        for k in range(16):
            a(f"  v_add_f32 v{VL+qt}, v{VL+qt}, v{r+k}")
        for p in range(8):
            a(f"  v_cvt_pk_bf16_f32 v{VP+qt*8+p}, v{r+2*p}, v{r+2*p+1}")
        for t in range(4):
            for k in range(16):
                if qt == 0:
                    a(f"  v_mul_f32 v{VO0+t*16+k}, v{VO0+t*16+k}, v5")
                else:
                    a(f"  v_accvgpr_read_b32 v6, a{AO1+t*16+k}")
                    a(f"  v_mul_f32 v6, v6, v5")
                    a(f"  v_accvgpr_write_b32 a{AO1+t*16+k}, v6")
    a("  s_nop 1")
    for qt in range(2):
        for s in range(2):
            for t in range(4):
                d = Oreg(t, qt)
                a(f"  v_mfma_f32_32x32x16_bf16 {d}, {ar(AV+(t*2+s)*4,4)}, {vr(VP+qt*8+s*4,4)}, {d}")
    a(f"  s_add_u32 s{sI}, s{sI}, 8192")
    a(f"  s_cmp_lt_u32 s{sI}, {16*8192}")
    a("  s_nop 15")
    a(f"  s_cbranch_scc1 L_safe_loop")
    lreduce()
    a("  s_nop 7")
    a("  s_branch L_safe_back")
    a(kernel_desc(KNAME, 512, 102, 256))
    return a.text()

if __name__ == "__main__":
    import argparse
    ap = argparse.ArgumentParser()
    ap.add_argument("out")
    ap.add_argument("--nostamps", action="store_true")
    ap.add_argument("--plain", action="store_true")
    ap.add_argument("--global_", action="store_true")
    ap.add_argument("--safe", action="store_true")
    ap.add_argument("--bench", type=str, default="")
    ap.add_argument("--tstart", type=int, default=11)
    ap.add_argument("--maxi", type=str, default="3")
    ap.add_argument("--kvpro", type=str, default="")
    ap.add_argument("--kvpost", type=str, default="")
    ap.add_argument("--kvmid", type=str, default="")
    x = ap.parse_args()
    opt.stamps = not x.nostamps
    opt.nt = "" if x.plain else " nt"
    opt.force_global = x.global_
    opt.force_safe = x.safe
    opt.tstart = x.tstart
    opt.maxi = [int(t) for t in x.maxi.split(',')]
    if x.kvpro: opt.kvpro = [(int(t[0]), t[1], int(t[2:])) for t in x.kvpro.split(',')]
    if x.kvmid: opt.kvmid = [(t[0], int(t[1:])) for t in x.kvmid.split(',')]
    if x.kvpost: opt.kvpost = [(t[0], int(t[1:])) for t in x.kvpost.split(',')]
    opt.bench = set(x.bench.split(",")) if x.bench else set()
    open(x.out, "w").write(build())
```

```python
import sys, math, struct
from asmlib import *

WS_QF = 0x0000000
WS_MB = 0x0400000
WS_ML = 0x1400000
WS_OF = 0x0000000
WS_PO = 0x1900000
WS_FL = 0x2100000
FQ_OFF = WS_FL
F1_OFF = WS_FL + 0x4000
F2_OFF = WS_FL + 0x10000
F3_OFF = WS_FL + 0x14000
HL_OFF = WS_FL + 0x18000
WS_ST = 0x2200000
WS_SIZE = 0x2400000

def vr(a, n=1): return f"v{a}" if n == 1 else f"v[{a}:{a+n-1}]"
def ar(a, n=1): return f"a{a}" if n == 1 else f"a[{a}:{a+n-1}]"
def R(r): return f"s[{r}:{r+3}]"
SCALE = math.log2(math.e) / math.sqrt(128.0)
def f32hex(x): return "0x%08x" % struct.unpack("<I", struct.pack("<f", x))[0]

S_W, S_G, S_B, S_J = 3, 4, 5, 6
S_N, S_LOC, S_XCC, S_BG = 8, 9, 10, 11
S_LW, S_TILE, S_SPIN, S_T32 = 12, 13, 14, 15
P_X, P_K, P_V, P_WQ, P_WO, P_OUT, P_DBG, P_WS = 16, 18, 20, 22, 24, 26, 28, 30
R_K, R_V, R_X, R_WQ, R_WO, R_WS, R_OUT, R_DBG = 32, 36, 40, 44, 48, 52, 56, 60
T0 = 64
S_T = 80

L_K, L_V, L_X = 0x00000, 0x10000, 0x20000

V_DUM = 9
VKD, VVD, VWOD, V_L16, V_FL = 10, 12, 13, 14, 15
VKA, VVA, VL, VM = 16, 24, 28, 30
VS, VP, VN, VO0 = 32, 96, 128, 160
VXD, VWD, VWA, VXA = 224, 226, 227, 229
AO1, AQ, AK, AV = 0, 128, 192, 224
def Oreg(t, qt, k=0, n=16):
    return (vr(VO0+t*16+k, n) if qt == 0 else ar(AO1+t*16+k, n))

class Opt:
    stamps = True
    nt = " nt"
    timeout = 1 << 16
    force_global = False
    force_safe = False
    tstart = 9
    wosched = [1,2,3,4, 7,8,9,10,11,12,13,14, 12,13,14,15]
    wotouch = 0
    mbtouch = [13,14]
    fltouch = 12
    oftouch = -1
    wostart = 10
    woper = 3
    maxi = [2]
    kvpro = [(5,'K',0), (6,'K',1)]
    kvmid = []
    kvpost = [('V',0), ('K',2), ('V',1), ('K',3)]
    bench = set()
opt = Opt()

def srd(a, r, p, off, size):
    if off is None:
        a(f"  s_mov_b32 s{r}, s{p}")
        a(f"  s_mov_b32 s{r+1}, s{p+1}")
    else:
        a(f"  s_add_u32 s{r}, s{p}, {off}")
        a(f"  s_addc_u32 s{r+1}, s{p+1}, 0")
    a(f"  s_mov_b32 s{r+2}, {size}")
    a(f"  s_mov_b32 s{r+3}, 0x20000")

nstamp = [0]
def stamp(a, name=""):
    if opt.stamps:
        k = nstamp[0]; nstamp[0] += 1
        assert k < 11, "too many stamps"
        a(f"  s_memrealtime s[{S_T+2*k}:{S_T+2*k+1}]")
def stamp_flush(a):
    if not opt.stamps: return
    n = nstamp[0]
    a("  s_waitcnt lgkmcnt(0)")
    a(f"  s_lshl_b32 s{T0}, s2, 2")
    a(f"  s_add_u32 s{T0}, s{T0}, s{S_W}")
    a(f"  s_mul_i32 s{T0}, s{T0}, 96")
    a(f"  s_add_u32 s{T0}, s{T0}, {WS_ST}")
    a("  v_mov_b32 v8, 0")
    for k in range(0, 12, 2):
        for u in range(2):
            kk = min(k+u, n-1)
            a(f"  v_mov_b32 v{4+2*u}, s{S_T+2*kk}")
            a(f"  v_mov_b32 v{5+2*u}, s{S_T+2*kk+1}")
        a(f"  s_add_u32 s{T0+1}, s{T0}, {k*8}")
        a(f"  s_mov_b64 exec, 1")
        a(f"  buffer_store_dwordx4 v[4:7], v8, {R(R_WS)}, s{T0+1} offen")
        a(f"  s_mov_b64 exec, -1")
        a("  s_nop 1")

def tr_addr(a, dst, tile, sigma, row_mode, tmp, base=0):
    t0, t1, t2, t3 = tmp, tmp+1, tmp+2, tmp+3
    a(f"  v_bfe_u32 v{t0}, v0, 4, 1")
    a(f"  v_and_b32 v{t1}, 3, v0")
    if sigma:
        a(f"  v_and_b32 v{t2}, 1, v{t1}")
        a(f"  v_lshrrev_b32 v{t1}, 1, v{t1}")
    else:
        a(f"  v_lshrrev_b32 v{t2}, 1, v{t1}")
        a(f"  v_and_b32 v{t1}, 1, v{t1}")
    a(f"  v_lshl_add_u32 v{t2}, v{t0}, 1, v{t2}")
    if isinstance(tile, int):
        a(f"  v_add_u32 v{t2}, {4*tile}, v{t2}")
    else:
        a(f"  v_add_u32 v{t2}, {tile}, v{t2}")
    a(f"  v_bfe_u32 v{t0}, v0, 2, 2")
    a(f"  v_lshlrev_b32 v{t3}, 2, v{t0}")
    a(f"  v_xor_b32 v{t2}, v{t2}, v{t3}")
    a(f"  v_lshlrev_b32 v{t2}, 4, v{t2}")
    a(f"  v_lshl_add_u32 v{t2}, v{t1}, 3, v{t2}")
    a(f"  v_lshrrev_b32 v{t3}, 5, v0")
    a(f"  v_lshl_add_u32 v{t3}, v{t3}, {3 if row_mode=='nat' else 2}, v{t0}")
    a(f"  v_lshl_add_u32 v{dst}, v{t3}, 8, v{t2}")
    if base:
        a(f"  v_add_u32 v{dst}, {hex(base)}, v{dst}")

lab = [0]
def newlabel(p):
    lab[0] += 1
    return f"L_{p}_{lab[0]}"

def poll(a, soff, nwords):
    L = newlabel("poll"); Lx = newlabel("pollx")
    mask = (1 << nwords) - 1
    a(f"  s_mov_b32 s{S_SPIN}, {opt.timeout}")
    a(f"{L}:")
    a(f"  buffer_load_dword v4, v{V_FL}, {R(R_WS)}, {soff} offen sc1")
    a(f"  s_sub_u32 s{S_SPIN}, s{S_SPIN}, 1")
    a(f"  s_cbranch_scc1 {Lx}")
    a(f"  s_waitcnt vmcnt(0)")
    a(f"  v_cmp_ne_u32 vcc, s{S_N}, v4")
    a(f"  s_nop 4")
    a(f"  s_and_b32 s{T0+15}, vcc_lo, {hex(mask)}")
    a(f"  s_cbranch_scc1 {L}")
    a(f"{Lx}:")

def set_flag(a, soff, always_global=False):
    a(f"  v_mov_b32 v4, s{S_N}")
    a(f"  v_mov_b32 v5, 0")
    a(f"  s_mov_b64 exec, 1")
    if always_global:
        a(f"  buffer_store_dword v4, v5, {R(R_WS)}, {soff} offen sc0 sc1")
    else:
        Lg = newlabel("fg"); Le = newlabel("fe")
        a(f"  s_cmp_eq_u32 s{S_LOC}, 0")
        a(f"  s_cbranch_scc1 {Lg}")
        a(f"  buffer_store_dword v4, v5, {R(R_WS)}, {soff} offen")
        a(f"  s_branch {Le}")
        a(f"{Lg}:")
        a(f"  buffer_store_dword v4, v5, {R(R_WS)}, {soff} offen sc0 sc1")
        a(f"{Le}:")
    a(f"  s_mov_b64 exec, -1")

def dual(a, emit):
    Lg = newlabel("sg"); Le = newlabel("se")
    a(f"  s_cmp_eq_u32 s{S_LOC}, 0")
    a(f"  s_cbranch_scc1 {Lg}")
    emit("")
    a(f"  s_branch {Le}")
    a(f"{Lg}:")
    emit(" sc0 sc1")
    a(f"{Le}:")

class Fifo:
    def __init__(self): self.ops = []
    def push(self, tag, n=1): self.ops += [tag] * n
    def after(self, tags):
        idx = [i for i, t in enumerate(self.ops) if t in tags]
        if not idx: return 63
        return min(63, len(self.ops) - 1 - max(idx))

def build():
    nstamp[0] = 0
    a = Asm()
    a(HEADER_COMMENT.rstrip())
    a("; @launch grid=(256,1,1) block=(256,1,1) lds=163840")
    a('.amdgcn_target "amdgcn-amd-amdhsa--gfx950"')
    a(kernel_start(KNAME).rstrip())
    fifo = Fifo()
    def emit(lst):
        for l in lst: a(l)
    a(f"""  s_cmp_ge_u32 s2, 256
  s_cbranch_scc1 L_done
  s_load_dwordx16 s[16:31], s[0:1], 0
  s_memrealtime s[{T0}:{T0+1}]
  s_getreg_b32 s{S_XCC}, hwreg(HW_REG_XCC_ID)
  v_lshrrev_b32 v1, 6, v0
  v_and_b32 v0, 63, v0
  s_and_b32 s{S_G}, s2, 7
  v_readfirstlane_b32 s{S_W}, v1
  s_lshr_b32 s{S_T32}, s2, 3
  s_lshr_b32 s{S_B}, s{S_T32}, 2
  s_and_b32 s{S_J}, s{S_T32}, 3
  s_and_b32 s{S_XCC}, s{S_XCC}, 7
  s_lshl_b32 s{S_BG}, s{S_B}, 3
  s_add_u32 s{S_BG}, s{S_BG}, s{S_G}
  v_lshlrev_b32 v{V_L16}, 4, v0
  v_lshlrev_b32 v{V_FL}, 2, v0
  s_lshl_b32 s{S_LW}, s{S_W}, 11
  v_lshrrev_b32 v2, 4, v0             ; l>>4
  v_and_b32 v3, 15, v0                ; l&15
  v_lshrrev_b32 v4, 3, v0             ; l>>3
  v_and_b32 v5, 7, v0                 ; l&7
  v_xor_b32 v6, v5, v2
  v_lshlrev_b32 v6, 4, v6
  v_lshl_add_u32 v{VXD}, v4, 10, v6
  v_add_u32 v7, 4, v2
  v_xor_b32 v6, v5, v7
  v_lshlrev_b32 v6, 4, v6
  v_lshl_add_u32 v{VXD+1}, v4, 10, v6
  v_lshlrev_b32 v6, 2, v2
  v_xor_b32 v6, v6, v3
  v_lshlrev_b32 v6, 4, v6
  v_lshl_add_u32 v{VWD}, v2, 13, v6
  v_lshlrev_b32 v8, 7, v5
  s_waitcnt lgkmcnt(0)""")
    if opt.stamps:
        a(f"  s_mov_b32 s{S_T}, s{T0}")
        a(f"  s_mov_b32 s{S_T+1}, s{T0+1}")
        nstamp[0] = 1
    a(f"  s_lshl_b32 s{T0+2}, s{S_T32}, 2")
    a(f"  s_add_u32 s{T0+2}, s{T0+2}, s{S_W}        ; id")
    srd(a, R_WQ, P_WQ, None, "0x400000")
    srd(a, R_X, P_X, None, "0x80000")
    if 'touch1' in opt.bench:
        a(f"  s_cmp_ge_u32 s{T0+2}, 64")
        a(f"  s_cbranch_scc1 L_touchx")
        a(f"  v_lshl_add_u32 v7, v4, 13, v8          ; (l>>3)*8192 + (l&7)*128")
        a(f"  s_lshl_b32 s{T0+3}, s{T0+2}, 16        ; 8*id*8192")
        a(f"  s_lshl_b32 s{T0+4}, s{S_G}, 10")
        a(f"  s_add_u32 s{T0+3}, s{T0+3}, s{T0+4}")
        a(f"  buffer_load_dword v{V_DUM}, v7, {R(R_WQ)}, s{T0+3} offen")
        a(f"  s_branch L_touchd")
        a(f"L_touchx:")
        a(f"  v_lshl_add_u32 v7, v4, 10, v8          ; (l>>3)*1024 + (l&7)*128")
        a(f"  s_sub_u32 s{T0+3}, s{T0+2}, 64")
        a(f"  s_lshl_b32 s{T0+3}, s{T0+3}, 13        ; 8*rows*1024")
        a(f"  buffer_load_dword v{V_DUM}, v7, {R(R_X)}, s{T0+3} offen")
        a(f"L_touchd:")
        fifo.push('T')
    srd(a, R_WS, P_WS, None, hex(WS_SIZE))
    srd(a, R_DBG, P_DBG, None, "0x100")
    a(f"  s_mov_b32 s{S_SPIN}, s{T0}")
    a(f"""  s_cmp_lg_u32 s2, 0
  s_cbranch_scc1 L_nononce
  s_cmp_lg_u32 s{S_W}, 0
  s_cbranch_scc1 L_nononce
  s_lshl_b32 s{T0+4}, s{S_SPIN}, 4
  s_or_b32 s{T0+4}, s{T0+4}, 0x80000000
  v_mov_b32 v6, s{T0+4}
  v_mov_b32 v7, 0
  s_mov_b64 exec, 1
  buffer_store_dword v6, v7, {R(R_DBG)}, 0 offen sc0 sc1
  s_mov_b64 exec, -1
L_nononce:""")
    a(f"  s_lshl_b32 s{T0+3}, s{S_B}, 16")
    srd(a, R_X, P_X, f"s{T0+3}", "0x10000")
    a(f"  s_lshl_b32 s{T0+3}, s{S_G}, 2")
    a(f"  s_add_u32 s{T0+3}, s{T0+3}, s{S_J}          ; h_own")
    a(f"  s_lshl_b32 s{T0+4}, s{T0+3}, 8")
    srd(a, R_WQ, P_WQ, f"s{T0+4}", "0x400000")
    a(f"  s_sub_u32 s{R_WQ+2}, s{R_WQ+2}, s{T0+4}")
    sXg, sXl, sWg, sWl, sO = T0+6, T0+7, T0+8, T0+9, T0+10
    a(f"  s_lshl_b32 s{sXg}, s{S_W}, 14")
    a(f"  s_lshl_b32 s{sWg}, s{S_W}, 17")
    a(f"  s_lshl_b32 s{sWl}, s{S_W}, 12")
    NCH = 4
    WSLOT = [L_K + 0x8000, L_K + 0xC000, L_V + 0x8000, L_V + 0xC000]
    XSLOT = [L_X + i*0x2000 for i in range(4)]
    sROT, sWc, sXc = T0+11, T0+12, T0+7
    a(f"  s_lshl_b32 s{sROT}, s{S_J}, 1")
    a(f"  s_add_u32 s{sROT}, s{sROT}, s{S_B}")
    def chunk_ops(c):
        slot = c % NCH
        out = [f"  s_add_u32 s{sWc}, s{sROT}, {c}",
               f"  s_and_b32 s{sWc}, s{sWc}, 7",
               f"  s_lshl_b32 s{sXc}, s{sWc}, 7",
               f"  s_add_u32 s{sXc}, s{sXc}, s{sXg}",
               f"  s_lshl_b32 s{sWc}, s{sWc}, 19",
               f"  s_add_u32 s{sWc}, s{sWc}, s{sWg}"]
        for ii in range(4):
            out.append(f"  s_add_u32 m0, s{sWl}, {WSLOT[slot] + ii*1024}")
            out.append(f"  s_add_u32 s{sO}, s{sWc}, {ii*32768}")
            out.append(f"  buffer_load_dwordx4 v{VWD}, {R(R_WQ)}, s{sO} offen lds")
        for ii in range(2):
            out.append(f"  s_add_u32 m0, s{S_LW}, {XSLOT[slot] + ii*1024}")
            out.append(f"  s_add_u32 s{sO}, s{sXc}, {ii*8192}")
            out.append(f"  buffer_load_dwordx4 v{VXD+ii}, {R(R_X)}, s{sO} offen lds")
        fifo.push(('C', c), 6)
        return out
    def issue_chunk(c):
        emit(chunk_ops(c))
    issue_chunk(0)
    a(f"  s_lshl_b32 s{T0}, s{S_B}, 5")
    a(f"  s_lshl_b32 s{T0+1}, s{S_G}, 2")
    a(f"  s_add_u32 s{T0}, s{T0}, s{T0+1}")
    a(f"  s_add_u32 s{T0+1}, s{T0}, s{S_J}")
    a(f"  s_lshl_b32 s{T0+1}, s{T0+1}, 14")
    a(f"  s_add_u32 s{T0+1}, s{T0+1}, s{S_LW}")
    VMBT = 233
    a(f"""  v_bfe_u32 v4, v0, 4, 1
  v_bfe_u32 v5, v0, 3, 1
  v_and_b32 v6, 7, v0
  v_lshlrev_b32 v4, 13, v4
  v_lshl_add_u32 v4, v5, 10, v4
  v_lshl_add_u32 v{VMBT}, v6, 7, v4        ; qt*8192 + s*1024 + u*128""")
    issue_chunk(1)
    a(f"  s_lshl_b32 s{T0+2}, s{S_W}, 2")
    tr_addr(a, VWA, f"s{T0+2}", True, 'nat', 4, base=L_K + 0x8000)
    a(f"  v_add_u32 v{VWA+1}, 0x10000, v{VWA}")
    a("""  v_and_b32 v6, 31, v0
  v_lshrrev_b32 v7, 5, v0
  v_bfe_u32 v8, v0, 1, 3""")
    for ks in range(4):
        a(f"  v_add_u32 v1, {2*ks}, v7")
        a(f"  v_xor_b32 v1, v1, v8")
        a(f"  v_lshlrev_b32 v1, 4, v1")
        a(f"  v_lshl_add_u32 v{VXA+ks}, v6, 7, v1")
        a(f"  v_add_u32 v{VXA+ks}, {hex(L_X)}, v{VXA+ks}")
    issue_chunk(2)
    a(f"  s_lshl_b32 s{T0+3}, s{S_BG}, 19")
    a(f"  s_lshl_b32 s{T0+4}, s{S_J}, 17")
    a(f"  s_add_u32 s{T0+3}, s{T0+3}, s{T0+4}")
    srd(a, R_K, P_K, f"s{T0+3}", "0x20000")
    srd(a, R_V, P_V, f"s{T0+3}", "0x20000")
    a(f"  s_lshl_b32 s{T0+2}, s{S_W}, 3")
    for i in range(2):
        a(f"  v_add_u32 v4, s{T0+2}, v2")
        a(f"  v_add_u32 v5, {4*i}, v4")
        a(f"  v_and_b32 v5, 15, v5")
        a(f"  v_xor_b32 v5, v5, v3")
        a(f"  v_lshlrev_b32 v5, 4, v5")
        a(f"  v_lshl_add_u32 v{VKD+i}, v4, 8, v5")
    a(f"  v_lshlrev_b32 v5, 2, v2")
    a(f"  v_xor_b32 v5, v5, v3")
    a(f"  v_lshlrev_b32 v5, 4, v5")
    a(f"  v_lshl_add_u32 v{VVD}, v4, 8, v5")
    a(f"  v_lshl_add_u32 v{VWOD}, v4, 10, v5")
    RKN = RVN = 8
    def dmaK(i):
        out = [f"  s_add_u32 m0, s{S_LW}, {L_K+(i%RKN)*8192}", f"  s_mov_b32 s{S_TILE}, {i*8192}"]
        for ii in range(2):
            out.append(f"  buffer_load_dwordx4 v{VKD+ii}, {R(R_K)}, s{S_TILE} offen offset:{ii*1024}{opt.nt} lds")
        fifo.push(('K', i), 2)
        if 'nodma' in opt.bench and i >= 8: return []
        return out
    def dmaV(i):
        out = [f"  s_add_u32 m0, s{S_LW}, {L_V+(i%RVN)*8192}", f"  s_mov_b32 s{S_TILE}, {i*8192}"]
        for ii in range(2):
            out.append(f"  buffer_load_dwordx4 v{VVD}, {R(R_V)}, s{S_TILE} offen offset:{ii*1024}{opt.nt} lds")
        fifo.push(('V', i), 2)
        if 'nodma' in opt.bench and i >= 8: return []
        return out
    if 'nowarm' not in opt.bench:
        a(f"  v_mov_b32 v5, 0")
        a(f"  s_add_u32 s{T0+2}, s{T0+1}, {WS_QF}")
        a(f"  buffer_load_dword v{V_DUM}, v{VMBT}, {R(R_WS)}, s{T0+2} offen")
        a(f"  s_lshl_b32 s{T0+2}, s{S_BG}, 7")
        a(f"  s_add_u32 s{T0+3}, s{T0+2}, {FQ_OFF}")
        a(f"  buffer_load_dword v{V_DUM}, v5, {R(R_WS)}, s{T0+3} offen")
        a(f"  buffer_load_dword v{V_DUM}, v5, {R(R_K)}, 0 offen")
        a(f"  buffer_load_dword v{V_DUM}, v5, {R(R_V)}, 0 offen")
        fifo.push('T', 4)
    AF, BF, ACC = 32, 64, 128
    def reads(kc):
        out = []
        slot = kc % NCH; buf = kc & 1
        wo = WSLOT[slot] - (L_K + 0x8000)
        for ks in range(4):
            for rd in range(2):
                off = wo + ks*4096 + rd*1024
                out.append(f"  ds_read_b64_tr_b16 {vr(AF+buf*16+ks*4+rd*2,2)}, v{VWA+(off>>16)} offset:{off & 65535}")
            for qt in range(2):
                out.append(f"  ds_read_b128 {vr(BF+buf*32+ks*8+qt*4,4)}, v{VXA+ks} offset:{slot*8192+qt*4096}")
        return out
    if 'p1st' in opt.bench: stamp(a, "before C0 wait")
    a(f"  s_waitcnt vmcnt({fifo.after([('C',0)])})")
    a("  s_barrier")
    if 'p1st' in opt.bench: stamp(a, "C0 landed")
    emit(reads(0))
    kvpro = list(opt.kvpro)
    for c in range(8):
        if c + 1 < 8:
            a(f"  s_waitcnt vmcnt({fifo.after([('C',c+1)])}) lgkmcnt(0)")
            a("  s_barrier")
            if 'p1st' in opt.bench: stamp(a, f"C{c+1} landed")
            if c == 3:
                Ln = newlabel("nonce"); Lnx = newlabel("noncex"); Lnc = newlabel("noncechk")
                a(f"  s_mov_b32 s{S_SPIN}, {opt.timeout}")
                a(f"  s_branch {Lnc}")
                a(f"{Ln}:")
                a(f"  buffer_load_dword v8, v5, {R(R_DBG)}, 0 offen sc1")
                a(f"  s_sub_u32 s{S_SPIN}, s{S_SPIN}, 1")
                a(f"  s_cbranch_scc1 {Lnx}")
                a(f"  s_waitcnt vmcnt(0)")
                a(f"{Lnc}:")
                a(f"  v_readfirstlane_b32 s{S_N}, v8")
                a(f"  s_nop 3")
                a(f"  s_cmp_eq_u32 s{S_N}, 0")
                a(f"  s_cbranch_scc1 {Ln}")
                a(f"{Lnx}:")
                Lw = newlabel("hw"); Lwd = newlabel("hwd")
                a(f"  s_lshl_b32 s{T0+2}, s{S_BG}, 7")
                a(f"  s_lshl_b32 s{T0+3}, s{S_J}, 2")
                a(f"  s_add_u32 s{T0+2}, s{T0+2}, s{T0+3}")
                a(f"  s_add_u32 s{T0+2}, s{T0+2}, {HL_OFF}")
                a(f"  s_cmp_lg_u32 s{S_W}, 0")
                a(f"  s_cbranch_scc1 {Lw}")
                a(f"  s_or_b32 s{T0+3}, s{S_N}, s{S_XCC}")
                a(f"  v_mov_b32 v8, s{T0+3}")
                a(f"  s_mov_b64 exec, 1")
                a(f"  buffer_store_dword v8, v5, {R(R_WS)}, s{T0+2} offen sc0 sc1")
                a(f"  s_mov_b64 exec, -1")
                a(f"  s_branch {Lwd}")
                a(f"{Lw}:")
                a(f"  buffer_load_dword v{V_DUM}, v5, {R(R_DBG)}, 0 offen")
                a(f"{Lwd}:")
                fifo.push('H')
        else:
            a("  s_waitcnt lgkmcnt(0)")
        fill = []
        if c + 1 < 8: fill += reads(c + 1)
        dm = []
        if c + 3 < 8: dm += chunk_ops(c + 3)
        for (cc, kind, i) in kvpro:
            if cc == c: dm += (dmaK(i) if kind == 'K' else dmaV(i))
        if c == 0:
            dm += [f"  v_mov_b32 v5, 0", f"  buffer_load_dword v8, v5, {R(R_DBG)}, 0 offen sc1"]
            fifo.push('NL')
        if c == 6:
            dm += [f"  s_lshl_b32 s{T0+2}, s{S_BG}, 7", f"  s_add_u32 s{T0+2}, s{T0+2}, {HL_OFF}",
                   f"  buffer_load_dwordx4 v[4:7], v5, {R(R_WS)}, s{T0+2} offen sc1"]
            fifo.push('HL')
        buf = c & 1
        mf = []
        for ks in range(4):
            for qt in range(2):
                cc_ = vr(ACC+16*qt,16) if (c or ks) else "0"
                mf.append(f"  v_mfma_f32_32x32x16_bf16 {vr(ACC+16*qt,16)}, {vr(AF+buf*16+ks*4,4)}, {vr(BF+buf*32+ks*8+qt*4,4)}, {cc_}")
        allf = fill + dm
        n = len(mf)
        for i_, m_ in enumerate(mf):
            a(m_)
            lo = len(allf)*i_//n; hi = len(allf)*(i_+1)//n
            emit(allf[lo:hi])
    Lh = newlabel("hello"); Lhx = newlabel("hellox"); Lh2 = newlabel("hellochk")
    a(f"  s_mov_b32 s{S_SPIN}, {opt.timeout}")
    a(f"  s_waitcnt vmcnt({fifo.after(['HL'])})")
    a(f"  s_branch {Lh2}")
    a(f"{Lh}:")
    a(f"  buffer_load_dwordx4 v[4:7], v5x, {R(R_WS)}, s{T0+2} offen sc1".replace("v5x", "v1"))
    a(f"  s_sub_u32 s{S_SPIN}, s{S_SPIN}, 1")
    a(f"  s_cbranch_scc1 {Lhx}")
    a(f"  s_waitcnt vmcnt(0)")
    a(f"{Lh2}:")
    a(f"  v_mov_b32 v1, 0")
    a(f"  v_xor_b32 v4, s{S_N}, v4")
    a(f"  v_xor_b32 v5, s{S_N}, v5")
    a(f"  v_xor_b32 v6, s{S_N}, v6")
    a(f"  v_xor_b32 v7, s{S_N}, v7")
    a(f"  v_or_b32 v8, v4, v5")
    a(f"  v_or3_b32 v8, v8, v6, v7")
    a(f"  s_nop 0")
    a(f"  v_readfirstlane_b32 s{T0+3}, v8")
    a(f"  s_nop 3")
    a(f"  s_cmp_gt_u32 s{T0+3}, 7")
    a(f"  s_cbranch_scc1 {Lh}")
    a(f"{Lhx}:")
    a(f"  v_xor_b32 v4, s{S_XCC}, v4")
    a(f"  v_xor_b32 v5, s{S_XCC}, v5")
    a(f"  v_xor_b32 v6, s{S_XCC}, v6")
    a(f"  v_xor_b32 v7, s{S_XCC}, v7")
    a(f"  v_or_b32 v8, v4, v5")
    a(f"  v_or3_b32 v8, v8, v6, v7")
    a(f"  s_nop 0")
    a(f"  v_readfirstlane_b32 s{T0+3}, v8")
    a(f"  s_nop 3")
    a(f"  s_cmp_eq_u32 s{T0+3}, 0")
    a(f"  s_cselect_b32 s{S_LOC}, 1, 0")
    if opt.force_global:
        a(f"  s_mov_b32 s{S_LOC}, 0")
    a(f"  s_mov_b32 s{sO}, {f32hex(SCALE)}")
    for i in range(32):
        a(f"  v_mul_f32 v{ACC+i}, s{sO}, v{ACC+i}")
    for qt in range(2):
        for s in range(2):
            for p in range(4):
                r = ACC + 16*qt + 8*s + 2*p
                a(f"  v_cvt_pk_bf16_f32 v{32+qt*8+s*4+p}, v{r}, v{r+1}")
    if 'p2st' not in opt.bench and 'tailst' not in opt.bench: stamp(a, "P1 done")
    if 'p1st' in opt.bench:
        stamp_flush(a); a("L_done:"); a("  s_endpgm"); a(kernel_desc(KNAME, 512, 102, 256)); return a.text()
    def qst(fl):
        for qt in range(2):
            for s in range(2):
                a(f"  s_add_u32 s{T0+2}, s{T0+1}, {WS_QF + qt*8192+s*1024}")
                a(f"  buffer_store_dwordx4 {vr(32+qt*8+s*4,4)}, v{V_L16}, {R(R_WS)}, s{T0+2} offen{fl}")
    dual(a, qst)
    fifo.push('QS', 4)
    for kind, i in opt.kvmid:
        emit(dmaK(i) if kind == 'K' else dmaV(i))
    a("""  v_and_b32 v4, 31, v0
  v_lshrrev_b32 v5, 5, v0
  v_and_b32 v6, 15, v0""")
    for ks in range(8):
        a(f"  v_add_u32 v7, {2*ks}, v5")
        a(f"  v_xor_b32 v7, v7, v6")
        a(f"  v_lshlrev_b32 v7, 4, v7")
        a(f"  v_lshl_add_u32 v{VKA+ks}, v4, 8, v7")
    a(f"  s_lshl_b32 s{T0+2}, s{S_BG}, 7")
    a(f"  s_lshl_b32 s{T0+3}, s{S_J}, 4")
    a(f"  s_add_u32 s{T0+3}, s{T0+3}, s{T0+2}")
    a(f"  s_lshl_b32 s{T0+4}, s{S_W}, 2")
    a(f"  s_add_u32 s{T0+3}, s{T0+3}, s{T0+4}")
    a(f"  s_add_u32 s{T0+3}, s{T0+3}, {FQ_OFF}")
    a(f"  s_waitcnt vmcnt({fifo.after(['QS'])})")
    set_flag(a, f"s{T0+3}")
    if 'p2st' not in opt.bench and 'tailst' not in opt.bench: stamp(a, "Q published")
    for t in range(4):
        tr_addr(a, VVA+t, t, False, 'pv', 4, base=L_V)
    a(f"  s_lshl_b32 s{T0+3}, s{S_W}, 4")
    a(f"  s_add_u32 s{T0+3}, s{T0+3}, s{T0+2}")
    a(f"  s_add_u32 s{T0+3}, s{T0+3}, {FQ_OFF}")
    a(f"  s_lshl_b32 s{T0+4}, s{S_G}, 19")
    a(f"  s_lshl_b32 s{T0+5}, s{S_J}, 8")
    a(f"  s_add_u32 s{T0+4}, s{T0+4}, s{T0+5}")
    srd(a, R_WO, P_WO, f"s{T0+4}", "0x400000")
    a(f"  s_sub_u32 s{R_WO+2}, s{R_WO+2}, s{T0+4}")
    sWOp = T0+6
    for p in range(4):
        a(f"  s_add_u32 s{sWOp+p}, s{S_J}, {p}")
        a(f"  s_and_b32 s{sWOp+p}, s{sWOp+p}, 3")
        a(f"  s_lshl_b32 s{sWOp+p}, s{sWOp+p}, 17")
    sMB, sML = T0+13, T0+14
    a(f"  s_lshl_b32 s{sMB}, s{S_BG}, 2")
    a(f"  s_add_u32 s{sMB}, s{sMB}, s{S_W}")
    a(f"  s_lshl_b32 s{sMB}, s{sMB}, 2")
    a(f"  s_add_u32 s{sMB}, s{sMB}, s{S_J}        ; (bg*4+w)*4+j")
    a(f"  s_lshl_b32 s{sML}, s{sMB}, 9")
    a(f"  s_add_u32 s{sML}, s{sML}, {WS_ML}")
    a(f"  s_lshl_b32 s{sMB}, s{sMB}, 14")
    a(f"  s_add_u32 s{sMB}, s{sMB}, {WS_MB}")
    sMODE = T0+12
    a(f"  s_xor_b32 s{sMODE}, s{S_LOC}, 1")
    a(f"  s_cmp_eq_u32 s{S_W}, s{S_J}")
    a(f"  s_cselect_b32 s{sMODE}, 2, s{sMODE}")
    VT4, VT16, VWT = 235, 236, 234
    a(f"  v_and_b32 v{VT4}, 3, v0")
    a(f"  v_lshlrev_b32 v{VT4}, 7, v{VT4}         ; (lane&3)*128")
    a(f"  v_and_b32 v{VT16}, 15, v0")
    a(f"  s_cselect_b32 s{S_TILE}, 0, 128")
    a(f"  v_mul_u32_u24 v{VT16}, s{S_TILE}, v{VT16}")
    a(f"  v_bfe_u32 v4, v0, 3, 2")
    a(f"  v_and_b32 v5, 7, v0")
    a(f"  v_lshlrev_b32 v5, 7, v5")
    a(f"  v_lshl_add_u32 v{VWT}, v4, 10, v5")
    sOFp = T0+11
    a(f"  s_lshl_b32 s{sOFp}, s{S_B}, 5")
    a(f"  s_lshl_b32 s{S_TILE}, s{S_G}, 2")
    a(f"  s_add_u32 s{sOFp}, s{sOFp}, s{S_TILE}")
    a(f"  s_add_u32 s{sOFp}, s{sOFp}, s{S_J}")
    a(f"  s_lshl_b32 s{sOFp}, s{sOFp}, 14")
    a(f"  s_add_u32 s{sOFp}, s{sOFp}, s{S_LW}")
    a(f"  s_add_u32 s{sOFp}, s{sOFp}, {WS_OF}")
    poll(a, f"s{T0+3}", 4)
    fifo.ops = []
    a(f"  s_add_u32 s{T0+1}, s{T0}, s{S_W}")
    a(f"  s_lshl_b32 s{T0+1}, s{T0+1}, 14")
    for qt in range(2):
        for ks in range(8):
            off = qt*8192 + ks*1024
            if (off & 4095) == 0:
                a(f"  s_add_u32 s{T0+2}, s{T0+1}, {WS_QF + off}")
            a(f"  buffer_load_dwordx4 {ar(AQ+qt*32+ks*4,4)}, v{V_L16}, {R(R_WS)}, s{T0+2} offen offset:{off & 4095} sc1")
    fifo.push('Q', 16)
    a("  s_barrier")
    for l in [f"  ds_read_b128 {ar(AK+ks*4,4)}, v{VKA+ks} offset:{L_K}" for ks in range(8)]: a(l)
    for kind, i in opt.kvpost:
        emit(dmaK(i) if kind == 'K' else dmaV(i))
    NSTEP = 16
    def readK(i):
        if 'nolds' in opt.bench and i > 1: return []
        return [f"  ds_read_b128 {ar(AK+ks*4,4)}, v{VKA+ks} offset:{L_K+(i%RKN)*8192}" for ks in range(8)]
    def readV(i):
        out = []
        for s in range(2):
            for t in range(4):
                for rd in range(2):
                    out.append(f"  ds_read_b64_tr_b16 {ar(AV+(t*2+s)*4+rd*2,2)}, v{VVA+t} offset:{(i%RVN)*8192+s*4096+rd*2048}")
        return out
    def qk(i, first=False):
        buf = i & 1; out = []
        for qt in range(2):
            for ks in range(8):
                d = vr(VS+buf*32+qt*16, 16)
                c = d if ks > 0 else ("0" if first else vr(VN+qt*16, 16))
                out.append(f"  v_mfma_f32_32x32x16_bf16 {d}, {ar(AK+ks*4,4)}, {ar(AQ+qt*32+ks*4,4)}, {c}")
        return out
    def pv(i):
        buf = i & 1; out = []
        for qt in range(2):
            for s in range(2):
                for t in range(4):
                    d = Oreg(t, qt)
                    c = "0" if (i == 0 and s == 0) else d
                    out.append(f"  v_mfma_f32_32x32x16_bf16 {d}, {ar(AV+(t*2+s)*4,4)}, {vr(VP+buf*16+qt*8+s*4,4)}, {c}")
        return out
    def sm(i, qt):
        buf = i & 1
        r0 = VS+buf*32+qt*16
        groups = []
        for k in range(17):
            g = []
            if k < 16: g.append(f"  v_exp_f32 v{r0+k}, v{r0+k}")
            if k >= 1: g.append(f"  v_add_f32 v{VL+qt}, v{VL+qt}, v{r0+k-1}")
            if k >= 2 and k % 2 == 0:
                p = k//2 - 1
                g.append(f"  v_cvt_pk_bf16_f32 v{VP+buf*16+qt*8+p}, v{r0+2*p}, v{r0+2*p+1}")
            groups.append(g)
        return groups
    def block(mfmas, groups, extra, pre=None, extra_start=0):
        n = len(mfmas)
        for i, mf in enumerate(mfmas):
            a(mf)
            if pre and i in pre:
                for l in pre[i]: a(l)
            if groups:
                for l in groups[i]: a(l)
            if i >= extra_start and extra:
                span = n - extra_start
                lo = (len(extra) * (i - extra_start)) // span
                hi = (len(extra) * (i - extra_start + 1)) // span
                for l in extra[lo:hi]: a(l)
        if groups:
            for l in groups[16]: a(l)
    WOLOC = [L_X + u*8192 for u in range(4)] + [L_K + s_*8192 for s_ in range(8)] + [L_V + s_*8192 for s_ in range(4)]
    avail = {u: 0 for u in range(4)}
    for s_ in range(8): avail[4+s_] = 7+s_
    for s_ in range(4): avail[12+s_] = 9+s_
    wo_at = {}
    for u, it in zip(range(16), opt.wosched):
        assert it >= avail[u], (u, it)
        wo_at.setdefault(it, []).append(u)
    sWOp = T0+6
    sMB, sML = T0+13, T0+14
    sMODE = T0+12
    VT4, VT16, VWT = 235, 236, 234
    sOFp = T0+11
    def dmaWO(u):
        out = []
        for ii in range(2):
            out.append(f"  s_add_u32 m0, s{S_LW}, {WOLOC[u] + ii*1024}")
            out.append(f"  s_add_u32 s{S_TILE}, s{sWOp+(u>>2)}, {(u&3)*32768 + ii*4096}")
            out.append(f"  buffer_load_dwordx4 v{VWOD}, {R(R_WO)}, s{S_TILE} offen lds")
        fifo.push(('W', u), 2)
        return out
    tl = {}
    def addt(it, g): tl.setdefault(it, []).append(g)
    if 'nowot' not in opt.bench:
        addt(opt.wotouch, [f"  s_lshl_b32 s{S_TILE}, s{S_T32}, 2", f"  s_add_u32 s{S_TILE}, s{S_TILE}, s{S_W}", f"  s_lshl_b32 s{S_TILE}, s{S_TILE}, 12",
                           f"  buffer_load_dword v{V_DUM}, v{VWT}, {R(R_WO)}, s{S_TILE} offen"])
    if 'notouch2' not in opt.bench:
        for n in range(8):
            addt(opt.mbtouch[n * len(opt.mbtouch) // 8], [f"  s_add_u32 s{S_TILE}, s{sMB}, {n*2048}", f"  buffer_load_dword v{V_DUM}, v{VT16}, {R(R_WS)}, s{S_TILE} offen"])
        addt(opt.fltouch, [f"  buffer_load_dword v{V_DUM}, v{VT4}, {R(R_WS)}, s{sML} offen"])
        addt(opt.fltouch, [f"  s_lshl_b32 s{S_TILE}, s{S_BG}, 9", f"  s_add_u32 s{S_TILE}, s{S_TILE}, {F1_OFF}",
                   f"  buffer_load_dword v{V_DUM}, v{VT4}, {R(R_WS)}, s{S_TILE} offen"])
        addt(opt.fltouch, [f"  s_lshl_b32 s{S_TILE}, s{S_BG}, 7", f"  s_add_u32 s{S_TILE}, s{S_TILE}, {F2_OFF}",
                   f"  buffer_load_dword v{V_DUM}, v{V_FL}, {R(R_WS)}, s{S_TILE} offen"])
        if opt.oftouch >= 0:
            addt(opt.oftouch, [f"  buffer_load_dword v{V_DUM}, v{VMBT}, {R(R_WS)}, s{sOFp} offen"])
    def touches(i):
        out = []
        for g in tl.get(i, []):
            out += g; fifo.push('T')
        return out
    if 'tailst' not in opt.bench: stamp(a, "P2 start")
    if 'p2st' in opt.bench: a("  s_memtime s[14:15]")
    a(f"  s_waitcnt vmcnt({fifo.after(['Q'])}) lgkmcnt(0)")
    emit(qk(0, True))
    emit(readK(1))
    a("  s_nop 7")
    for qt in range(2):
        r = VS + qt*16
        a(f"  v_max3_f32 v{VM+qt}, v{r}, v{r+1}, v{r+2}")
        for k in range(3, 15, 2):
            a(f"  v_max3_f32 v{VM+qt}, v{VM+qt}, v{r+k}, v{r+k+1}")
        a(f"  v_max_f32 v{VM+qt}, v{VM+qt}, v{r+15}")
        a(f"  v_mov_b32 v4, v{VM+qt}")
        a("  s_nop 1")
        a(f"  v_permlane32_swap_b32 v{VM+qt}, v4")
        a("  s_nop 1")
        a(f"  v_max_f32 v{VM+qt}, v{VM+qt}, v4")
        for k in range(16):
            a(f"  v_sub_f32 v{VN+qt*16+k}, 0, v{VM+qt}")
        for k in range(16):
            a(f"  v_sub_f32 v{r+k}, v{r+k}, v{VM+qt}")
    a(f"  v_mov_b32 v{VL}, 0")
    a(f"  v_mov_b32 v{VL+1}, 0")
    for g in sm(0, 0): emit(g)
    allpro = [(k_, i_) for (_, k_, i_) in opt.kvpro] + list(opt.kvmid) + list(opt.kvpost)
    nextK = [1 + max(i_ for k_, i_ in allpro if k_ == 'K')]
    nextV = [1 + max(i_ for k_, i_ in allpro if k_ == 'V')]
    for i in range(NSTEP):
        need = [('V', i)] + ([('K', i+2)] if i+2 < NSTEP else [])
        sync = [f"  s_waitcnt vmcnt({fifo.after(need)}) lgkmcnt(0)", "  s_barrier"]
        dma = []
        cand = []
        if nextK[0] < NSTEP and nextK[0] - RKN <= i + 1: pass
        cnt = 0
        MAXI = opt.maxi[min(i, len(opt.maxi)-1)]
        while cnt < MAXI:
            kfree = nextK[0] < NSTEP and (nextK[0] < RKN or nextK[0] - RKN <= i + 1)
            vfree = nextV[0] < NSTEP and (nextV[0] < RVN or nextV[0] - RVN <= i - 1)
            if not kfree and not vfree: break
            if kfree and (not vfree or nextK[0] - 2 <= nextV[0]):
                dma += dmaK(nextK[0]); nextK[0] += 1
            else:
                dma += dmaV(nextV[0]); nextV[0] += 1
            cnt += 1
        if 'nowo' not in opt.bench:
            for u in wo_at.get(i, []): dma += dmaWO(u)
        dma += touches(i)
        if i + 1 < NSTEP:
            a("  s_waitcnt lgkmcnt(0)")
            block(qk(i+1), sm(i, 1), readV(i), pre={0: sync}, extra_start=1)
            a("  s_waitcnt lgkmcnt(0)")
            extra = dma + (readK(i+2) if i+2 < NSTEP else [])
            block(pv(i), sm(i+1, 0), extra, extra_start=0)
        else:
            last_dma = dma
            last_sync = sync
        if 'p2st' in opt.bench and i in (0, 2, 4, 6, 8, 11, 13): stamp(a, f"it{i} done")
    VPK = 32
    OWN = L_V + 5*8192
    VOWN = 8
    def put(regs_off, n_list, qt):
        Lg = newlabel("pg"); Ll = newlabel("pl"); Le = newlabel("pe")
        out = [f"  s_cmp_eq_u32 s{sMODE}, 1", f"  s_cbranch_scc1 {Lg}", f"  s_cmp_eq_u32 s{sMODE}, 2", f"  s_cbranch_scc1 {Ll}"]
        def st(fl):
            o = []
            for n in n_list:
                off = qt*8192 + n*1024
                o.append(f"  s_add_u32 s{T0+4}, s{sMB}, {off}")
                o.append(f"  buffer_store_dwordx4 {vr(regs_off+n*4,4)}, v{V_L16}, {R(R_WS)}, s{T0+4} offen{fl}")
            return o
        out += st("") + [f"  s_branch {Le}", f"{Lg}:"] + st(" sc0 sc1") + [f"  s_branch {Le}", f"{Ll}:"]
        for n in n_list:
            out.append(f"  ds_write_b128 v{VOWN}, {vr(regs_off+n*4,4)} offset:{qt*8192+n*1024}")
        out.append(f"{Le}:")
        return out
    def cvt0(t):
        return [f"  v_cvt_pk_bf16_f32 v{VPK+(t*2+s)*4+p}, v{VO0+t*16+s*8+2*p}, v{VO0+t*16+s*8+2*p+1}" for s in range(2) for p in range(4)]
    def cvt1(t):
        o = [f"  v_accvgpr_read_b32 v{96+k}, a{AO1+t*16+k}" for k in range(16)]
        o += [f"  v_cvt_pk_bf16_f32 v{VPK+32+(t*2+s)*4+p}, v{96+s*8+2*p}, v{96+s*8+2*p+1}" for s in range(2) for p in range(4)]
        return o
    i = NSTEP - 1
    emit(last_sync)
    emit(readV(i))
    a(f"  v_add_u32 v{VOWN}, {hex(OWN)}, v{V_L16}")
    G = sm(i, 1)
    for g in G[:5]: emit(g)
    emit(last_dma)
    a("  s_waitcnt lgkmcnt(0)")
    pvl = pv(i)
    rest = [x for g in G[5:] for x in g]
    for n_, m_ in enumerate(pvl[:8]):
        a(m_)
        emit(rest[len(rest)*n_//8: len(rest)*(n_+1)//8])
    early = 'noearly' not in opt.bench
    for n_, m_ in enumerate(pvl[8:]):
        a(m_)
        if early and 2 <= n_ < 6:
            t = n_ - 2
            emit(cvt0(t))
            a("  s_nop 0")
            emit(put(VPK, [2*t, 2*t+1], 0))
    stamp(a, "P2 done")
    if 'p2st' in opt.bench:
        a(f"  s_memtime s[{T0}:{T0+1}]")
        a("  s_waitcnt lgkmcnt(0)")
        k = nstamp[0]; nstamp[0] += 1
        a(f"  s_sub_u32 s{T0}, s{T0}, s14")
        a(f"  s_mul_i32 s{T0}, s{T0}, 100")
        a(f"  s_add_u32 s{S_T+2*k}, s{S_T}, s{T0}")
        a(f"  s_addc_u32 s{S_T+2*k+1}, s{S_T+1}, 0")
    if 'p2exit' in opt.bench:
        stamp_flush(a); a("L_done:"); a("  s_endpgm"); a(kernel_desc(KNAME, 512, 102, 256)); return a.text()
    def lreduce():
        for qt in range(2):
            a(f"  v_mov_b32 v4, v{VL+qt}")
            a("  s_nop 1")
            a(f"  v_permlane32_swap_b32 v{VL+qt}, v4")
            a("  s_nop 1")
            a(f"  v_add_f32 v{VL+qt}, v{VL+qt}, v4")
    lreduce()
    a(f"  v_max_f32 v4, v{VL}, v{VL+1}")
    a(f"  v_add_f32 v5, v{VL}, v{VL+1}")
    a(f"  s_mov_b32 s{T0}, {f32hex(2.0**24)}")
    a(f"  v_cmp_nge_f32 vcc, s{T0}, v4        ; !(2^24 >= max(l0,l1))")
    a(f"  v_cmp_u_f32 s[{T0+2}:{T0+3}], v5, v5")
    a("  s_nop 4")
    a(f"  s_or_b64 vcc, vcc, s[{T0+2}:{T0+3}]")
    a(f"  s_cselect_b32 s{T0+1}, 1, 0")
    if opt.force_safe:
        a(f"  s_mov_b32 s{T0+1}, 1")
    VOTE = L_V + 4*8192
    a(f"  v_mov_b32 v4, s{T0+1}")
    a(f"  s_lshl_b32 s{T0+2}, s{S_W}, 2")
    a(f"  v_mov_b32 v5, s{T0+2}")
    a(f"  v_add_u32 v5, {hex(VOTE)}, v5")
    a(f"  ds_write_b32 v5, v4")
    def publish_rest(with_q0):
        if with_q0:
            for t in range(4): emit(cvt0(t))
            a("  s_nop 0")
            emit(put(VPK, list(range(8)), 0))
        for t in range(4):
            emit(cvt1(t))
            a("  s_nop 0")
            emit(put(VPK+32, [2*t, 2*t+1], 1))
        a(f"  v_mov_b32 v4, v{VM}")
        a(f"  v_mov_b32 v5, v{VL}")
        a(f"  v_mov_b32 v6, v{VM+1}")
        a(f"  v_mov_b32 v7, v{VL+1}")
        def mlst(fl):
            a(f"  s_mov_b32 exec_hi, 0")
            a(f"  buffer_store_dwordx4 v[4:7], v{V_L16}, {R(R_WS)}, s{sML} offen{fl}")
            a(f"  s_mov_b32 exec_hi, -1")
        dual(a, mlst)
    a("  s_waitcnt lgkmcnt(0)")
    a("  s_barrier")
    a(f"  v_mov_b32 v1, {hex(VOTE)}")
    a(f"  ds_read_b128 v[240:243], v1")
    publish_rest(not early)
    a(f"  s_lshl_b32 s{T0+2}, s{S_BG}, 9")
    a(f"  s_lshl_b32 s{T0+3}, s{S_W}, 7")
    a(f"  s_add_u32 s{T0+3}, s{T0+3}, s{T0+2}")
    a(f"  s_lshl_b32 s{T0+4}, s{S_J}, 2")
    a(f"  s_add_u32 s{T0+3}, s{T0+3}, s{T0+4}")
    a(f"  s_add_u32 s{T0+3}, s{T0+3}, {F1_OFF}")
    a("  s_waitcnt lgkmcnt(0)")
    a("  v_or_b32 v240, v240, v241")
    a("  v_or3_b32 v240, v240, v242, v243")
    a("  s_nop 0")
    a(f"  v_readfirstlane_b32 s{T0+1}, v240")
    a("  s_nop 3")
    a(f"  s_cmp_lg_u32 s{T0+1}, 0")
    a(f"  s_cbranch_scc1 L_safe")
    a("L_safe_back:")
    a("  s_waitcnt vmcnt(0) lgkmcnt(0)")
    set_flag(a, f"s{T0+3}")
    if 'tailst' not in opt.bench: stamp(a, "H1 published")
    a("  s_barrier")
    VPA, VML, VAC = 32, 128, 96
    a(f"  s_lshl_b32 s{T0+4}, s{S_W}, 11")
    a(f"  v_add_u32 v8, s{T0+4}, v{V_L16}")
    a(f"  v_add_u32 v8, {hex(OWN)}, v8")
    a(f"  s_lshl_b32 s{T0+3}, s{S_J}, 7")
    a(f"  s_add_u32 s{T0+3}, s{T0+3}, s{T0+2}")
    a(f"  s_add_u32 s{T0+3}, s{T0+3}, {F1_OFF}")
    for qt in range(2):
        for s in range(2):
            a(f"  ds_read_b128 {vr(208+(qt*2+s)*4,4)}, v8 offset:{qt*8192+s*1024}")
    a(f"  s_lshl_b32 s{T0}, s{S_BG}, 2")
    a(f"  s_add_u32 s{T0}, s{T0}, s{S_J}")
    a(f"  s_lshl_b32 s{T0}, s{T0}, 2             ; (bg*4+j)*4")
    a(f"  s_lshl_b32 s{T0+1}, s{T0}, 14")
    a(f"  s_add_u32 s{T0+1}, s{T0+1}, s{S_LW}    ; + 2w*1024")
    a(f"  s_lshl_b32 s{T0+2}, s{T0}, 9")
    a("  v_and_b32 v2, 31, v0")
    a("  v_lshlrev_b32 v2, 4, v2")
    VWR = 192
    a(f"  s_lshl_b32 s{T0+4}, s{S_W}, 2")
    tr_addr(a, VWR, f"s{T0+4}", True, 'pv', 4)
    a(f"  v_add_u32 v{VWR+1}, 0x10000, v{VWR}")
    a(f"  v_add_u32 v{VWR+2}, 0x20000, v{VWR}")
    for kk in range(32):
        for r_ in range(2):
            off = WOLOC[kk >> 1] + (kk & 1)*4096 + r_*2048
            a(f"  ds_read_b64_tr_b16 {ar(128+kk*4+r_*2,2)}, v{VWR+(off>>16)} offset:{off & 65535}")
        if kk % 4 == 3 and kk < 31:
            a("  s_waitcnt lgkmcnt(4)")
    poll(a, f"s{T0+3}", 4)
    if 'tailst' not in opt.bench: stamp(a, "H1 flags seen")
    for jp in range(4):
        a(f"  s_add_u32 s{T0+3}, s{T0+2}, {WS_ML + jp*512}")
        a(f"  buffer_load_dwordx4 {vr(VML+jp*4,4)}, v2, {R(R_WS)}, s{T0+3} offen sc1")
    for jp in range(4):
        Ls = newlabel("skipown")
        a(f"  s_cmp_eq_u32 s{S_J}, {jp}")
        a(f"  s_cbranch_scc1 {Ls}")
        for qt in range(2):
            for s in range(2):
                a(f"  s_add_u32 s{T0+3}, s{T0+1}, {WS_MB + jp*16384 + qt*8192 + s*1024}")
                a(f"  buffer_load_dwordx4 {vr(VPA+jp*16+(qt*2+s)*4,4)}, v{V_L16}, {R(R_WS)}, s{T0+3} offen sc1")
        a(f"{Ls}:")
    a("  s_waitcnt vmcnt(12)")
    for qt in range(2):
        m = lambda jp: VML+jp*4+qt*2
        l = lambda jp: VML+jp*4+qt*2+1
        a(f"  v_max3_f32 v4, v{m(0)}, v{m(1)}, v{m(2)}")
        a(f"  v_max_f32 v4, v4, v{m(3)}")
        for jp in range(4):
            a(f"  v_sub_f32 v{m(jp)}, v{m(jp)}, v4")
        for jp in range(4):
            a(f"  v_exp_f32 v{m(jp)}, v{m(jp)}")
        a("  s_nop 0")
        a(f"  v_mul_f32 v5, v{m(0)}, v{l(0)}")
        for jp in range(1, 4):
            a(f"  v_fmac_f32 v5, v{m(jp)}, v{l(jp)}")
        a(f"  v_rcp_f32 v5, v5")
        a("  s_nop 0")
        for jp in range(4):
            a(f"  v_mul_f32 v{m(jp)}, v{m(jp)}, v5")
    for jp in range(4):
        Ls = newlabel("ownsc")
        a(f"  s_cmp_lg_u32 s{S_J}, {jp}")
        a(f"  s_cbranch_scc1 {Ls}")
        a(f"  v_mov_b32 v144, v{VML+jp*4}")
        a(f"  v_mov_b32 v146, v{VML+jp*4+2}")
        a(f"{Ls}:")
    a(f"  s_mov_b32 s{T0+4}, 0xffff0000")
    def acc_from(src, sc0, sc1, first):
        k = 0
        for qt in range(2):
            sc = sc0 if qt == 0 else sc1
            for s in range(2):
                for p in range(4):
                    r = src + (qt*2+s)*4 + p
                    d = VAC + qt*16 + s*8 + 2*p
                    t = 4 + 2*(k & 1); k += 1
                    a(f"  v_lshlrev_b32 v{t}, 16, v{r}")
                    a(f"  v_and_b32 v{t+1}, s{T0+4}, v{r}")
                    if first:
                        a(f"  v_pk_mul_f32 v[{d}:{d+1}], v[{t}:{t+1}], v[{sc}:{sc+1}] op_sel_hi:[1,0]")
                    else:
                        a(f"  v_pk_fma_f32 v[{d}:{d+1}], v[{t}:{t+1}], v[{sc}:{sc+1}], v[{d}:{d+1}] op_sel_hi:[1,0,1]")
    a("  s_waitcnt lgkmcnt(0)")
    acc_from(208, 144, 146, True)
    a("  s_waitcnt vmcnt(0)")
    for jp in range(4):
        Ls = newlabel("skipown2")
        a(f"  s_cmp_eq_u32 s{S_J}, {jp}")
        a(f"  s_cbranch_scc1 {Ls}")
        acc_from(VPA+jp*16, VML+jp*4, VML+jp*4+2, False)
        a(f"{Ls}:")
    VOF = 176
    for qt in range(2):
        for s in range(2):
            for p in range(4):
                r = VAC + qt*16 + s*8 + 2*p
                a(f"  v_cvt_pk_bf16_f32 v{VOF+(qt*2+s)*4+p}, v{r}, v{r+1}")
    a(f"  s_lshl_b32 s{T0}, s{S_B}, 5")
    a(f"  s_lshl_b32 s{T0+1}, s{S_G}, 2")
    a(f"  s_add_u32 s{T0}, s{T0}, s{T0+1}       ; b*32+4g")
    def ofst(fl):
        for qt in range(2):
            for s in range(2):
                a(f"  s_add_u32 s{T0+2}, s{sOFp}, {qt*8192+s*1024}")
                a(f"  buffer_store_dwordx4 {vr(VOF+(qt*2+s)*4,4)}, v{V_L16}, {R(R_WS)}, s{T0+2} offen{fl}")
    dual(a, ofst)
    a("  s_barrier")
    a(f"  v_add_u32 v8, s{S_LW}, v{V_L16}")
    for qt in range(2):
        for s in range(2):
            a(f"  ds_write_b128 v8, {vr(VOF+(qt*2+s)*4,4)} offset:{qt*8192+s*1024}")
    a(f"  s_lshl_b32 s{T0+2}, s{S_BG}, 7")
    a(f"  s_lshl_b32 s{T0+3}, s{S_J}, 4")
    a(f"  s_add_u32 s{T0+3}, s{T0+3}, s{T0+2}")
    a(f"  s_lshl_b32 s{T0+4}, s{S_W}, 2")
    a(f"  s_add_u32 s{T0+3}, s{T0+3}, s{T0+4}")
    a(f"  s_add_u32 s{T0+3}, s{T0+3}, {F2_OFF}")
    a("  s_waitcnt vmcnt(0)")
    set_flag(a, f"s{T0+3}")
    stamp(a, "OF published")
    a("  s_waitcnt lgkmcnt(0)")
    a("  s_barrier")
    ACC = 128
    NB = 6
    def rdB(kk):
        p, ks = kk >> 3, kk & 7
        return [f"  ds_read_b128 {vr(32+((kk%NB)*2+qt)*4,4)}, v{V_L16} offset:{(p*16+qt*8+ks)*1024}" for qt in range(2)]
    def gemm(k0, k1):
        for kk in range(k0, min(k0+NB-1, k1)): emit(rdB(kk))
        for kk in range(k0, k1):
            if kk + NB - 1 < k1:
                emit(rdB(kk+NB-1))
                a(f"  s_waitcnt lgkmcnt({2*(NB-1)})")
            else:
                a(f"  s_waitcnt lgkmcnt({2*(k1-1-kk)})")
            for qt in range(2):
                c = vr(ACC+16*qt,16) if kk else "0"
                a(f"  v_mfma_f32_32x32x16_bf16 {vr(ACC+16*qt,16)}, {ar(128+kk*4,4)}, {vr(32+((kk%NB)*2+qt)*4,4)}, {c}")
    gemm(0, 8)
    a(f"  s_add_u32 s{T0+3}, s{T0+2}, {F2_OFF}")
    poll(a, f"s{T0+3}", 16)
    stamp(a, "H2 flags seen")
    a(f"  s_lshl_b32 s{T0+2}, s{S_W}, 12        ; w*4096")
    for p in range(1, 4):
        a(f"  s_add_u32 s{T0+1}, s{S_J}, {p}")
        a(f"  s_and_b32 s{T0+1}, s{T0+1}, 3")
        a(f"  s_add_u32 s{T0+1}, s{T0+1}, s{T0}")
        a(f"  s_lshl_b32 s{T0+1}, s{T0+1}, 14")
        a(f"  s_add_u32 s{T0+1}, s{T0+1}, s{T0+2}")
        for n in range(4):
            a(f"  s_add_u32 m0, s{T0+2}, {p*16384 + n*1024}")
            a(f"  s_add_u32 s{T0+3}, s{T0+1}, {WS_OF + n*1024}")
            a(f"  buffer_load_dwordx4 v{V_L16}, {R(R_WS)}, s{T0+3} offen sc1 lds")
    a("  s_waitcnt vmcnt(0)")
    a("  s_barrier")
    if 'tailst' in opt.bench: stamp(a, "OF landed"); a("  s_waitcnt lgkmcnt(0)")
    gemm(8, 32)
    if 'tailst' in opt.bench: stamp(a, "gemm done")
    a(f"  s_lshl_b32 s{T0}, s{S_B}, 2")
    a(f"  s_add_u32 s{T0}, s{T0}, s{S_J}        ; b*4+j")
    a(f"  s_lshl_b32 s{T0+1}, s{T0}, 3")
    a(f"  s_add_u32 s{T0+1}, s{T0+1}, s{S_G}")
    a(f"  s_lshl_b32 s{T0+1}, s{T0+1}, 15")
    a(f"  s_lshl_b32 s{T0+2}, s{S_W}, 13")
    a(f"  s_add_u32 s{T0+1}, s{T0+1}, s{T0+2}")
    a("  s_nop 7")
    for n in range(8):
        off = n*1024
        if (off & 4095) == 0:
            a(f"  s_add_u32 s{T0+2}, s{T0+1}, {WS_PO + off}")
        a(f"  buffer_store_dwordx4 {vr(ACC+n*4,4)}, v{V_L16}, {R(R_WS)}, s{T0+2} offen offset:{off & 4095} sc0 sc1")
    if 'tailst' in opt.bench: stamp(a, "PO stores issued")
    a("  s_waitcnt vmcnt(0)")
    a(f"  s_lshl_b32 s{T0+2}, s{T0}, 9")
    a(f"  s_lshl_b32 s{T0+3}, s{S_W}, 7")
    a(f"  s_add_u32 s{T0+3}, s{T0+3}, s{T0+2}")
    a(f"  s_lshl_b32 s{T0+4}, s{S_G}, 2")
    a(f"  s_add_u32 s{T0+3}, s{T0+3}, s{T0+4}")
    a(f"  s_add_u32 s{T0+3}, s{T0+3}, {F3_OFF}")
    set_flag(a, f"s{T0+3}", always_global=True)
    stamp(a, "PO published")
    a(f"  s_lshr_b32 s{T0+3}, s{S_G}, 1")
    a(f"  s_lshl_b32 s{T0+3}, s{T0+3}, 7")
    a(f"  s_add_u32 s{T0+3}, s{T0+3}, s{T0+2}")
    a(f"  s_add_u32 s{T0+3}, s{T0+3}, {F3_OFF}")
    poll(a, f"s{T0+3}", 8)
    if 'tailst' in opt.bench: stamp(a, "H3 flags seen")
    a(f"  s_lshl_b32 s{T0}, s{T0}, 18")
    a(f"  s_lshl_b32 s{T0+1}, s{S_G}, 12")
    a(f"  s_add_u32 s{T0}, s{T0}, s{T0+1}")
    a(f"  s_lshl_b32 s{T0+2}, s{S_W}, 10")
    a(f"  s_add_u32 s{T0}, s{T0}, s{T0+2}")
    for gp in range(8):
        a(f"  s_add_u32 s{T0+2}, s{T0}, {WS_PO + gp*32768}")
        a(f"  buffer_load_dwordx4 {vr(16+gp*4,4)}, v{V_L16}, {R(R_WS)}, s{T0+2} offen sc1")
    srd(a, R_OUT, P_OUT, None, "0x80000")
    a(f"  s_lshl_b32 s{T0+3}, s{S_B}, 6")
    a(f"  s_and_b32 s{T0+4}, s{S_G}, 1")
    a(f"  s_lshl_b32 s{T0+4}, s{T0+4}, 5")
    a(f"  s_add_u32 s{T0+3}, s{T0+3}, s{T0+4}")
    a(f"  s_lshl_b32 s{T0+3}, s{T0+3}, 10")
    a(f"  s_lshl_b32 s{T0+4}, s{S_J}, 7")
    a(f"  s_lshr_b32 s{T0+5}, s{S_G}, 1")
    a(f"  s_lshl_b32 s{T0+5}, s{T0+5}, 5")
    a(f"  s_add_u32 s{T0+4}, s{T0+4}, s{T0+5}")
    a(f"  s_lshr_b32 s{T0+5}, s{S_W}, 1")
    a(f"  s_lshl_b32 s{T0+5}, s{T0+5}, 4")
    a(f"  s_add_u32 s{T0+4}, s{T0+4}, s{T0+5}")
    a(f"  s_and_b32 s{T0+5}, s{S_W}, 1")
    a(f"  s_lshl_b32 s{T0+5}, s{T0+5}, 2")
    a(f"  s_add_u32 s{T0+4}, s{T0+4}, s{T0+5}")
    a(f"  s_lshl_b32 s{T0+4}, s{T0+4}, 1")
    a(f"  s_add_u32 s{T0+3}, s{T0+3}, s{T0+4}")
    a("""  v_and_b32 v2, 31, v0
  v_lshrrev_b32 v3, 5, v0
  v_lshlrev_b32 v2, 10, v2
  v_lshl_add_u32 v2, v3, 4, v2""")
    a("  s_waitcnt vmcnt(0)")
    if 'tailst' in opt.bench: stamp(a, "PO loaded")
    for k in range(4):
        for gp in range(1, 8):
            a(f"  v_add_f32 v{16+k}, v{16+k}, v{16+gp*4+k}")
    a("  v_cvt_pk_bf16_f32 v4, v16, v17")
    a("  v_cvt_pk_bf16_f32 v5, v18, v19")
    a("  s_nop 1")
    a(f"  buffer_store_dwordx2 v[4:5], v2, {R(R_OUT)}, s{T0+3} offen")
    if opt.stamps:
        a("  s_waitcnt vmcnt(0)")
        stamp(a, "end")
        stamp_flush(a)
        if 'dbgst' in opt.bench:
            a("  s_cmp_lg_u32 s3, 0")
            a("  s_cbranch_scc1 L_done")
            for wg, base, idx in [(0, 1, [1, 3, 4, 5, 7, 9, 10]), (133, 8, [1, 3, 4, 5, 7, 9, 10])]:
                Lx = newlabel("dbg")
                a(f"  s_cmp_lg_u32 s2, {wg}")
                a(f"  s_cbranch_scc1 {Lx}")
                a("  s_mov_b64 exec, 1")
                for n_, k in enumerate(idx):
                    a(f"  s_sub_u32 s{T0}, s{S_T+2*k}, s{S_T}")
                    a(f"  v_mov_b32 v4, s{T0}")
                    a(f"  v_mov_b32 v5, {4*(base+n_)}")
                    a(f"  buffer_store_dword v4, v5, {R(R_DBG)}, 0 offen")
                    a("  s_nop 1")
                a(f"{Lx}:")
    a("L_done:")
    a("  s_endpgm")
    a("L_safe:")
    SK, SV = L_V + 6*8192, L_V + 7*8192
    a("  s_waitcnt vmcnt(0)")
    a("  s_barrier")
    for ks in range(8):
        a(f"  v_add_u32 v{224+ks}, {hex(SK)}, v{VKA+ks}")
    for qt in range(2):
        a(f"  v_mov_b32 v{VM+qt}, 0xff800000      ; -inf")
        a(f"  v_mov_b32 v{VL+qt}, 0")
    for r in range(64):
        a(f"  v_mov_b32 v{VO0+r}, 0")
        a(f"  v_accvgpr_write_b32 a{AO1+r}, 0")
    sI = 7
    a(f"  s_mov_b32 s{sI}, 0")
    a("L_safe_loop:")
    a(f"  s_add_u32 m0, s{S_LW}, {SK}")
    a(f"  s_nop 0")
    for ii in range(2):
        a(f"  buffer_load_dwordx4 v{VKD+ii}, {R(R_K)}, s{sI} offen offset:{ii*1024} lds")
    a(f"  s_add_u32 m0, s{S_LW}, {SV}")
    a(f"  s_nop 0")
    for ii in range(2):
        a(f"  buffer_load_dwordx4 v{VVD}, {R(R_V)}, s{sI} offen offset:{ii*1024} lds")
    a("  s_waitcnt vmcnt(0)")
    a("  s_barrier")
    for ks in range(8):
        a(f"  ds_read_b128 {ar(AK+ks*4,4)}, v{224+ks}")
    for s in range(2):
        for t in range(4):
            for rd in range(2):
                a(f"  ds_read_b64_tr_b16 {ar(AV+(t*2+s)*4+rd*2,2)}, v{VVA+t} offset:{7*8192+s*4096+rd*2048}")
    a("  s_waitcnt lgkmcnt(0)")
    a("  s_barrier")
    for qt in range(2):
        for ks in range(8):
            d = vr(VS+qt*16, 16)
            a(f"  v_mfma_f32_32x32x16_bf16 {d}, {ar(AK+ks*4,4)}, {ar(AQ+qt*32+ks*4,4)}, {d if ks else '0'}")
    a("  s_nop 15")
    for qt in range(2):
        r = VS + qt*16
        a(f"  v_max3_f32 v4, v{r}, v{r+1}, v{r+2}")
        for k in range(3, 15, 2):
            a(f"  v_max3_f32 v4, v4, v{r+k}, v{r+k+1}")
        a(f"  v_max_f32 v4, v4, v{r+15}")
        a(f"  v_mov_b32 v5, v4")
        a("  s_nop 1")
        a(f"  v_permlane32_swap_b32 v4, v5")
        a("  s_nop 1")
        a(f"  v_max3_f32 v4, v4, v5, v{VM+qt}")
        a(f"  v_sub_f32 v5, v{VM+qt}, v4")
        a(f"  v_exp_f32 v5, v5")
        a(f"  v_mov_b32 v{VM+qt}, v4")
        a(f"  v_mul_f32 v{VL+qt}, v{VL+qt}, v5")
        for k in range(16):
            a(f"  v_sub_f32 v{r+k}, v{r+k}, v4")
        for k in range(16):
            a(f"  v_exp_f32 v{r+k}, v{r+k}")
        a("  s_nop 0")
        for k in range(16):
            a(f"  v_add_f32 v{VL+qt}, v{VL+qt}, v{r+k}")
        for p in range(8):
            a(f"  v_cvt_pk_bf16_f32 v{VP+qt*8+p}, v{r+2*p}, v{r+2*p+1}")
        for t in range(4):
            for k in range(16):
                if qt == 0:
                    a(f"  v_mul_f32 v{VO0+t*16+k}, v{VO0+t*16+k}, v5")
                else:
                    a(f"  v_accvgpr_read_b32 v6, a{AO1+t*16+k}")
                    a(f"  v_mul_f32 v6, v6, v5")
                    a(f"  v_accvgpr_write_b32 a{AO1+t*16+k}, v6")
    a("  s_nop 1")
    for qt in range(2):
        for s in range(2):
            for t in range(4):
                d = Oreg(t, qt)
                a(f"  v_mfma_f32_32x32x16_bf16 {d}, {ar(AV+(t*2+s)*4,4)}, {vr(VP+qt*8+s*4,4)}, {d}")
    a(f"  s_add_u32 s{sI}, s{sI}, 8192")
    a(f"  s_cmp_lt_u32 s{sI}, {16*8192}")
    a("  s_nop 15")
    a(f"  s_cbranch_scc1 L_safe_loop")
    lreduce()
    a("  s_nop 7")
    a("  s_barrier")
    a(f"  v_add_u32 v{VOWN}, {hex(OWN)}, v{V_L16}")
    publish_rest(True)
    a(f"  s_lshl_b32 s{T0+2}, s{S_BG}, 9")
    a(f"  s_lshl_b32 s{T0+3}, s{S_W}, 7")
    a(f"  s_add_u32 s{T0+3}, s{T0+3}, s{T0+2}")
    a(f"  s_lshl_b32 s{T0+4}, s{S_J}, 2")
    a(f"  s_add_u32 s{T0+3}, s{T0+3}, s{T0+4}")
    a(f"  s_add_u32 s{T0+3}, s{T0+3}, {F1_OFF}")
    a("  s_branch L_safe_back")
    a(kernel_desc(KNAME, 512, 102, 256))
    return a.text()

if __name__ == "__main__":
    import argparse
    ap = argparse.ArgumentParser()
    ap.add_argument("out")
    ap.add_argument("--nostamps", action="store_true")
    ap.add_argument("--plain", action="store_true")
    ap.add_argument("--global_", action="store_true")
    ap.add_argument("--safe", action="store_true")
    ap.add_argument("--bench", type=str, default="")
    ap.add_argument("--tstart", type=int, default=11)
    ap.add_argument("--maxi", type=str, default="2")
    ap.add_argument("--kvpro", type=str, default="")
    ap.add_argument("--kvpost", type=str, default="")
    ap.add_argument("--kvmid", type=str, default="")
    ap.add_argument("--wosched", type=str, default="")
    ap.add_argument("--mbtouch", type=str, default="")
    ap.add_argument("--oftouch", type=int, default=-1)
    ap.add_argument("--fltouch", type=int, default=12)
    ap.add_argument("--wostart", type=int, default=10)
    ap.add_argument("--woper", type=int, default=3)
    x = ap.parse_args()
    opt.stamps = not x.nostamps
    opt.nt = "" if x.plain else " nt"
    opt.force_global = x.global_
    opt.force_safe = x.safe
    opt.tstart = x.tstart
    if x.wosched: opt.wosched = [int(t) for t in x.wosched.split(',')]
    if x.mbtouch: opt.mbtouch = [int(t) for t in x.mbtouch.split(',')]
    opt.oftouch = x.oftouch
    opt.fltouch = x.fltouch
    opt.wostart = x.wostart
    opt.woper = x.woper
    opt.maxi = [int(t) for t in x.maxi.split(',')]
    if x.kvpro: opt.kvpro = [(int(t[0]), t[1], int(t[2:])) for t in x.kvpro.split(',')]
    if x.kvmid: opt.kvmid = [(t[0], int(t[1:])) for t in x.kvmid.split(',')]
    if x.kvpost: opt.kvpost = [(t[0], int(t[1:])) for t in x.kvpost.split(',')]
    opt.bench = set(x.bench.split(",")) if x.bench else set()
    open(x.out, "w").write(build())
```

```python
import sys, math, struct
from asmlib import *

WS_QF = 0x0000000
WS_MB = 0x0400000
WS_ML = 0x1400000
WS_OF = 0x0000000
WS_PO = 0x1900000
WS_FL = 0x2100000
FQ_OFF = WS_FL
F1_OFF = WS_FL + 0x4000
F2_OFF = WS_FL + 0x10000
F3_OFF = WS_FL + 0x14000
HL_OFF = WS_FL + 0x18000
WS_ST = 0x2200000
WS_SIZE = 0x2400000

def vr(a, n=1): return f"v{a}" if n == 1 else f"v[{a}:{a+n-1}]"
def ar(a, n=1): return f"a{a}" if n == 1 else f"a[{a}:{a+n-1}]"
def R(r): return f"s[{r}:{r+3}]"
SCALE = math.log2(math.e) / math.sqrt(128.0)
def f32hex(x): return "0x%08x" % struct.unpack("<I", struct.pack("<f", x))[0]

S_W, S_G, S_B, S_J = 3, 4, 5, 6
S_N, S_LOC, S_XCC, S_BG = 8, 9, 10, 11
S_LW, S_TILE, S_SPIN, S_T32 = 12, 13, 14, 15
P_X, P_K, P_V, P_WQ, P_WO, P_OUT, P_DBG, P_WS = 16, 18, 20, 22, 24, 26, 28, 30
R_K, R_V, R_X, R_WQ, R_WO, R_WS, R_OUT, R_DBG = 32, 36, 40, 44, 48, 52, 56, 60
T0 = 64
S_T = 80

L_K, L_V, L_X = 0x00000, 0x10000, 0x20000

V_DUM = 9
VKD, VVD, VWOD, V_L16, V_FL = 10, 12, 13, 14, 15
VKA, VVA, VL, VM = 16, 24, 28, 30
VS, VP, VN, VO0 = 32, 96, 128, 160
VXD, VWD, VWA, VXA = 224, 226, 227, 229
VONE, VLA = 240, 244
AO1, AQ, AK, AV = 0, 128, 192, 224
def Oreg(t, qt, k=0, n=16):
    return (vr(VO0+t*16+k, n) if qt == 0 else ar(AO1+t*16+k, n))

class Opt:
    stamps = True
    nt = " nt"
    timeout = 1 << 16
    force_global = False
    force_safe = False
    lmfma = True
    dmapos = 'B0'
    hlat = 6
    progressive = True
    tstart = 9
    wosched = [1,2,3,4, 7,8,9,10,11,12,13,14, 12,13,14,15]
    wotouch = -1
    mbtouch = [8,9,10,11,12,13,14,15]
    fltouch = 7
    oftouch = -1
    wostart = 10
    woper = 3
    maxi = [2]
    kvpro = [(7,'K',0)]
    kvmid = [('K',1)]
    kvpost = [('V',0), ('K',2), ('V',1), ('K',3)]
    bench = set()
opt = Opt()

def srd(a, r, p, off, size):
    if off is None:
        a(f"  s_mov_b32 s{r}, s{p}")
        a(f"  s_mov_b32 s{r+1}, s{p+1}")
    else:
        a(f"  s_add_u32 s{r}, s{p}, {off}")
        a(f"  s_addc_u32 s{r+1}, s{p+1}, 0")
    a(f"  s_mov_b32 s{r+2}, {size}")
    a(f"  s_mov_b32 s{r+3}, 0x20000")

nstamp = [0]
def stamp(a, name=""):
    if opt.stamps:
        k = nstamp[0]; nstamp[0] += 1
        assert k < 11, "too many stamps"
        a(f"  s_memrealtime s[{S_T+2*k}:{S_T+2*k+1}]")
def stamp_flush(a):
    if not opt.stamps: return
    n = nstamp[0]
    a("  s_waitcnt lgkmcnt(0)")
    a(f"  s_lshl_b32 s{T0}, s2, 2")
    a(f"  s_add_u32 s{T0}, s{T0}, s{S_W}")
    a(f"  s_mul_i32 s{T0}, s{T0}, 96")
    a(f"  s_add_u32 s{T0}, s{T0}, {WS_ST}")
    a("  v_mov_b32 v8, 0")
    for k in range(0, 12, 2):
        for u in range(2):
            kk = min(k+u, n-1)
            a(f"  v_mov_b32 v{4+2*u}, s{S_T+2*kk}")
            a(f"  v_mov_b32 v{5+2*u}, s{S_T+2*kk+1}")
        a(f"  s_add_u32 s{T0+1}, s{T0}, {k*8}")
        a(f"  s_mov_b64 exec, 1")
        a(f"  buffer_store_dwordx4 v[4:7], v8, {R(R_WS)}, s{T0+1} offen")
        a(f"  s_mov_b64 exec, -1")
        a("  s_nop 1")

def tr_addr(a, dst, tile, sigma, row_mode, tmp, base=0):
    t0, t1, t2, t3 = tmp, tmp+1, tmp+2, tmp+3
    a(f"  v_bfe_u32 v{t0}, v0, 4, 1")
    a(f"  v_and_b32 v{t1}, 3, v0")
    if sigma:
        a(f"  v_and_b32 v{t2}, 1, v{t1}")
        a(f"  v_lshrrev_b32 v{t1}, 1, v{t1}")
    else:
        a(f"  v_lshrrev_b32 v{t2}, 1, v{t1}")
        a(f"  v_and_b32 v{t1}, 1, v{t1}")
    a(f"  v_lshl_add_u32 v{t2}, v{t0}, 1, v{t2}")
    if isinstance(tile, int):
        a(f"  v_add_u32 v{t2}, {4*tile}, v{t2}")
    else:
        a(f"  v_add_u32 v{t2}, {tile}, v{t2}")
    a(f"  v_bfe_u32 v{t0}, v0, 2, 2")
    a(f"  v_lshlrev_b32 v{t3}, 2, v{t0}")
    a(f"  v_xor_b32 v{t2}, v{t2}, v{t3}")
    a(f"  v_lshlrev_b32 v{t2}, 4, v{t2}")
    a(f"  v_lshl_add_u32 v{t2}, v{t1}, 3, v{t2}")
    a(f"  v_lshrrev_b32 v{t3}, 5, v0")
    a(f"  v_lshl_add_u32 v{t3}, v{t3}, {3 if row_mode=='nat' else 2}, v{t0}")
    a(f"  v_lshl_add_u32 v{dst}, v{t3}, 8, v{t2}")
    if base:
        a(f"  v_add_u32 v{dst}, {hex(base)}, v{dst}")

lab = [0]
def newlabel(p):
    lab[0] += 1
    return f"L_{p}_{lab[0]}"

def poll(a, soff, nwords):
    L = newlabel("poll"); Lx = newlabel("pollx")
    mask = (1 << nwords) - 1
    a(f"  s_mov_b32 s{S_SPIN}, {opt.timeout}")
    a(f"{L}:")
    a(f"  buffer_load_dword v4, v{V_FL}, {R(R_WS)}, {soff} offen sc1")
    a(f"  s_sub_u32 s{S_SPIN}, s{S_SPIN}, 1")
    a(f"  s_cbranch_scc1 {Lx}")
    a(f"  s_waitcnt vmcnt(0)")
    a(f"  v_cmp_ne_u32 vcc, s{S_N}, v4")
    a(f"  s_nop 4")
    a(f"  s_and_b32 s{T0+15}, vcc_lo, {hex(mask)}")
    a(f"  s_cbranch_scc1 {L}")
    a(f"{Lx}:")

def set_flag(a, soff, always_global=False):
    a(f"  v_mov_b32 v4, s{S_N}")
    a(f"  v_mov_b32 v5, 0")
    a(f"  s_mov_b64 exec, 1")
    if always_global:
        a(f"  buffer_store_dword v4, v5, {R(R_WS)}, {soff} offen sc0 sc1")
    else:
        Lg = newlabel("fg"); Le = newlabel("fe")
        a(f"  s_cmp_eq_u32 s{S_LOC}, 0")
        a(f"  s_cbranch_scc1 {Lg}")
        a(f"  buffer_store_dword v4, v5, {R(R_WS)}, {soff} offen")
        a(f"  s_branch {Le}")
        a(f"{Lg}:")
        a(f"  buffer_store_dword v4, v5, {R(R_WS)}, {soff} offen sc0 sc1")
        a(f"{Le}:")
    a(f"  s_mov_b64 exec, -1")

def dual(a, emit):
    Lg = newlabel("sg"); Le = newlabel("se")
    a(f"  s_cmp_eq_u32 s{S_LOC}, 0")
    a(f"  s_cbranch_scc1 {Lg}")
    emit("")
    a(f"  s_branch {Le}")
    a(f"{Lg}:")
    emit(" sc0 sc1")
    a(f"{Le}:")

class Fifo:
    def __init__(self): self.ops = []
    def push(self, tag, n=1): self.ops += [tag] * n
    def after(self, tags):
        idx = [i for i, t in enumerate(self.ops) if t in tags]
        if not idx: return 63
        return min(63, len(self.ops) - 1 - max(idx))

def build():
    nstamp[0] = 0
    a = Asm()
    a(HEADER_COMMENT.rstrip())
    a("; @launch grid=(256,1,1) block=(256,1,1) lds=163840")
    a('.amdgcn_target "amdgcn-amd-amdhsa--gfx950"')
    a(kernel_start(KNAME).rstrip())
    fifo = Fifo()
    def emit(lst):
        for l in lst: a(l)
    a(f"""  s_cmp_ge_u32 s2, 256
  s_cbranch_scc1 L_done
  s_load_dwordx16 s[16:31], s[0:1], 0
  s_memrealtime s[{T0}:{T0+1}]
  s_getreg_b32 s{S_XCC}, hwreg(HW_REG_XCC_ID)
  v_lshrrev_b32 v1, 6, v0
  v_and_b32 v0, 63, v0
  s_and_b32 s{S_G}, s2, 7
  v_readfirstlane_b32 s{S_W}, v1
  s_lshr_b32 s{S_T32}, s2, 3
  s_lshr_b32 s{S_B}, s{S_T32}, 2
  s_and_b32 s{S_J}, s{S_T32}, 3
  s_and_b32 s{S_XCC}, s{S_XCC}, 7
  s_lshl_b32 s{S_BG}, s{S_B}, 3
  s_add_u32 s{S_BG}, s{S_BG}, s{S_G}
  v_lshlrev_b32 v{V_L16}, 4, v0
  v_lshlrev_b32 v{V_FL}, 2, v0
  s_lshl_b32 s{S_LW}, s{S_W}, 11
  v_lshrrev_b32 v2, 4, v0             ; l>>4
  v_and_b32 v3, 15, v0                ; l&15
  v_lshrrev_b32 v4, 3, v0             ; l>>3
  v_and_b32 v5, 7, v0                 ; l&7
  v_xor_b32 v6, v5, v2
  v_lshlrev_b32 v6, 4, v6
  v_lshl_add_u32 v{VXD}, v4, 10, v6
  v_add_u32 v7, 4, v2
  v_xor_b32 v6, v5, v7
  v_lshlrev_b32 v6, 4, v6
  v_lshl_add_u32 v{VXD+1}, v4, 10, v6
  v_lshlrev_b32 v6, 2, v2
  v_xor_b32 v6, v6, v3
  v_lshlrev_b32 v6, 4, v6
  v_lshl_add_u32 v{VWD}, v2, 13, v6
  v_lshlrev_b32 v8, 7, v5
  s_waitcnt lgkmcnt(0)""")
    if opt.stamps:
        a(f"  s_mov_b32 s{S_T}, s{T0}")
        a(f"  s_mov_b32 s{S_T+1}, s{T0+1}")
        nstamp[0] = 1
    a(f"  s_lshl_b32 s{T0+2}, s{S_T32}, 2")
    a(f"  s_add_u32 s{T0+2}, s{T0+2}, s{S_W}        ; id")
    srd(a, R_WQ, P_WQ, None, "0x400000")
    srd(a, R_X, P_X, None, "0x80000")
    if 'touch1' in opt.bench:
        a(f"  s_cmp_ge_u32 s{T0+2}, 64")
        a(f"  s_cbranch_scc1 L_touchx")
        a(f"  v_lshl_add_u32 v7, v4, 13, v8          ; (l>>3)*8192 + (l&7)*128")
        a(f"  s_lshl_b32 s{T0+3}, s{T0+2}, 16        ; 8*id*8192")
        a(f"  s_lshl_b32 s{T0+4}, s{S_G}, 10")
        a(f"  s_add_u32 s{T0+3}, s{T0+3}, s{T0+4}")
        a(f"  buffer_load_dword v{V_DUM}, v7, {R(R_WQ)}, s{T0+3} offen")
        a(f"  s_branch L_touchd")
        a(f"L_touchx:")
        a(f"  v_lshl_add_u32 v7, v4, 10, v8          ; (l>>3)*1024 + (l&7)*128")
        a(f"  s_sub_u32 s{T0+3}, s{T0+2}, 64")
        a(f"  s_lshl_b32 s{T0+3}, s{T0+3}, 13        ; 8*rows*1024")
        a(f"  buffer_load_dword v{V_DUM}, v7, {R(R_X)}, s{T0+3} offen")
        a(f"L_touchd:")
        fifo.push('T')
    srd(a, R_WS, P_WS, None, hex(WS_SIZE))
    srd(a, R_DBG, P_DBG, None, "0x100")
    a(f"  s_mov_b32 s{S_SPIN}, s{T0}")
    a(f"""  s_cmp_lg_u32 s2, 0
  s_cbranch_scc1 L_nononce
  s_cmp_lg_u32 s{S_W}, 0
  s_cbranch_scc1 L_nononce
  s_lshl_b32 s{T0+4}, s{S_SPIN}, 4
  s_or_b32 s{T0+4}, s{T0+4}, 0x80000000
  v_mov_b32 v6, s{T0+4}
  v_mov_b32 v7, 0
  s_mov_b64 exec, 1
  buffer_store_dword v6, v7, {R(R_DBG)}, 0 offen sc0 sc1
  s_mov_b64 exec, -1
L_nononce:""")
    a(f"  s_lshl_b32 s{T0+3}, s{S_B}, 16")
    srd(a, R_X, P_X, f"s{T0+3}", "0x10000")
    a(f"  s_lshl_b32 s{T0+3}, s{S_G}, 2")
    a(f"  s_add_u32 s{T0+3}, s{T0+3}, s{S_J}          ; h_own")
    a(f"  s_lshl_b32 s{T0+4}, s{T0+3}, 8")
    srd(a, R_WQ, P_WQ, f"s{T0+4}", "0x400000")
    a(f"  s_sub_u32 s{R_WQ+2}, s{R_WQ+2}, s{T0+4}")
    sXg, sXl, sWg, sWl, sO = T0+6, T0+7, T0+8, T0+9, T0+10
    a(f"  s_lshl_b32 s{sXg}, s{S_W}, 14")
    a(f"  s_lshl_b32 s{sWg}, s{S_W}, 17")
    a(f"  s_lshl_b32 s{sWl}, s{S_W}, 12")
    NCH = 4
    WSLOT = [L_K + 0x8000, L_K + 0xC000, L_V + 0x8000, L_V + 0xC000]
    XSLOT = [L_X + i*0x2000 for i in range(4)]
    sROT, sWc, sXc = T0+11, T0+12, T0+7
    a(f"  s_lshl_b32 s{sROT}, s{S_J}, 1")
    a(f"  s_add_u32 s{sROT}, s{sROT}, s{S_B}")
    def chunk_ops(c):
        slot = c % NCH
        out = [f"  s_add_u32 s{sWc}, s{sROT}, {c}",
               f"  s_and_b32 s{sWc}, s{sWc}, 7",
               f"  s_lshl_b32 s{sXc}, s{sWc}, 7",
               f"  s_add_u32 s{sXc}, s{sXc}, s{sXg}",
               f"  s_lshl_b32 s{sWc}, s{sWc}, 19",
               f"  s_add_u32 s{sWc}, s{sWc}, s{sWg}"]
        for ii in range(4):
            out.append(f"  s_add_u32 m0, s{sWl}, {WSLOT[slot] + ii*1024}")
            out.append(f"  s_add_u32 s{sO}, s{sWc}, {ii*32768}")
            out.append(f"  buffer_load_dwordx4 v{VWD}, {R(R_WQ)}, s{sO} offen lds")
        for ii in range(2):
            out.append(f"  s_add_u32 m0, s{S_LW}, {XSLOT[slot] + ii*1024}")
            out.append(f"  s_add_u32 s{sO}, s{sXc}, {ii*8192}")
            out.append(f"  buffer_load_dwordx4 v{VXD+ii}, {R(R_X)}, s{sO} offen lds")
        fifo.push(('C', c), 6)
        return out
    def issue_chunk(c):
        emit(chunk_ops(c))
    issue_chunk(0)
    a(f"  s_lshl_b32 s{T0}, s{S_B}, 5")
    a(f"  s_lshl_b32 s{T0+1}, s{S_G}, 2")
    a(f"  s_add_u32 s{T0}, s{T0}, s{T0+1}")
    a(f"  s_add_u32 s{T0+1}, s{T0}, s{S_J}")
    a(f"  s_lshl_b32 s{T0+1}, s{T0+1}, 14")
    a(f"  s_add_u32 s{T0+1}, s{T0+1}, s{S_LW}")
    VMBT = 233
    a(f"""  v_bfe_u32 v4, v0, 4, 1
  v_bfe_u32 v5, v0, 3, 1
  v_and_b32 v6, 7, v0
  v_lshlrev_b32 v4, 13, v4
  v_lshl_add_u32 v4, v5, 10, v4
  v_lshl_add_u32 v{VMBT}, v6, 7, v4        ; qt*8192 + s*1024 + u*128""")
    issue_chunk(1)
    a(f"  s_lshl_b32 s{T0+2}, s{S_W}, 2")
    tr_addr(a, VWA, f"s{T0+2}", True, 'nat', 4, base=L_K + 0x8000)
    a(f"  v_add_u32 v{VWA+1}, 0x10000, v{VWA}")
    a("""  v_and_b32 v6, 31, v0
  v_lshrrev_b32 v7, 5, v0
  v_bfe_u32 v8, v0, 1, 3""")
    for ks in range(4):
        a(f"  v_add_u32 v1, {2*ks}, v7")
        a(f"  v_xor_b32 v1, v1, v8")
        a(f"  v_lshlrev_b32 v1, 4, v1")
        a(f"  v_lshl_add_u32 v{VXA+ks}, v6, 7, v1")
        a(f"  v_add_u32 v{VXA+ks}, {hex(L_X)}, v{VXA+ks}")
    issue_chunk(2)
    a(f"  s_lshl_b32 s{T0+3}, s{S_BG}, 19")
    a(f"  s_lshl_b32 s{T0+4}, s{S_J}, 17")
    a(f"  s_add_u32 s{T0+3}, s{T0+3}, s{T0+4}")
    srd(a, R_K, P_K, f"s{T0+3}", "0x20000")
    srd(a, R_V, P_V, f"s{T0+3}", "0x20000")
    a(f"  s_lshl_b32 s{T0+2}, s{S_W}, 3")
    for i in range(2):
        a(f"  v_add_u32 v4, s{T0+2}, v2")
        a(f"  v_add_u32 v5, {4*i}, v4")
        a(f"  v_and_b32 v5, 15, v5")
        a(f"  v_xor_b32 v5, v5, v3")
        a(f"  v_lshlrev_b32 v5, 4, v5")
        a(f"  v_lshl_add_u32 v{VKD+i}, v4, 8, v5")
    a(f"  v_lshlrev_b32 v5, 2, v2")
    a(f"  v_xor_b32 v5, v5, v3")
    a(f"  v_lshlrev_b32 v5, 4, v5")
    a(f"  v_lshl_add_u32 v{VVD}, v4, 8, v5")
    a(f"  v_lshl_add_u32 v{VWOD}, v4, 10, v5")
    RKN = RVN = 8
    def dmaK(i):
        out = [f"  s_add_u32 m0, s{S_LW}, {L_K+(i%RKN)*8192}", f"  s_mov_b32 s{S_TILE}, {i*8192}"]
        for ii in range(2):
            out.append(f"  buffer_load_dwordx4 v{VKD+ii}, {R(R_K)}, s{S_TILE} offen offset:{ii*1024}{opt.nt} lds")
        fifo.push(('K', i), 2)
        if 'nodma' in opt.bench and i >= 8: return []
        return out
    def dmaV(i):
        out = [f"  s_add_u32 m0, s{S_LW}, {L_V+(i%RVN)*8192}", f"  s_mov_b32 s{S_TILE}, {i*8192}"]
        for ii in range(2):
            out.append(f"  buffer_load_dwordx4 v{VVD}, {R(R_V)}, s{S_TILE} offen offset:{ii*1024}{opt.nt} lds")
        fifo.push(('V', i), 2)
        if 'nodma' in opt.bench and i >= 8: return []
        return out
    if 'nowarm' not in opt.bench:
        a(f"  v_mov_b32 v5, 0")
        a(f"  s_add_u32 s{T0+2}, s{T0+1}, {WS_QF}")
        a(f"  buffer_load_dword v{V_DUM}, v{VMBT}, {R(R_WS)}, s{T0+2} offen")
        a(f"  s_lshl_b32 s{T0+2}, s{S_BG}, 7")
        a(f"  s_add_u32 s{T0+3}, s{T0+2}, {FQ_OFF}")
        a(f"  buffer_load_dword v{V_DUM}, v5, {R(R_WS)}, s{T0+3} offen")
        a(f"  buffer_load_dword v{V_DUM}, v5, {R(R_K)}, 0 offen")
        a(f"  buffer_load_dword v{V_DUM}, v5, {R(R_V)}, 0 offen")
        fifo.push('T', 4)
        if 'tlbwarm' in opt.bench:
            a(f"  s_lshl_b32 s{T0+3}, s{S_BG}, 18")
            a(f"  s_add_u32 s{T0+3}, s{T0+3}, {WS_MB}")
            a(f"  buffer_load_dword v{V_DUM}, v5, {R(R_WS)}, s{T0+3} offen")
            a(f"  s_lshl_b32 s{T0+3}, s{S_BG}, 13")
            a(f"  s_add_u32 s{T0+3}, s{T0+3}, {WS_ML}")
            a(f"  buffer_load_dword v{V_DUM}, v5, {R(R_WS)}, s{T0+3} offen")
            a(f"  s_lshl_b32 s{T0+3}, s{S_B}, 20")
            a(f"  s_lshl_b32 s{T0+4}, s{S_J}, 18")
            a(f"  s_add_u32 s{T0+3}, s{T0+3}, s{T0+4}")
            a(f"  s_add_u32 s{T0+3}, s{T0+3}, {WS_PO}")
            a(f"  buffer_load_dword v{V_DUM}, v5, {R(R_WS)}, s{T0+3} offen")
            a(f"  s_lshl_b32 s{T0+3}, s{S_G}, 19")
            a(f"  s_add_u32 s{T0+4}, s{P_WO}, s{T0+3}")
            a(f"  s_addc_u32 s{T0+5}, s{P_WO+1}, 0")
            a(f"  global_load_dword v{V_DUM}, v5, s[{T0+4}:{T0+5}]")
            fifo.push('T', 4)
    AF, BF, ACC = 32, 64, 128
    def reads(kc):
        out = []
        slot = kc % NCH; buf = kc & 1
        wo = WSLOT[slot] - (L_K + 0x8000)
        for ks in range(4):
            for rd in range(2):
                off = wo + ks*4096 + rd*1024
                out.append(f"  ds_read_b64_tr_b16 {vr(AF+buf*16+ks*4+rd*2,2)}, v{VWA+(off>>16)} offset:{off & 65535}")
            for qt in range(2):
                out.append(f"  ds_read_b128 {vr(BF+buf*32+ks*8+qt*4,4)}, v{VXA+ks} offset:{slot*8192+qt*4096}")
        return out
    if 'p1st' in opt.bench: stamp(a, "before C0 wait")
    a(f"  s_waitcnt vmcnt({fifo.after([('C',0)])})")
    a("  s_barrier")
    if 'p1st' in opt.bench: stamp(a, "C0 landed")
    emit(reads(0))
    kvpro = list(opt.kvpro)
    for c in range(8):
        if c + 1 < 8:
            a(f"  s_waitcnt vmcnt({fifo.after([('C',c+1)])}) lgkmcnt(0)")
            a("  s_barrier")
            if 'p1st' in opt.bench: stamp(a, f"C{c+1} landed")
            if c == 3:
                Ln = newlabel("nonce"); Lnx = newlabel("noncex"); Lnc = newlabel("noncechk")
                a(f"  s_mov_b32 s{S_SPIN}, {opt.timeout}")
                a(f"  s_branch {Lnc}")
                a(f"{Ln}:")
                a(f"  buffer_load_dword v8, v5, {R(R_DBG)}, 0 offen sc1")
                a(f"  s_sub_u32 s{S_SPIN}, s{S_SPIN}, 1")
                a(f"  s_cbranch_scc1 {Lnx}")
                a(f"  s_waitcnt vmcnt(0)")
                a(f"{Lnc}:")
                a(f"  v_readfirstlane_b32 s{S_N}, v8")
                a(f"  s_nop 3")
                a(f"  s_cmp_eq_u32 s{S_N}, 0")
                a(f"  s_cbranch_scc1 {Ln}")
                a(f"{Lnx}:")
                Lw = newlabel("hw"); Lwd = newlabel("hwd")
                a(f"  s_lshl_b32 s{T0+2}, s{S_BG}, 7")
                a(f"  s_lshl_b32 s{T0+3}, s{S_J}, 2")
                a(f"  s_add_u32 s{T0+2}, s{T0+2}, s{T0+3}")
                a(f"  s_add_u32 s{T0+2}, s{T0+2}, {HL_OFF}")
                a(f"  s_cmp_lg_u32 s{S_W}, 0")
                a(f"  s_cbranch_scc1 {Lw}")
                a(f"  s_or_b32 s{T0+3}, s{S_N}, s{S_XCC}")
                a(f"  v_mov_b32 v8, s{T0+3}")
                a(f"  s_mov_b64 exec, 1")
                a(f"  buffer_store_dword v8, v5, {R(R_WS)}, s{T0+2} offen sc0 sc1")
                a(f"  s_mov_b64 exec, -1")
                a(f"  s_branch {Lwd}")
                a(f"{Lw}:")
                a(f"  buffer_load_dword v{V_DUM}, v5, {R(R_DBG)}, 0 offen")
                a(f"{Lwd}:")
                fifo.push('H')
        else:
            a("  s_waitcnt lgkmcnt(0)")
        fill = []
        if c + 1 < 8: fill += reads(c + 1)
        dm = []
        if c + 3 < 8: dm += chunk_ops(c + 3)
        if c == 0:
            dm += [f"  v_mov_b32 v5, 0", f"  buffer_load_dword v8, v5, {R(R_DBG)}, 0 offen sc1"]
            fifo.push('NL')
        if c == opt.hlat:
            dm += [f"  s_lshl_b32 s{T0+2}, s{S_BG}, 7", f"  s_add_u32 s{T0+2}, s{T0+2}, {HL_OFF}",
                   f"  buffer_load_dwordx4 v[4:7], v5, {R(R_WS)}, s{T0+2} offen sc1"]
            fifo.push('HL')
        for (cc, kind, i) in kvpro:
            if cc == c: dm += (dmaK(i) if kind == 'K' else dmaV(i))
        buf = c & 1
        mf = []
        for ks in range(4):
            for qt in range(2):
                cc_ = vr(ACC+16*qt,16) if (c or ks) else "0"
                mf.append(f"  v_mfma_f32_32x32x16_bf16 {vr(ACC+16*qt,16)}, {vr(AF+buf*16+ks*4,4)}, {vr(BF+buf*32+ks*8+qt*4,4)}, {cc_}")
        allf = fill + dm
        n = len(mf)
        for i_, m_ in enumerate(mf):
            a(m_)
            lo = len(allf)*i_//n; hi = len(allf)*(i_+1)//n
            emit(allf[lo:hi])
    Lh = newlabel("hello"); Lhx = newlabel("hellox"); Lh2 = newlabel("hellochk")
    a(f"  s_mov_b32 s{S_SPIN}, {opt.timeout}")
    a(f"  s_waitcnt vmcnt({fifo.after(['HL'])})")
    a(f"  s_branch {Lh2}")
    a(f"{Lh}:")
    a(f"  buffer_load_dwordx4 v[4:7], v5x, {R(R_WS)}, s{T0+2} offen sc1".replace("v5x", "v1"))
    a(f"  s_sub_u32 s{S_SPIN}, s{S_SPIN}, 1")
    a(f"  s_cbranch_scc1 {Lhx}")
    a(f"  s_waitcnt vmcnt(0)")
    a(f"{Lh2}:")
    a(f"  v_mov_b32 v1, 0")
    a(f"  v_xor_b32 v4, s{S_N}, v4")
    a(f"  v_xor_b32 v5, s{S_N}, v5")
    a(f"  v_xor_b32 v6, s{S_N}, v6")
    a(f"  v_xor_b32 v7, s{S_N}, v7")
    a(f"  v_or_b32 v8, v4, v5")
    a(f"  v_or3_b32 v8, v8, v6, v7")
    a(f"  s_nop 0")
    a(f"  v_readfirstlane_b32 s{T0+3}, v8")
    a(f"  s_nop 3")
    a(f"  s_cmp_gt_u32 s{T0+3}, 7")
    a(f"  s_cbranch_scc1 {Lh}")
    a(f"{Lhx}:")
    a(f"  v_xor_b32 v4, s{S_XCC}, v4")
    a(f"  v_xor_b32 v5, s{S_XCC}, v5")
    a(f"  v_xor_b32 v6, s{S_XCC}, v6")
    a(f"  v_xor_b32 v7, s{S_XCC}, v7")
    a(f"  v_or_b32 v8, v4, v5")
    a(f"  v_or3_b32 v8, v8, v6, v7")
    a(f"  s_nop 0")
    a(f"  v_readfirstlane_b32 s{T0+3}, v8")
    a(f"  s_nop 3")
    a(f"  s_cmp_eq_u32 s{T0+3}, 0")
    a(f"  s_cselect_b32 s{S_LOC}, 1, 0")
    if opt.force_global:
        a(f"  s_mov_b32 s{S_LOC}, 0")
    a(f"  s_mov_b32 s{sO}, {f32hex(SCALE)}")
    for i in range(32):
        a(f"  v_mul_f32 v{ACC+i}, s{sO}, v{ACC+i}")
    for qt in range(2):
        for s in range(2):
            for p in range(4):
                r = ACC + 16*qt + 8*s + 2*p
                a(f"  v_cvt_pk_bf16_f32 v{32+qt*8+s*4+p}, v{r}, v{r+1}")
    if 'p2st' not in opt.bench and 'tailst' not in opt.bench: stamp(a, "P1 done")
    if 'p1st' in opt.bench:
        stamp_flush(a); a("L_done:"); a("  s_endpgm"); a(kernel_desc(KNAME, 512, 102, 256)); return a.text()
    def qst(fl):
        for qt in range(2):
            for s in range(2):
                a(f"  s_add_u32 s{T0+2}, s{T0+1}, {WS_QF + qt*8192+s*1024}")
                a(f"  buffer_store_dwordx4 {vr(32+qt*8+s*4,4)}, v{V_L16}, {R(R_WS)}, s{T0+2} offen{fl}")
    dual(a, qst)
    fifo.push('QS', 4)
    for kind, i in opt.kvmid:
        emit(dmaK(i) if kind == 'K' else dmaV(i))
    a("""  v_and_b32 v4, 31, v0
  v_lshrrev_b32 v5, 5, v0
  v_and_b32 v6, 15, v0""")
    for ks in range(8):
        a(f"  v_add_u32 v7, {2*ks}, v5")
        a(f"  v_xor_b32 v7, v7, v6")
        a(f"  v_lshlrev_b32 v7, 4, v7")
        a(f"  v_lshl_add_u32 v{VKA+ks}, v4, 8, v7")
    a(f"  s_lshl_b32 s{T0+2}, s{S_BG}, 7")
    a(f"  s_lshl_b32 s{T0+3}, s{S_J}, 4")
    a(f"  s_add_u32 s{T0+3}, s{T0+3}, s{T0+2}")
    a(f"  s_lshl_b32 s{T0+4}, s{S_W}, 2")
    a(f"  s_add_u32 s{T0+3}, s{T0+3}, s{T0+4}")
    a(f"  s_add_u32 s{T0+3}, s{T0+3}, {FQ_OFF}")
    a(f"  s_waitcnt vmcnt({fifo.after(['QS'])})")
    set_flag(a, f"s{T0+3}")
    if 'p2st' not in opt.bench and 'tailst' not in opt.bench: stamp(a, "Q published")
    for t in range(4):
        tr_addr(a, VVA+t, t, False, 'pv', 4, base=L_V)
    a(f"  s_lshl_b32 s{T0+3}, s{S_W}, 4")
    a(f"  s_add_u32 s{T0+3}, s{T0+3}, s{T0+2}")
    a(f"  s_add_u32 s{T0+3}, s{T0+3}, {FQ_OFF}")
    a(f"  s_lshl_b32 s{T0+4}, s{S_G}, 19")
    a(f"  s_lshl_b32 s{T0+5}, s{S_J}, 8")
    a(f"  s_add_u32 s{T0+4}, s{T0+4}, s{T0+5}")
    srd(a, R_WO, P_WO, f"s{T0+4}", "0x400000")
    a(f"  s_sub_u32 s{R_WO+2}, s{R_WO+2}, s{T0+4}")
    sWOp = T0+6
    for p in range(4):
        a(f"  s_add_u32 s{sWOp+p}, s{S_J}, {p}")
        a(f"  s_and_b32 s{sWOp+p}, s{sWOp+p}, 3")
        a(f"  s_lshl_b32 s{sWOp+p}, s{sWOp+p}, 17")
    sMB, sML = T0+13, T0+14
    a(f"  s_lshl_b32 s{sMB}, s{S_BG}, 2")
    a(f"  s_add_u32 s{sMB}, s{sMB}, s{S_W}")
    a(f"  s_lshl_b32 s{sMB}, s{sMB}, 2")
    a(f"  s_add_u32 s{sMB}, s{sMB}, s{S_J}        ; (bg*4+w)*4+j")
    a(f"  s_lshl_b32 s{sML}, s{sMB}, 9")
    a(f"  s_add_u32 s{sML}, s{sML}, {WS_ML}")
    a(f"  s_lshl_b32 s{sMB}, s{sMB}, 14")
    a(f"  s_add_u32 s{sMB}, s{sMB}, {WS_MB}")
    sMODE = T0+12
    a(f"  s_xor_b32 s{sMODE}, s{S_LOC}, 1")
    a(f"  s_cmp_eq_u32 s{S_W}, s{S_J}")
    a(f"  s_cselect_b32 s{sMODE}, 2, s{sMODE}")
    VT4, VT16, VWT = 235, 236, 234
    a(f"  v_and_b32 v{VT4}, 3, v0")
    a(f"  v_lshlrev_b32 v{VT4}, 7, v{VT4}         ; (lane&3)*128")
    a(f"  v_and_b32 v{VT16}, 15, v0")
    a(f"  s_cselect_b32 s{S_TILE}, 0, 128")
    a(f"  v_mul_u32_u24 v{VT16}, s{S_TILE}, v{VT16}")
    a(f"  v_bfe_u32 v4, v0, 3, 2")
    a(f"  v_and_b32 v5, 7, v0")
    a(f"  v_lshlrev_b32 v5, 7, v5")
    a(f"  v_lshl_add_u32 v{VWT}, v4, 10, v5")
    sOFp = T0+11
    a(f"  s_lshl_b32 s{sOFp}, s{S_B}, 5")
    a(f"  s_lshl_b32 s{S_TILE}, s{S_G}, 2")
    a(f"  s_add_u32 s{sOFp}, s{sOFp}, s{S_TILE}")
    a(f"  s_add_u32 s{sOFp}, s{sOFp}, s{S_J}")
    a(f"  s_lshl_b32 s{sOFp}, s{sOFp}, 14")
    a(f"  s_add_u32 s{sOFp}, s{sOFp}, s{S_LW}")
    a(f"  s_add_u32 s{sOFp}, s{sOFp}, {WS_OF}")
    poll(a, f"s{T0+3}", 4)
    fifo.ops = []
    a(f"  s_add_u32 s{T0+1}, s{T0}, s{S_W}")
    a(f"  s_lshl_b32 s{T0+1}, s{T0+1}, 14")
    for qt in range(2):
        for ks in range(8):
            off = qt*8192 + ks*1024
            if (off & 4095) == 0:
                a(f"  s_add_u32 s{T0+2}, s{T0+1}, {WS_QF + off}")
            a(f"  buffer_load_dwordx4 {ar(AQ+qt*32+ks*4,4)}, v{V_L16}, {R(R_WS)}, s{T0+2} offen offset:{off & 4095} sc1")
    fifo.push('Q', 16)
    a("  s_barrier")
    for l in [f"  ds_read_b128 {ar(AK+ks*4,4)}, v{VKA+ks} offset:{L_K}" for ks in range(8)]: a(l)
    for kind, i in opt.kvpost:
        emit(dmaK(i) if kind == 'K' else dmaV(i))
    NSTEP = 16
    def readK(i):
        if 'nolds' in opt.bench and i > 1: return []
        return [f"  ds_read_b128 {ar(AK+ks*4,4)}, v{VKA+ks} offset:{L_K+(i%RKN)*8192}" for ks in range(8)]
    def readV(i):
        out = []
        for s in range(2):
            for t in range(4):
                for rd in range(2):
                    out.append(f"  ds_read_b64_tr_b16 {ar(AV+(t*2+s)*4+rd*2,2)}, v{VVA+t} offset:{(i%RVN)*8192+s*4096+rd*2048}")
        return out
    def qk(i, first=False):
        buf = i & 1; out = []
        for qt in range(2):
            for ks in range(8):
                d = vr(VS+buf*32+qt*16, 16)
                c = d if ks > 0 else ("0" if first else vr(VN+qt*16, 16))
                out.append(f"  v_mfma_f32_32x32x16_bf16 {d}, {ar(AK+ks*4,4)}, {ar(AQ+qt*32+ks*4,4)}, {c}")
        return out
    def pv(i):
        buf = i & 1; out = []
        for qt in range(2):
            for s in range(2):
                for t in range(4):
                    d = Oreg(t, qt)
                    c = "0" if (i == 0 and s == 0) else d
                    out.append(f"  v_mfma_f32_32x32x16_bf16 {d}, {ar(AV+(t*2+s)*4,4)}, {vr(VP+buf*16+qt*8+s*4,4)}, {c}")
        return out
    def lmf(i, qt, s):
        buf = i & 1
        d = vr(VLA+qt*4, 4)
        c = "0" if (i == 0 and s == 0) else d
        return f"  v_mfma_f32_16x16x32_bf16 {d}, {vr(VONE,4)}, {vr(VP+buf*16+qt*8+s*4,4)}, {c}"
    def sm(i, qt):
        buf = i & 1
        r0 = VS+buf*32+qt*16
        groups = []
        for k in range(17):
            g = []
            if k < 16: g.append(f"  v_exp_f32 v{r0+k}, v{r0+k}")
            if k == 16 and opt.lmfma: g.append("  s_nop 0")
            if k >= 1 and not opt.lmfma: g.append(f"  v_add_f32 v{VL+qt}, v{VL+qt}, v{r0+k-1}")
            if k >= 2 and k % 2 == 0:
                p = k//2 - 1
                g.append(f"  v_cvt_pk_bf16_f32 v{VP+buf*16+qt*8+p}, v{r0+2*p}, v{r0+2*p+1}")
            groups.append(g)
        return groups
    def block(mfmas, groups, extra, pre=None, extra_start=0, post=None):
        n = len(mfmas)
        for i, mf in enumerate(mfmas):
            a(mf)
            if post and i in post: a(post[i])
            if pre and i in pre:
                for l in pre[i]: a(l)
            if groups:
                for l in groups[i]: a(l)
            if i >= extra_start and extra:
                span = n - extra_start
                lo = (len(extra) * (i - extra_start)) // span
                hi = (len(extra) * (i - extra_start + 1)) // span
                for l in extra[lo:hi]: a(l)
        if groups:
            for l in groups[16]: a(l)
    WOLOC = [L_X + u*8192 for u in range(4)] + [L_K + s_*8192 for s_ in range(8)] + [L_V + s_*8192 for s_ in range(4)]
    avail = {u: 0 for u in range(4)}
    for s_ in range(8): avail[4+s_] = 7+s_
    for s_ in range(4): avail[12+s_] = 9+s_
    wo_at = {}
    for u, it in zip(range(16), opt.wosched):
        assert it >= avail[u], (u, it)
        wo_at.setdefault(it, []).append(u)
    sWOp = T0+6
    sMB, sML = T0+13, T0+14
    sMODE = T0+12
    VT4, VT16, VWT = 235, 236, 234
    sOFp = T0+11
    def dmaWO(u):
        out = []
        for ii in range(2):
            out.append(f"  s_add_u32 m0, s{S_LW}, {WOLOC[u] + ii*1024}")
            out.append(f"  s_add_u32 s{S_TILE}, s{sWOp+(u>>2)}, {(u&3)*32768 + ii*4096}")
            out.append(f"  buffer_load_dwordx4 v{VWOD}, {R(R_WO)}, s{S_TILE} offen lds")
        fifo.push(('W', u), 2)
        return out
    tl = {}
    def addt(it, g): tl.setdefault(it, []).append(g)
    if opt.wotouch >= 0:
        addt(opt.wotouch, [f"  s_lshl_b32 s{S_TILE}, s{S_T32}, 2", f"  s_add_u32 s{S_TILE}, s{S_TILE}, s{S_W}", f"  s_lshl_b32 s{S_TILE}, s{S_TILE}, 12",
                           f"  buffer_load_dword v{V_DUM}, v{VWT}, {R(R_WO)}, s{S_TILE} offen"])
    if 'notouch2' not in opt.bench:
        for n in range(8):
            addt(opt.mbtouch[n * len(opt.mbtouch) // 8], [f"  s_add_u32 s{S_TILE}, s{sMB}, {n*2048}", f"  buffer_load_dword v{V_DUM}, v{VT16}, {R(R_WS)}, s{S_TILE} offen"])
        addt(opt.fltouch, [f"  buffer_load_dword v{V_DUM}, v{VT4}, {R(R_WS)}, s{sML} offen"])
        addt(opt.fltouch, [f"  s_lshl_b32 s{S_TILE}, s{S_BG}, 9", f"  s_add_u32 s{S_TILE}, s{S_TILE}, {F1_OFF}",
                   f"  buffer_load_dword v{V_DUM}, v{VT4}, {R(R_WS)}, s{S_TILE} offen"])
        addt(opt.fltouch, [f"  s_lshl_b32 s{S_TILE}, s{S_BG}, 7", f"  s_add_u32 s{S_TILE}, s{S_TILE}, {F2_OFF}",
                   f"  buffer_load_dword v{V_DUM}, v{V_FL}, {R(R_WS)}, s{S_TILE} offen"])
        if opt.oftouch >= 0:
            addt(opt.oftouch, [f"  buffer_load_dword v{V_DUM}, v{VMBT}, {R(R_WS)}, s{sOFp} offen"])
    dums = [252, 253, 254, 255, 237, 238, 239, 9]
    dcnt = [0]
    def touches(i):
        out = []
        for g in tl.get(i, []):
            d = dums[dcnt[0] % len(dums)] if 'nodumrot' not in opt.bench else V_DUM
            dcnt[0] += 1
            out += [x.replace(f"buffer_load_dword v{V_DUM},", f"buffer_load_dword v{d},") for x in g]; fifo.push('T')
        return out
    if opt.lmfma:
        a(f"  v_and_b32 v4, 15, v0")
        a(f"  v_bfe_u32 v5, v0, 4, 1")
        a(f"  v_cmp_eq_u32 vcc, v4, v5")
        a(f"  v_mov_b32 v6, 0x3f803f80")
        a(f"  s_nop 1")
        a(f"  v_cndmask_b32 v{VONE}, 0, v6, vcc")
        for k in range(1, 4): a(f"  v_mov_b32 v{VONE+k}, v{VONE}")
    if 'tailst' not in opt.bench: stamp(a, "P2 start")
    if 'p2st' in opt.bench: a("  s_memtime s[14:15]")
    a(f"  s_waitcnt vmcnt({fifo.after(['Q'])}) lgkmcnt(0)")
    emit(qk(0, True))
    k1late = ('K', 1) in opt.kvpost
    if not k1late: emit(readK(1))
    a("  s_nop 7")
    for qt in range(2):
        r = VS + qt*16
        a(f"  v_max3_f32 v{VM+qt}, v{r}, v{r+1}, v{r+2}")
        for k in range(3, 15, 2):
            a(f"  v_max3_f32 v{VM+qt}, v{VM+qt}, v{r+k}, v{r+k+1}")
        a(f"  v_max_f32 v{VM+qt}, v{VM+qt}, v{r+15}")
        a(f"  v_mov_b32 v4, v{VM+qt}")
        a("  s_nop 1")
        a(f"  v_permlane32_swap_b32 v{VM+qt}, v4")
        a("  s_nop 1")
        a(f"  v_max_f32 v{VM+qt}, v{VM+qt}, v4")
        for k in range(16):
            a(f"  v_sub_f32 v{VN+qt*16+k}, 0, v{VM+qt}")
        for k in range(16):
            a(f"  v_sub_f32 v{r+k}, v{r+k}, v{VM+qt}")
    a(f"  v_mov_b32 v{VL}, 0")
    a(f"  v_mov_b32 v{VL+1}, 0")
    if k1late:
        a(f"  s_waitcnt vmcnt({fifo.after([('K',1)])})")
        a("  s_barrier")
        emit(readK(1))
    for g in sm(0, 0): emit(g)
    allpro = [(k_, i_) for (_, k_, i_) in opt.kvpro] + list(opt.kvmid) + list(opt.kvpost)
    nextK = [1 + max(i_ for k_, i_ in allpro if k_ == 'K')]
    nextV = [1 + max(i_ for k_, i_ in allpro if k_ == 'V')]
    for i in range(NSTEP):
        need = [('V', i)] + ([('K', i+2)] if i+2 < NSTEP else [])
        sync = [f"  s_waitcnt vmcnt({fifo.after(need)}) lgkmcnt(0)", "  s_barrier"]
        dma = []
        cand = []
        if nextK[0] < NSTEP and nextK[0] - RKN <= i + 1: pass
        cnt = 0
        MAXI = opt.maxi[min(i, len(opt.maxi)-1)]
        while cnt < MAXI:
            kfree = nextK[0] < NSTEP and (nextK[0] < RKN or nextK[0] - RKN <= i + 1)
            vfree = nextV[0] < NSTEP and (nextV[0] < RVN or nextV[0] - RVN <= i - 1)
            if not kfree and not vfree: break
            if kfree and (not vfree or nextK[0] - 2 <= nextV[0]):
                dma += dmaK(nextK[0]); nextK[0] += 1
            else:
                dma += dmaV(nextV[0]); nextV[0] += 1
            cnt += 1
        if 'nowo' not in opt.bench:
            for u in wo_at.get(i, []): dma += dmaWO(u)
        dma += touches(i)
        if i + 1 < NSTEP:
            a("  s_waitcnt lgkmcnt(0)")
            rk = readK(i+2) if i+2 < NSTEP else []
            rv = readV(i)
            if opt.dmapos == 'B0':
                exA, exB = rv, dma + rk
            elif opt.dmapos == 'B1':
                exA, exB = rv, rk + dma
            elif opt.dmapos == 'A':
                exA, exB = rv + dma, rk
            elif opt.dmapos == 'AB':
                h = len(dma) // 2
                while h < len(dma) and not dma[h].startswith("  s_add_u32 m0"): h += 1
                exA, exB = rv + dma[:h], rk + dma[h:]
            block(qk(i+1), sm(i, 1), exA, pre={0: sync}, extra_start=1)
            a("  s_waitcnt lgkmcnt(0)")
            block(pv(i), sm(i+1, 0), exB, extra_start=0,
                  post=({3: lmf(i,0,0), 7: lmf(i,0,1), 11: lmf(i,1,0), 15: lmf(i,1,1)} if opt.lmfma else None))
        else:
            last_dma = dma
            last_sync = sync
        if 'p2st' in opt.bench and i in (0, 2, 4, 6, 8, 11, 13): stamp(a, f"it{i} done")
    VPK = 32
    OWN = L_V + 5*8192
    VOWN = 8
    def put(regs_off, n_list, qt):
        Lg = newlabel("pg"); Ll = newlabel("pl"); Le = newlabel("pe")
        out = [f"  s_cmp_eq_u32 s{sMODE}, 1", f"  s_cbranch_scc1 {Lg}", f"  s_cmp_eq_u32 s{sMODE}, 2", f"  s_cbranch_scc1 {Ll}"]
        def st(fl):
            o = []
            for n in n_list:
                off = qt*8192 + n*1024
                o.append(f"  s_add_u32 s{T0+4}, s{sMB}, {off}")
                o.append(f"  buffer_store_dwordx4 {vr(regs_off+n*4,4)}, v{V_L16}, {R(R_WS)}, s{T0+4} offen{fl}")
            return o
        out += st("") + [f"  s_branch {Le}", f"{Lg}:"] + st(" sc0 sc1") + [f"  s_branch {Le}", f"{Ll}:"]
        for n in n_list:
            out.append(f"  ds_write_b128 v{VOWN}, {vr(regs_off+n*4,4)} offset:{qt*8192+n*1024}")
        out.append(f"{Le}:")
        return out
    def cvt0(t):
        return [f"  v_cvt_pk_bf16_f32 v{VPK+(t*2+s)*4+p}, v{VO0+t*16+s*8+2*p}, v{VO0+t*16+s*8+2*p+1}" for s in range(2) for p in range(4)]
    def cvt1(t):
        o = [f"  v_accvgpr_read_b32 v{96+k}, a{AO1+t*16+k}" for k in range(16)]
        o += [f"  v_cvt_pk_bf16_f32 v{VPK+32+(t*2+s)*4+p}, v{96+s*8+2*p}, v{96+s*8+2*p+1}" for s in range(2) for p in range(4)]
        return o
    i = NSTEP - 1
    emit(last_sync)
    emit(readV(i))
    a(f"  v_add_u32 v{VOWN}, {hex(OWN)}, v{V_L16}")
    G = sm(i, 1)
    for g in G[:5]: emit(g)
    emit(last_dma)
    a("  s_waitcnt lgkmcnt(0)")
    pvl = pv(i)
    rest = [x for g in G[5:] for x in g]
    for n_, m_ in enumerate(pvl[:8]):
        a(m_)
        if opt.lmfma and n_ in (3, 7): a(lmf(i, 0, n_ >> 2))
        emit(rest[len(rest)*n_//8: len(rest)*(n_+1)//8])
    early = 'noearly' not in opt.bench
    for n_, m_ in enumerate(pvl[8:]):
        a(m_)
        if opt.lmfma and n_ in (0, 4): a(lmf(i, 1, n_ >> 2))
        if early and 2 <= n_ < 6:
            t = n_ - 2
            emit(cvt0(t))
            a("  s_nop 0")
            emit(put(VPK, [2*t, 2*t+1], 0))
    stamp(a, "P2 done")
    if 'p2st' in opt.bench:
        a(f"  s_memtime s[{T0}:{T0+1}]")
        a("  s_waitcnt lgkmcnt(0)")
        k = nstamp[0]; nstamp[0] += 1
        a(f"  s_sub_u32 s{T0}, s{T0}, s14")
        a(f"  s_mul_i32 s{T0}, s{T0}, 100")
        a(f"  s_add_u32 s{S_T+2*k}, s{S_T}, s{T0}")
        a(f"  s_addc_u32 s{S_T+2*k+1}, s{S_T+1}, 0")
    if 'p2exit' in opt.bench:
        stamp_flush(a); a("L_done:"); a("  s_endpgm"); a(kernel_desc(KNAME, 512, 102, 256)); return a.text()
    def lreduce():
        for qt in range(2):
            a(f"  v_mov_b32 v4, v{VL+qt}")
            a("  s_nop 1")
            a(f"  v_permlane32_swap_b32 v{VL+qt}, v4")
            a("  s_nop 1")
            a(f"  v_add_f32 v{VL+qt}, v{VL+qt}, v4")
    if opt.lmfma:
        a("  s_nop 7")
        for qt in range(2):
            a(f"  v_permlane16_swap_b32 v{VLA+qt*4}, v{VLA+qt*4+1}")
        a("  s_nop 1")
        for qt in range(2):
            a(f"  v_mov_b32 v{VL+qt}, v{VLA+qt*4}")
    else:
        lreduce()
    a(f"  v_max_f32 v4, v{VL}, v{VL+1}")
    a(f"  v_add_f32 v5, v{VL}, v{VL+1}")
    a(f"  s_mov_b32 s{T0}, {f32hex(2.0**24)}")
    a(f"  v_cmp_nge_f32 vcc, s{T0}, v4        ; !(2^24 >= max(l0,l1))")
    a(f"  v_cmp_u_f32 s[{T0+2}:{T0+3}], v5, v5")
    a("  s_nop 4")
    a(f"  s_or_b64 vcc, vcc, s[{T0+2}:{T0+3}]")
    a(f"  s_cselect_b32 s{T0+1}, 1, 0")
    if opt.force_safe:
        a(f"  s_mov_b32 s{T0+1}, 1")
    VOTE = L_V + 4*8192
    a(f"  v_mov_b32 v4, s{T0+1}")
    a(f"  s_lshl_b32 s{T0+2}, s{S_W}, 2")
    a(f"  v_mov_b32 v5, s{T0+2}")
    a(f"  v_add_u32 v5, {hex(VOTE)}, v5")
    a(f"  ds_write_b32 v5, v4")
    def publish_rest(with_q0):
        if with_q0:
            for t in range(4): emit(cvt0(t))
            a("  s_nop 0")
            emit(put(VPK, list(range(8)), 0))
        for t in range(4):
            emit(cvt1(t))
            a("  s_nop 0")
            emit(put(VPK+32, [2*t, 2*t+1], 1))
        a(f"  v_mov_b32 v4, v{VM}")
        a(f"  v_mov_b32 v5, v{VL}")
        a(f"  v_mov_b32 v6, v{VM+1}")
        a(f"  v_mov_b32 v7, v{VL+1}")
        def mlst(fl):
            a(f"  s_mov_b32 exec_hi, 0")
            a(f"  buffer_store_dwordx4 v[4:7], v{V_L16}, {R(R_WS)}, s{sML} offen{fl}")
            a(f"  s_mov_b32 exec_hi, -1")
        dual(a, mlst)
    a("  s_waitcnt lgkmcnt(0)")
    a("  s_barrier")
    a(f"  v_mov_b32 v1, {hex(VOTE)}")
    a(f"  ds_read_b128 v[240:243], v1")
    publish_rest(not early)
    a(f"  s_lshl_b32 s{T0+2}, s{S_BG}, 9")
    a(f"  s_lshl_b32 s{T0+3}, s{S_W}, 7")
    a(f"  s_add_u32 s{T0+3}, s{T0+3}, s{T0+2}")
    a(f"  s_lshl_b32 s{T0+4}, s{S_J}, 2")
    a(f"  s_add_u32 s{T0+3}, s{T0+3}, s{T0+4}")
    a(f"  s_add_u32 s{T0+3}, s{T0+3}, {F1_OFF}")
    a("  s_waitcnt lgkmcnt(0)")
    a("  v_or_b32 v240, v240, v241")
    a("  v_or3_b32 v240, v240, v242, v243")
    a("  s_nop 0")
    a(f"  v_readfirstlane_b32 s{T0+1}, v240")
    a("  s_nop 3")
    a(f"  s_cmp_lg_u32 s{T0+1}, 0")
    a(f"  s_cbranch_scc1 L_safe")
    a("L_safe_back:")
    a("  s_waitcnt vmcnt(0) lgkmcnt(0)")
    set_flag(a, f"s{T0+3}")
    if 'tailst' not in opt.bench: stamp(a, "H1 published")
    a("  s_barrier")
    VPA, VML, VAC = 32, 128, 96
    a(f"  s_lshl_b32 s{T0+4}, s{S_W}, 11")
    a(f"  v_add_u32 v8, s{T0+4}, v{V_L16}")
    a(f"  v_add_u32 v8, {hex(OWN)}, v8")
    a(f"  s_lshl_b32 s{T0+3}, s{S_J}, 7")
    a(f"  s_add_u32 s{T0+3}, s{T0+3}, s{T0+2}")
    a(f"  s_add_u32 s{T0+3}, s{T0+3}, {F1_OFF}")
    for qt in range(2):
        for s in range(2):
            a(f"  ds_read_b128 {vr(208+(qt*2+s)*4,4)}, v8 offset:{qt*8192+s*1024}")
    a(f"  s_lshl_b32 s{T0}, s{S_BG}, 2")
    a(f"  s_add_u32 s{T0}, s{T0}, s{S_J}")
    a(f"  s_lshl_b32 s{T0}, s{T0}, 2             ; (bg*4+j)*4")
    a(f"  s_lshl_b32 s{T0+1}, s{T0}, 14")
    a(f"  s_add_u32 s{T0+1}, s{T0+1}, s{S_LW}    ; + 2w*1024")
    a(f"  s_lshl_b32 s{T0+2}, s{T0}, 9")
    a("  v_and_b32 v2, 31, v0")
    a("  v_lshlrev_b32 v2, 4, v2")
    VWR = 192
    a(f"  s_lshl_b32 s{T0+4}, s{S_W}, 2")
    tr_addr(a, VWR, f"s{T0+4}", True, 'pv', 4)
    a(f"  v_add_u32 v{VWR+1}, 0x10000, v{VWR}")
    a(f"  v_add_u32 v{VWR+2}, 0x20000, v{VWR}")
    for kk in range(32):
        for r_ in range(2):
            off = WOLOC[kk >> 1] + (kk & 1)*4096 + r_*2048
            a(f"  ds_read_b64_tr_b16 {ar(128+kk*4+r_*2,2)}, v{VWR+(off>>16)} offset:{off & 65535}")
        if kk % 4 == 3 and kk < 31:
            a("  s_waitcnt lgkmcnt(4)")
    poll(a, f"s{T0+3}", 4)
    if 'tailst' not in opt.bench: stamp(a, "H1 flags seen")
    for jp in range(4):
        a(f"  s_add_u32 s{T0+3}, s{T0+2}, {WS_ML + jp*512}")
        a(f"  buffer_load_dwordx4 {vr(VML+jp*4,4)}, v2, {R(R_WS)}, s{T0+3} offen sc1")
    for jp in range(4):
        Ls = newlabel("skipown")
        a(f"  s_cmp_eq_u32 s{S_J}, {jp}")
        a(f"  s_cbranch_scc1 {Ls}")
        for qt in range(2):
            for s in range(2):
                a(f"  s_add_u32 s{T0+3}, s{T0+1}, {WS_MB + jp*16384 + qt*8192 + s*1024}")
                a(f"  buffer_load_dwordx4 {vr(VPA+jp*16+(qt*2+s)*4,4)}, v{V_L16}, {R(R_WS)}, s{T0+3} offen sc1")
        a(f"{Ls}:")
    a("  s_waitcnt vmcnt(12)")
    for qt in range(2):
        m = lambda jp: VML+jp*4+qt*2
        l = lambda jp: VML+jp*4+qt*2+1
        a(f"  v_max3_f32 v4, v{m(0)}, v{m(1)}, v{m(2)}")
        a(f"  v_max_f32 v4, v4, v{m(3)}")
        for jp in range(4):
            a(f"  v_sub_f32 v{m(jp)}, v{m(jp)}, v4")
        for jp in range(4):
            a(f"  v_exp_f32 v{m(jp)}, v{m(jp)}")
        a("  s_nop 0")
        a(f"  v_mul_f32 v5, v{m(0)}, v{l(0)}")
        for jp in range(1, 4):
            a(f"  v_fmac_f32 v5, v{m(jp)}, v{l(jp)}")
        a(f"  v_rcp_f32 v5, v5")
        a("  s_nop 0")
        for jp in range(4):
            a(f"  v_mul_f32 v{m(jp)}, v{m(jp)}, v5")
    for jp in range(4):
        Ls = newlabel("ownsc")
        a(f"  s_cmp_lg_u32 s{S_J}, {jp}")
        a(f"  s_cbranch_scc1 {Ls}")
        a(f"  v_mov_b32 v144, v{VML+jp*4}")
        a(f"  v_mov_b32 v146, v{VML+jp*4+2}")
        a(f"{Ls}:")
    a(f"  s_mov_b32 s{T0+4}, 0xffff0000")
    def acc_from(src, sc0, sc1, first):
        k = 0
        for qt in range(2):
            sc = sc0 if qt == 0 else sc1
            for s in range(2):
                for p in range(4):
                    r = src + (qt*2+s)*4 + p
                    d = VAC + qt*16 + s*8 + 2*p
                    t = 4 + 2*(k & 1); k += 1
                    a(f"  v_lshlrev_b32 v{t}, 16, v{r}")
                    a(f"  v_and_b32 v{t+1}, s{T0+4}, v{r}")
                    if first:
                        a(f"  v_pk_mul_f32 v[{d}:{d+1}], v[{t}:{t+1}], v[{sc}:{sc+1}] op_sel_hi:[1,0]")
                    else:
                        a(f"  v_pk_fma_f32 v[{d}:{d+1}], v[{t}:{t+1}], v[{sc}:{sc+1}], v[{d}:{d+1}] op_sel_hi:[1,0,1]")
    a("  s_waitcnt lgkmcnt(0)")
    acc_from(208, 144, 146, True)
    a("  s_waitcnt vmcnt(0)")
    for jp in range(4):
        Ls = newlabel("skipown2")
        a(f"  s_cmp_eq_u32 s{S_J}, {jp}")
        a(f"  s_cbranch_scc1 {Ls}")
        acc_from(VPA+jp*16, VML+jp*4, VML+jp*4+2, False)
        a(f"{Ls}:")
    VOF = 176
    for qt in range(2):
        for s in range(2):
            for p in range(4):
                r = VAC + qt*16 + s*8 + 2*p
                a(f"  v_cvt_pk_bf16_f32 v{VOF+(qt*2+s)*4+p}, v{r}, v{r+1}")
    a(f"  s_lshl_b32 s{T0}, s{S_B}, 5")
    a(f"  s_lshl_b32 s{T0+1}, s{S_G}, 2")
    a(f"  s_add_u32 s{T0}, s{T0}, s{T0+1}       ; b*32+4g")
    def ofst(fl):
        for qt in range(2):
            for s in range(2):
                a(f"  s_add_u32 s{T0+2}, s{sOFp}, {qt*8192+s*1024}")
                a(f"  buffer_store_dwordx4 {vr(VOF+(qt*2+s)*4,4)}, v{V_L16}, {R(R_WS)}, s{T0+2} offen{fl}")
    dual(a, ofst)
    a("  s_barrier")
    a(f"  v_add_u32 v8, s{S_LW}, v{V_L16}")
    for qt in range(2):
        for s in range(2):
            a(f"  ds_write_b128 v8, {vr(VOF+(qt*2+s)*4,4)} offset:{qt*8192+s*1024}")
    a(f"  s_lshl_b32 s{T0+2}, s{S_BG}, 7")
    a(f"  s_lshl_b32 s{T0+3}, s{S_J}, 4")
    a(f"  s_add_u32 s{T0+3}, s{T0+3}, s{T0+2}")
    a(f"  s_lshl_b32 s{T0+4}, s{S_W}, 2")
    a(f"  s_add_u32 s{T0+3}, s{T0+3}, s{T0+4}")
    a(f"  s_add_u32 s{T0+3}, s{T0+3}, {F2_OFF}")
    a("  s_waitcnt vmcnt(0)")
    set_flag(a, f"s{T0+3}")
    stamp(a, "OF published")
    a("  s_waitcnt lgkmcnt(0)")
    a("  s_barrier")
    ACC = 128
    NB = 6
    def rdB(kk):
        p, ks = kk >> 3, kk & 7
        return [f"  ds_read_b128 {vr(32+((kk%NB)*2+qt)*4,4)}, v{V_L16} offset:{(p*16+qt*8+ks)*1024}" for qt in range(2)]
    def gemm(k0, k1):
        for kk in range(k0, min(k0+NB-1, k1)): emit(rdB(kk))
        for kk in range(k0, k1):
            if kk + NB - 1 < k1:
                emit(rdB(kk+NB-1))
                a(f"  s_waitcnt lgkmcnt({2*(NB-1)})")
            else:
                a(f"  s_waitcnt lgkmcnt({2*(k1-1-kk)})")
            for qt in range(2):
                c = vr(ACC+16*qt,16) if kk else "0"
                a(f"  v_mfma_f32_32x32x16_bf16 {vr(ACC+16*qt,16)}, {ar(128+kk*4,4)}, {vr(32+((kk%NB)*2+qt)*4,4)}, {c}")
    gemm(0, 8)
    a(f"  s_add_u32 s{T0+3}, s{T0+2}, {F2_OFF}")
    poll(a, f"s{T0+3}", 16)
    stamp(a, "H2 flags seen")
    a(f"  s_lshl_b32 s{T0+2}, s{S_W}, 12        ; w*4096")
    for p in range(1, 4):
        a(f"  s_add_u32 s{T0+1}, s{S_J}, {p}")
        a(f"  s_and_b32 s{T0+1}, s{T0+1}, 3")
        a(f"  s_add_u32 s{T0+1}, s{T0+1}, s{T0}")
        a(f"  s_lshl_b32 s{T0+1}, s{T0+1}, 14")
        a(f"  s_add_u32 s{T0+1}, s{T0+1}, s{T0+2}")
        for n in range(4):
            a(f"  s_add_u32 m0, s{T0+2}, {p*16384 + n*1024}")
            a(f"  s_add_u32 s{T0+3}, s{T0+1}, {WS_OF + n*1024}")
            a(f"  buffer_load_dwordx4 v{V_L16}, {R(R_WS)}, s{T0+3} offen sc1 lds")
    a("  s_waitcnt vmcnt(0)")
    a("  s_barrier")
    if 'tailst' in opt.bench: stamp(a, "OF landed"); a("  s_waitcnt lgkmcnt(0)")
    gemm(8, 32)
    if 'tailst' in opt.bench: stamp(a, "gemm done")
    a(f"  s_lshl_b32 s{T0}, s{S_B}, 2")
    a(f"  s_add_u32 s{T0}, s{T0}, s{S_J}        ; b*4+j")
    a(f"  s_lshl_b32 s{T0+1}, s{T0}, 3")
    a(f"  s_add_u32 s{T0+1}, s{T0+1}, s{S_G}")
    a(f"  s_lshl_b32 s{T0+1}, s{T0+1}, 15")
    a(f"  s_lshl_b32 s{T0+2}, s{S_W}, 13")
    a(f"  s_add_u32 s{T0+1}, s{T0+1}, s{T0+2}")
    a("  s_nop 7")
    for n in range(8):
        off = n*1024
        if (off & 4095) == 0:
            a(f"  s_add_u32 s{T0+2}, s{T0+1}, {WS_PO + off}")
        a(f"  buffer_store_dwordx4 {vr(ACC+n*4,4)}, v{V_L16}, {R(R_WS)}, s{T0+2} offen offset:{off & 4095} sc0 sc1")
    if 'tailst' in opt.bench: stamp(a, "PO stores issued")
    a("  s_waitcnt vmcnt(0)")
    a(f"  s_lshl_b32 s{T0+2}, s{T0}, 9")
    a(f"  s_lshl_b32 s{T0+3}, s{S_W}, 7")
    a(f"  s_add_u32 s{T0+3}, s{T0+3}, s{T0+2}")
    a(f"  s_lshl_b32 s{T0+4}, s{S_G}, 2")
    a(f"  s_add_u32 s{T0+3}, s{T0+3}, s{T0+4}")
    a(f"  s_add_u32 s{T0+3}, s{T0+3}, {F3_OFF}")
    set_flag(a, f"s{T0+3}", always_global=True)
    stamp(a, "PO published")
    a(f"  s_lshr_b32 s{T0+3}, s{S_G}, 1")
    a(f"  s_lshl_b32 s{T0+3}, s{T0+3}, 7")
    a(f"  s_add_u32 s{T0+3}, s{T0+3}, s{T0+2}")
    a(f"  s_add_u32 s{T0+3}, s{T0+3}, {F3_OFF}")
    a(f"  s_lshl_b32 s{T0}, s{T0}, 18")
    a(f"  s_lshl_b32 s{T0+1}, s{S_G}, 12")
    a(f"  s_add_u32 s{T0}, s{T0}, s{T0+1}")
    a(f"  s_lshl_b32 s{T0+2}, s{S_W}, 10")
    a(f"  s_add_u32 s{T0}, s{T0}, s{T0+2}")
    if opt.progressive:
        Lp = newlabel("p5"); Lx = newlabel("p5x")
        sDONE, sNEW = T0+5, T0+6
        a(f"  s_mov_b32 s{sDONE}, 0")
        a(f"  s_mov_b32 s{S_SPIN}, {opt.timeout}")
        a(f"{Lp}:")
        a(f"  buffer_load_dword v4, v{V_FL}, {R(R_WS)}, s{T0+3} offen sc1")
        a(f"  s_sub_u32 s{S_SPIN}, s{S_SPIN}, 1")
        a(f"  s_cbranch_scc1 {Lx}")
        a(f"  s_waitcnt vmcnt(0)")
        a(f"  v_cmp_eq_u32 vcc, s{S_N}, v4")
        a(f"  s_nop 4")
        a(f"  s_andn2_b32 s{sNEW}, vcc_lo, s{sDONE}")
        a(f"  s_and_b32 s{sNEW}, s{sNEW}, 0xff")
        a(f"  s_or_b32 s{sDONE}, s{sDONE}, s{sNEW}")
        for gp in range(8):
            Ls = newlabel("p5s")
            a(f"  s_bitcmp1_b32 s{sNEW}, {gp}")
            a(f"  s_cbranch_scc0 {Ls}")
            a(f"  s_add_u32 s{T0+2}, s{T0}, {WS_PO + gp*32768}")
            a(f"  buffer_load_dwordx4 {vr(16+gp*4,4)}, v{V_L16}, {R(R_WS)}, s{T0+2} offen sc1")
            a(f"{Ls}:")
        a(f"  s_cmp_lg_u32 s{sDONE}, 0xff")
        a(f"  s_cbranch_scc1 {Lp}")
        a(f"{Lx}:")
        if 'tailst' in opt.bench: stamp(a, "H3 flags seen")
    else:
        poll(a, f"s{T0+3}", 8)
        if 'tailst' in opt.bench: stamp(a, "H3 flags seen")
        for gp in range(8):
            a(f"  s_add_u32 s{T0+2}, s{T0}, {WS_PO + gp*32768}")
            a(f"  buffer_load_dwordx4 {vr(16+gp*4,4)}, v{V_L16}, {R(R_WS)}, s{T0+2} offen sc1")
    srd(a, R_OUT, P_OUT, None, "0x80000")
    a(f"  s_lshl_b32 s{T0+3}, s{S_B}, 6")
    a(f"  s_and_b32 s{T0+4}, s{S_G}, 1")
    a(f"  s_lshl_b32 s{T0+4}, s{T0+4}, 5")
    a(f"  s_add_u32 s{T0+3}, s{T0+3}, s{T0+4}")
    a(f"  s_lshl_b32 s{T0+3}, s{T0+3}, 10")
    a(f"  s_lshl_b32 s{T0+4}, s{S_J}, 7")
    a(f"  s_lshr_b32 s{T0+5}, s{S_G}, 1")
    a(f"  s_lshl_b32 s{T0+5}, s{T0+5}, 5")
    a(f"  s_add_u32 s{T0+4}, s{T0+4}, s{T0+5}")
    a(f"  s_lshr_b32 s{T0+5}, s{S_W}, 1")
    a(f"  s_lshl_b32 s{T0+5}, s{T0+5}, 4")
    a(f"  s_add_u32 s{T0+4}, s{T0+4}, s{T0+5}")
    a(f"  s_and_b32 s{T0+5}, s{S_W}, 1")
    a(f"  s_lshl_b32 s{T0+5}, s{T0+5}, 2")
    a(f"  s_add_u32 s{T0+4}, s{T0+4}, s{T0+5}")
    a(f"  s_lshl_b32 s{T0+4}, s{T0+4}, 1")
    a(f"  s_add_u32 s{T0+3}, s{T0+3}, s{T0+4}")
    a("""  v_and_b32 v2, 31, v0
  v_lshrrev_b32 v3, 5, v0
  v_lshlrev_b32 v2, 10, v2
  v_lshl_add_u32 v2, v3, 4, v2""")
    a("  s_waitcnt vmcnt(0)")
    if 'tailst' in opt.bench: stamp(a, "PO loaded")
    for k in range(4):
        for gp in range(1, 8):
            a(f"  v_add_f32 v{16+k}, v{16+k}, v{16+gp*4+k}")
    a("  v_cvt_pk_bf16_f32 v4, v16, v17")
    a("  v_cvt_pk_bf16_f32 v5, v18, v19")
    a("  s_nop 1")
    a(f"  buffer_store_dwordx2 v[4:5], v2, {R(R_OUT)}, s{T0+3} offen")
    if opt.stamps:
        a("  s_waitcnt vmcnt(0)")
        stamp(a, "end")
        stamp_flush(a)
        if 'dbgst' in opt.bench:
            a("  s_cmp_lg_u32 s3, 0")
            a("  s_cbranch_scc1 L_done")
            for wg, base, idx in [(0, 1, [1, 3, 4, 5, 7, 9, 10]), (133, 8, [1, 3, 4, 5, 7, 9, 10])]:
                Lx = newlabel("dbg")
                a(f"  s_cmp_lg_u32 s2, {wg}")
                a(f"  s_cbranch_scc1 {Lx}")
                a("  s_mov_b64 exec, 1")
                for n_, k in enumerate(idx):
                    a(f"  s_sub_u32 s{T0}, s{S_T+2*k}, s{S_T}")
                    a(f"  v_mov_b32 v4, s{T0}")
                    a(f"  v_mov_b32 v5, {4*(base+n_)}")
                    a(f"  buffer_store_dword v4, v5, {R(R_DBG)}, 0 offen")
                    a("  s_nop 1")
                a(f"{Lx}:")
    a("L_done:")
    a("  s_endpgm")
    a("L_safe:")
    SK, SV = L_V + 6*8192, L_V + 7*8192
    a("  s_waitcnt vmcnt(0)")
    a("  s_barrier")
    for ks in range(8):
        a(f"  v_add_u32 v{224+ks}, {hex(SK)}, v{VKA+ks}")
    for qt in range(2):
        a(f"  v_mov_b32 v{VM+qt}, 0xff800000      ; -inf")
        a(f"  v_mov_b32 v{VL+qt}, 0")
    for r in range(64):
        a(f"  v_mov_b32 v{VO0+r}, 0")
        a(f"  v_accvgpr_write_b32 a{AO1+r}, 0")
    sI = 7
    a(f"  s_mov_b32 s{sI}, 0")
    a("L_safe_loop:")
    a(f"  s_add_u32 m0, s{S_LW}, {SK}")
    a(f"  s_nop 0")
    for ii in range(2):
        a(f"  buffer_load_dwordx4 v{VKD+ii}, {R(R_K)}, s{sI} offen offset:{ii*1024} lds")
    a(f"  s_add_u32 m0, s{S_LW}, {SV}")
    a(f"  s_nop 0")
    for ii in range(2):
        a(f"  buffer_load_dwordx4 v{VVD}, {R(R_V)}, s{sI} offen offset:{ii*1024} lds")
    a("  s_waitcnt vmcnt(0)")
    a("  s_barrier")
    for ks in range(8):
        a(f"  ds_read_b128 {ar(AK+ks*4,4)}, v{224+ks}")
    for s in range(2):
        for t in range(4):
            for rd in range(2):
                a(f"  ds_read_b64_tr_b16 {ar(AV+(t*2+s)*4+rd*2,2)}, v{VVA+t} offset:{7*8192+s*4096+rd*2048}")
    a("  s_waitcnt lgkmcnt(0)")
    a("  s_barrier")
    for qt in range(2):
        for ks in range(8):
            d = vr(VS+qt*16, 16)
            a(f"  v_mfma_f32_32x32x16_bf16 {d}, {ar(AK+ks*4,4)}, {ar(AQ+qt*32+ks*4,4)}, {d if ks else '0'}")
    a("  s_nop 15")
    for qt in range(2):
        r = VS + qt*16
        a(f"  v_max3_f32 v4, v{r}, v{r+1}, v{r+2}")
        for k in range(3, 15, 2):
            a(f"  v_max3_f32 v4, v4, v{r+k}, v{r+k+1}")
        a(f"  v_max_f32 v4, v4, v{r+15}")
        a(f"  v_mov_b32 v5, v4")
        a("  s_nop 1")
        a(f"  v_permlane32_swap_b32 v4, v5")
        a("  s_nop 1")
        a(f"  v_max3_f32 v4, v4, v5, v{VM+qt}")
        a(f"  v_sub_f32 v5, v{VM+qt}, v4")
        a(f"  v_exp_f32 v5, v5")
        a(f"  v_mov_b32 v{VM+qt}, v4")
        a(f"  v_mul_f32 v{VL+qt}, v{VL+qt}, v5")
        for k in range(16):
            a(f"  v_sub_f32 v{r+k}, v{r+k}, v4")
        for k in range(16):
            a(f"  v_exp_f32 v{r+k}, v{r+k}")
        a("  s_nop 0")
        for k in range(16):
            a(f"  v_add_f32 v{VL+qt}, v{VL+qt}, v{r+k}")
        for p in range(8):
            a(f"  v_cvt_pk_bf16_f32 v{VP+qt*8+p}, v{r+2*p}, v{r+2*p+1}")
        for t in range(4):
            for k in range(16):
                if qt == 0:
                    a(f"  v_mul_f32 v{VO0+t*16+k}, v{VO0+t*16+k}, v5")
                else:
                    a(f"  v_accvgpr_read_b32 v6, a{AO1+t*16+k}")
                    a(f"  v_mul_f32 v6, v6, v5")
                    a(f"  v_accvgpr_write_b32 a{AO1+t*16+k}, v6")
    a("  s_nop 1")
    for qt in range(2):
        for s in range(2):
            for t in range(4):
                d = Oreg(t, qt)
                a(f"  v_mfma_f32_32x32x16_bf16 {d}, {ar(AV+(t*2+s)*4,4)}, {vr(VP+qt*8+s*4,4)}, {d}")
    a(f"  s_add_u32 s{sI}, s{sI}, 8192")
    a(f"  s_cmp_lt_u32 s{sI}, {16*8192}")
    a("  s_nop 15")
    a(f"  s_cbranch_scc1 L_safe_loop")
    lreduce()
    a("  s_nop 7")
    a("  s_barrier")
    a(f"  v_add_u32 v{VOWN}, {hex(OWN)}, v{V_L16}")
    publish_rest(True)
    a(f"  s_lshl_b32 s{T0+2}, s{S_BG}, 9")
    a(f"  s_lshl_b32 s{T0+3}, s{S_W}, 7")
    a(f"  s_add_u32 s{T0+3}, s{T0+3}, s{T0+2}")
    a(f"  s_lshl_b32 s{T0+4}, s{S_J}, 2")
    a(f"  s_add_u32 s{T0+3}, s{T0+3}, s{T0+4}")
    a(f"  s_add_u32 s{T0+3}, s{T0+3}, {F1_OFF}")
    a("  s_branch L_safe_back")
    a(kernel_desc(KNAME, 512, 102, 256))
    return a.text()

if __name__ == "__main__":
    import argparse
    ap = argparse.ArgumentParser()
    ap.add_argument("out")
    ap.add_argument("--nostamps", action="store_true")
    ap.add_argument("--plain", action="store_true")
    ap.add_argument("--global_", action="store_true")
    ap.add_argument("--safe", action="store_true")
    ap.add_argument("--nolmfma", action="store_true")
    ap.add_argument("--noprog", action="store_true")
    ap.add_argument("--dmapos", type=str, default="B0")
    ap.add_argument("--hlat", type=int, default=6)
    ap.add_argument("--bench", type=str, default="")
    ap.add_argument("--tstart", type=int, default=11)
    ap.add_argument("--maxi", type=str, default="3,3,2")
    ap.add_argument("--kvpro", type=str, default="")
    ap.add_argument("--kvpost", type=str, default="")
    ap.add_argument("--kvmid", type=str, default="")
    ap.add_argument("--wosched", type=str, default="")
    ap.add_argument("--mbtouch", type=str, default="")
    ap.add_argument("--oftouch", type=int, default=-1)
    ap.add_argument("--fltouch", type=int, default=7)
    ap.add_argument("--wostart", type=int, default=10)
    ap.add_argument("--woper", type=int, default=3)
    x = ap.parse_args()
    opt.stamps = not x.nostamps
    opt.nt = "" if x.plain else " nt"
    opt.force_global = x.global_
    opt.force_safe = x.safe
    opt.lmfma = not x.nolmfma
    opt.progressive = not x.noprog
    opt.dmapos = x.dmapos
    opt.hlat = x.hlat
    opt.tstart = x.tstart
    if x.wosched: opt.wosched = [int(t) for t in x.wosched.split(',')]
    if x.mbtouch: opt.mbtouch = [int(t) for t in x.mbtouch.split(',')]
    opt.oftouch = x.oftouch
    opt.fltouch = x.fltouch
    opt.wostart = x.wostart
    opt.woper = x.woper
    opt.maxi = [int(t) for t in x.maxi.split(',')]
    if x.kvpro: opt.kvpro = [(int(t[0]), t[1], int(t[2:])) for t in x.kvpro.split(',')]
    if x.kvmid: opt.kvmid = [(t[0], int(t[1:])) for t in x.kvmid.split(',')]
    if x.kvpost: opt.kvpost = [(t[0], int(t[1:])) for t in x.kvpost.split(',')]
    opt.bench = set(x.bench.split(",")) if x.bench else set()
    open(x.out, "w").write(build())
```

```python
import sys, math, struct
from asmlib import *

WS_QF = 0x0000000
WS_MB = 0x0400000
WS_ML = 0x1400000
WS_OF = 0x0000000
WS_PO = 0x1900000
WS_FL = 0x2100000
FQ_OFF = WS_FL
F1_OFF = WS_FL + 0x4000
F2_OFF = WS_FL + 0x10000
F3_OFF = WS_FL + 0x14000
HL_OFF = WS_FL + 0x18000
WS_ST = 0x2200000
WS_SIZE = 0x2400000

def vr(a, n=1): return f"v{a}" if n == 1 else f"v[{a}:{a+n-1}]"
def ar(a, n=1): return f"a{a}" if n == 1 else f"a[{a}:{a+n-1}]"
def R(r): return f"s[{r}:{r+3}]"
SCALE = math.log2(math.e) / math.sqrt(128.0)
def f32hex(x): return "0x%08x" % struct.unpack("<I", struct.pack("<f", x))[0]

S_W, S_G, S_B, S_J = 3, 4, 5, 6
S_N, S_LOC, S_XCC, S_BG = 8, 9, 10, 11
S_LW, S_TILE, S_SPIN, S_T32 = 12, 13, 14, 15
P_X, P_K, P_V, P_WQ, P_WO, P_OUT, P_DBG, P_WS = 16, 18, 20, 22, 24, 26, 28, 30
R_K, R_V, R_X, R_WQ, R_WO, R_WS, R_OUT, R_DBG = 32, 36, 40, 44, 48, 52, 56, 60
T0 = 64
S_T = 80

L_K, L_V, L_X = 0x00000, 0x10000, 0x20000

V_DUM = 9
VKD, VVD, VWOD, V_L16, V_FL = 10, 12, 13, 14, 15
VKA, VVA, VL, VM = 16, 24, 28, 30
VS, VP, VN, VO0 = 32, 96, 128, 160
VXD, VWD, VWA, VXA = 224, 226, 227, 229
VONE, VLA = 240, 244
AO1, AQ, AK, AV = 0, 128, 192, 224
def Oreg(t, qt, k=0, n=16):
    return (vr(VO0+t*16+k, n) if qt == 0 else ar(AO1+t*16+k, n))

class Opt:
    stamps = True
    nt = " nt"
    timeout = 1 << 16
    force_global = False
    force_safe = False
    lmfma = True
    h1global = False
    dmapos = 'B0'
    vend = 12
    kend = 8
    hlat = 6
    progressive = True
    tstart = 9
    wosched = [0,1,2,3, 7,8,9,10,11,12,13,14, 11,12,13,14]
    wotouch = -1
    mbtouch = [8,9,10,11,12,13,14,15]
    fltouch = 7
    oftouch = -1
    wostart = 10
    woper = 3
    maxi = [2]
    kvpro = [(5,'K',0), (6,'K',1), (7,'V',0)]
    kvmid = [('K',2)]
    kvpost = [('V',1), ('K',3), ('V',2), ('V',3)]
    bench = set()
opt = Opt()

def srd(a, r, p, off, size):
    if off is None:
        a(f"  s_mov_b32 s{r}, s{p}")
        a(f"  s_mov_b32 s{r+1}, s{p+1}")
    else:
        a(f"  s_add_u32 s{r}, s{p}, {off}")
        a(f"  s_addc_u32 s{r+1}, s{p+1}, 0")
    a(f"  s_mov_b32 s{r+2}, {size}")
    a(f"  s_mov_b32 s{r+3}, 0x20000")

nstamp = [0]
def stamp(a, name=""):
    if opt.stamps:
        k = nstamp[0]; nstamp[0] += 1
        assert k < 11, "too many stamps"
        a(f"  s_memrealtime s[{S_T+2*k}:{S_T+2*k+1}]")
def stamp_flush(a):
    if not opt.stamps: return
    n = nstamp[0]
    a("  s_waitcnt lgkmcnt(0)")
    a(f"  s_lshl_b32 s{T0}, s2, 2")
    a(f"  s_add_u32 s{T0}, s{T0}, s{S_W}")
    a(f"  s_mul_i32 s{T0}, s{T0}, 96")
    a(f"  s_add_u32 s{T0}, s{T0}, {WS_ST}")
    a("  v_mov_b32 v8, 0")
    for k in range(0, 12, 2):
        for u in range(2):
            kk = min(k+u, n-1)
            a(f"  v_mov_b32 v{4+2*u}, s{S_T+2*kk}")
            a(f"  v_mov_b32 v{5+2*u}, s{S_T+2*kk+1}")
        a(f"  s_add_u32 s{T0+1}, s{T0}, {k*8}")
        a(f"  s_mov_b64 exec, 1")
        a(f"  buffer_store_dwordx4 v[4:7], v8, {R(R_WS)}, s{T0+1} offen")
        a(f"  s_mov_b64 exec, -1")
        a("  s_nop 1")

def tr_addr(a, dst, tile, sigma, row_mode, tmp, base=0):
    t0, t1, t2, t3 = tmp, tmp+1, tmp+2, tmp+3
    a(f"  v_bfe_u32 v{t0}, v0, 4, 1")
    a(f"  v_and_b32 v{t1}, 3, v0")
    if sigma:
        a(f"  v_and_b32 v{t2}, 1, v{t1}")
        a(f"  v_lshrrev_b32 v{t1}, 1, v{t1}")
    else:
        a(f"  v_lshrrev_b32 v{t2}, 1, v{t1}")
        a(f"  v_and_b32 v{t1}, 1, v{t1}")
    a(f"  v_lshl_add_u32 v{t2}, v{t0}, 1, v{t2}")
    if isinstance(tile, int):
        a(f"  v_add_u32 v{t2}, {4*tile}, v{t2}")
    else:
        a(f"  v_add_u32 v{t2}, {tile}, v{t2}")
    a(f"  v_bfe_u32 v{t0}, v0, 2, 2")
    a(f"  v_lshlrev_b32 v{t3}, 2, v{t0}")
    a(f"  v_xor_b32 v{t2}, v{t2}, v{t3}")
    a(f"  v_lshlrev_b32 v{t2}, 4, v{t2}")
    a(f"  v_lshl_add_u32 v{t2}, v{t1}, 3, v{t2}")
    a(f"  v_lshrrev_b32 v{t3}, 5, v0")
    a(f"  v_lshl_add_u32 v{t3}, v{t3}, {3 if row_mode=='nat' else 2}, v{t0}")
    a(f"  v_lshl_add_u32 v{dst}, v{t3}, 8, v{t2}")
    if base:
        a(f"  v_add_u32 v{dst}, {hex(base)}, v{dst}")

lab = [0]
def newlabel(p):
    lab[0] += 1
    return f"L_{p}_{lab[0]}"

def poll(a, soff, nwords):
    L = newlabel("poll"); Lx = newlabel("pollx")
    mask = (1 << nwords) - 1
    a(f"  s_mov_b32 s{S_SPIN}, {opt.timeout}")
    a(f"{L}:")
    a(f"  buffer_load_dword v4, v{V_FL}, {R(R_WS)}, {soff} offen sc1")
    a(f"  s_sub_u32 s{S_SPIN}, s{S_SPIN}, 1")
    a(f"  s_cbranch_scc1 {Lx}")
    a(f"  s_waitcnt vmcnt(0)")
    a(f"  v_cmp_ne_u32 vcc, s{S_N}, v4")
    a(f"  s_nop 4")
    a(f"  s_and_b32 s{T0+15}, vcc_lo, {hex(mask)}")
    a(f"  s_cbranch_scc1 {L}")
    a(f"{Lx}:")

def set_flag(a, soff, always_global=False):
    a(f"  v_mov_b32 v4, s{S_N}")
    a(f"  v_mov_b32 v5, 0")
    a(f"  s_mov_b64 exec, 1")
    if always_global:
        a(f"  buffer_store_dword v4, v5, {R(R_WS)}, {soff} offen sc0 sc1")
    else:
        Lg = newlabel("fg"); Le = newlabel("fe")
        a(f"  s_cmp_eq_u32 s{S_LOC}, 0")
        a(f"  s_cbranch_scc1 {Lg}")
        a(f"  buffer_store_dword v4, v5, {R(R_WS)}, {soff} offen")
        a(f"  s_branch {Le}")
        a(f"{Lg}:")
        a(f"  buffer_store_dword v4, v5, {R(R_WS)}, {soff} offen sc0 sc1")
        a(f"{Le}:")
    a(f"  s_mov_b64 exec, -1")

def dual(a, emit):
    Lg = newlabel("sg"); Le = newlabel("se")
    a(f"  s_cmp_eq_u32 s{S_LOC}, 0")
    a(f"  s_cbranch_scc1 {Lg}")
    emit("")
    a(f"  s_branch {Le}")
    a(f"{Lg}:")
    emit(" sc0 sc1")
    a(f"{Le}:")

class Fifo:
    def __init__(self): self.ops = []
    def push(self, tag, n=1): self.ops += [tag] * n
    def after(self, tags):
        idx = [i for i, t in enumerate(self.ops) if t in tags]
        if not idx: return 63
        return min(63, len(self.ops) - 1 - max(idx))

def build():
    nstamp[0] = 0
    a = Asm()
    a(HEADER_COMMENT.rstrip())
    a("; @launch grid=(256,1,1) block=(256,1,1) lds=163840")
    a('.amdgcn_target "amdgcn-amd-amdhsa--gfx950"')
    a(kernel_start(KNAME).rstrip())
    fifo = Fifo()
    def emit(lst):
        for l in lst: a(l)
    a(f"""  s_cmp_ge_u32 s2, 256
  s_cbranch_scc1 L_done
  s_load_dwordx16 s[16:31], s[0:1], 0
  s_memrealtime s[{T0}:{T0+1}]
  s_getreg_b32 s{S_XCC}, hwreg(HW_REG_XCC_ID)
  v_lshrrev_b32 v1, 6, v0
  v_and_b32 v0, 63, v0
  s_and_b32 s{S_G}, s2, 7
  v_readfirstlane_b32 s{S_W}, v1
  s_lshr_b32 s{S_T32}, s2, 3
  s_lshr_b32 s{S_B}, s{S_T32}, 2
  s_and_b32 s{S_J}, s{S_T32}, 3
  s_and_b32 s{S_XCC}, s{S_XCC}, 7
  s_lshl_b32 s{S_BG}, s{S_B}, 3
  s_add_u32 s{S_BG}, s{S_BG}, s{S_G}
  v_lshlrev_b32 v{V_L16}, 4, v0
  v_lshlrev_b32 v{V_FL}, 2, v0
  s_lshl_b32 s{S_LW}, s{S_W}, 11
  v_lshrrev_b32 v2, 4, v0             ; l>>4
  v_and_b32 v3, 15, v0                ; l&15
  v_lshrrev_b32 v4, 3, v0             ; l>>3
  v_and_b32 v5, 7, v0                 ; l&7
  v_xor_b32 v6, v5, v2
  v_lshlrev_b32 v6, 4, v6
  v_lshl_add_u32 v{VXD}, v4, 10, v6
  v_add_u32 v7, 4, v2
  v_xor_b32 v6, v5, v7
  v_lshlrev_b32 v6, 4, v6
  v_lshl_add_u32 v{VXD+1}, v4, 10, v6
  v_lshlrev_b32 v6, 2, v2
  v_xor_b32 v6, v6, v3
  v_lshlrev_b32 v6, 4, v6
  v_lshl_add_u32 v{VWD}, v2, 13, v6
  v_lshlrev_b32 v8, 7, v5
  s_waitcnt lgkmcnt(0)""")
    if opt.stamps:
        a(f"  s_mov_b32 s{S_T}, s{T0}")
        a(f"  s_mov_b32 s{S_T+1}, s{T0+1}")
        nstamp[0] = 1
    a(f"  s_lshl_b32 s{T0+2}, s{S_T32}, 2")
    a(f"  s_add_u32 s{T0+2}, s{T0+2}, s{S_W}        ; id")
    srd(a, R_WQ, P_WQ, None, "0x400000")
    srd(a, R_X, P_X, None, "0x80000")
    if 'touch1' in opt.bench:
        a(f"  s_cmp_ge_u32 s{T0+2}, 64")
        a(f"  s_cbranch_scc1 L_touchx")
        a(f"  v_lshl_add_u32 v7, v4, 13, v8          ; (l>>3)*8192 + (l&7)*128")
        a(f"  s_lshl_b32 s{T0+3}, s{T0+2}, 16        ; 8*id*8192")
        a(f"  s_lshl_b32 s{T0+4}, s{S_G}, 10")
        a(f"  s_add_u32 s{T0+3}, s{T0+3}, s{T0+4}")
        a(f"  buffer_load_dword v{V_DUM}, v7, {R(R_WQ)}, s{T0+3} offen")
        a(f"  s_branch L_touchd")
        a(f"L_touchx:")
        a(f"  v_lshl_add_u32 v7, v4, 10, v8          ; (l>>3)*1024 + (l&7)*128")
        a(f"  s_sub_u32 s{T0+3}, s{T0+2}, 64")
        a(f"  s_lshl_b32 s{T0+3}, s{T0+3}, 13        ; 8*rows*1024")
        a(f"  buffer_load_dword v{V_DUM}, v7, {R(R_X)}, s{T0+3} offen")
        a(f"L_touchd:")
        fifo.push('T')
    srd(a, R_WS, P_WS, None, hex(WS_SIZE))
    srd(a, R_DBG, P_DBG, None, "0x100")
    a(f"  s_mov_b32 s{S_SPIN}, s{T0}")
    a(f"""  s_cmp_lg_u32 s2, 0
  s_cbranch_scc1 L_nononce
  s_cmp_lg_u32 s{S_W}, 0
  s_cbranch_scc1 L_nononce
  s_lshl_b32 s{T0+4}, s{S_SPIN}, 4
  s_or_b32 s{T0+4}, s{T0+4}, 0x80000000
  v_mov_b32 v6, s{T0+4}
  v_mov_b32 v7, 0
  s_mov_b64 exec, 1
  buffer_store_dword v6, v7, {R(R_DBG)}, 0 offen sc0 sc1
  s_mov_b64 exec, -1
L_nononce:""")
    a(f"  s_lshl_b32 s{T0+3}, s{S_B}, 16")
    srd(a, R_X, P_X, f"s{T0+3}", "0x10000")
    a(f"  s_lshl_b32 s{T0+3}, s{S_G}, 2")
    a(f"  s_add_u32 s{T0+3}, s{T0+3}, s{S_J}          ; h_own")
    a(f"  s_lshl_b32 s{T0+4}, s{T0+3}, 8")
    srd(a, R_WQ, P_WQ, f"s{T0+4}", "0x400000")
    a(f"  s_sub_u32 s{R_WQ+2}, s{R_WQ+2}, s{T0+4}")
    sXg, sXl, sWg, sWl, sO = T0+6, T0+7, T0+8, T0+9, T0+10
    a(f"  s_lshl_b32 s{sXg}, s{S_W}, 14")
    a(f"  s_lshl_b32 s{sWg}, s{S_W}, 17")
    a(f"  s_lshl_b32 s{sWl}, s{S_W}, 12")
    NCH = 4
    WSLOT = [L_K + 0x8000, L_K + 0xC000, L_V + 0x8000, L_V + 0xC000]
    XSLOT = [L_X + i*0x2000 for i in range(4)]
    sROT, sWc, sXc = T0+11, T0+12, T0+7
    a(f"  s_lshl_b32 s{sROT}, s{S_J}, 1")
    a(f"  s_add_u32 s{sROT}, s{sROT}, s{S_B}")
    def chunk_ops(c):
        slot = c % NCH
        out = [f"  s_add_u32 s{sWc}, s{sROT}, {c}",
               f"  s_and_b32 s{sWc}, s{sWc}, 7",
               f"  s_lshl_b32 s{sXc}, s{sWc}, 7",
               f"  s_add_u32 s{sXc}, s{sXc}, s{sXg}",
               f"  s_lshl_b32 s{sWc}, s{sWc}, 19",
               f"  s_add_u32 s{sWc}, s{sWc}, s{sWg}"]
        for ii in range(4):
            out.append(f"  s_add_u32 m0, s{sWl}, {WSLOT[slot] + ii*1024}")
            out.append(f"  s_add_u32 s{sO}, s{sWc}, {ii*32768}")
            out.append(f"  buffer_load_dwordx4 v{VWD}, {R(R_WQ)}, s{sO} offen lds")
        for ii in range(2):
            out.append(f"  s_add_u32 m0, s{S_LW}, {XSLOT[slot] + ii*1024}")
            out.append(f"  s_add_u32 s{sO}, s{sXc}, {ii*8192}")
            out.append(f"  buffer_load_dwordx4 v{VXD+ii}, {R(R_X)}, s{sO} offen lds")
        fifo.push(('C', c), 6)
        return out
    def issue_chunk(c):
        emit(chunk_ops(c))
    issue_chunk(0)
    a(f"  s_lshl_b32 s{T0}, s{S_B}, 5")
    a(f"  s_lshl_b32 s{T0+1}, s{S_G}, 2")
    a(f"  s_add_u32 s{T0}, s{T0}, s{T0+1}")
    a(f"  s_add_u32 s{T0+1}, s{T0}, s{S_J}")
    a(f"  s_lshl_b32 s{T0+1}, s{T0+1}, 14")
    a(f"  s_add_u32 s{T0+1}, s{T0+1}, s{S_LW}")
    VMBT = 233
    a(f"""  v_bfe_u32 v4, v0, 4, 1
  v_bfe_u32 v5, v0, 3, 1
  v_and_b32 v6, 7, v0
  v_lshlrev_b32 v4, 13, v4
  v_lshl_add_u32 v4, v5, 10, v4
  v_lshl_add_u32 v{VMBT}, v6, 7, v4        ; qt*8192 + s*1024 + u*128""")
    issue_chunk(1)
    a(f"  s_lshl_b32 s{T0+2}, s{S_W}, 2")
    tr_addr(a, VWA, f"s{T0+2}", True, 'nat', 4, base=L_K + 0x8000)
    a(f"  v_add_u32 v{VWA+1}, 0x10000, v{VWA}")
    a("""  v_and_b32 v6, 31, v0
  v_lshrrev_b32 v7, 5, v0
  v_bfe_u32 v8, v0, 1, 3""")
    for ks in range(4):
        a(f"  v_add_u32 v1, {2*ks}, v7")
        a(f"  v_xor_b32 v1, v1, v8")
        a(f"  v_lshlrev_b32 v1, 4, v1")
        a(f"  v_lshl_add_u32 v{VXA+ks}, v6, 7, v1")
        a(f"  v_add_u32 v{VXA+ks}, {hex(L_X)}, v{VXA+ks}")
    issue_chunk(2)
    a(f"  s_lshl_b32 s{T0+3}, s{S_BG}, 19")
    a(f"  s_lshl_b32 s{T0+4}, s{S_J}, 17")
    a(f"  s_add_u32 s{T0+3}, s{T0+3}, s{T0+4}")
    srd(a, R_K, P_K, f"s{T0+3}", "0x20000")
    srd(a, R_V, P_V, f"s{T0+3}", "0x20000")
    a(f"  s_lshl_b32 s{T0+2}, s{S_W}, 3")
    for i in range(2):
        a(f"  v_add_u32 v4, s{T0+2}, v2")
        a(f"  v_add_u32 v5, {4*i}, v4")
        a(f"  v_and_b32 v5, 15, v5")
        a(f"  v_xor_b32 v5, v5, v3")
        a(f"  v_lshlrev_b32 v5, 4, v5")
        a(f"  v_lshl_add_u32 v{VKD+i}, v4, 8, v5")
    a(f"  v_lshlrev_b32 v5, 2, v2")
    a(f"  v_xor_b32 v5, v5, v3")
    a(f"  v_lshlrev_b32 v5, 4, v5")
    a(f"  v_lshl_add_u32 v{VVD}, v4, 8, v5")
    a(f"  v_lshl_add_u32 v{VWOD}, v4, 10, v5")
    RKN = RVN = 8
    def dmaK(i):
        out = [f"  s_add_u32 m0, s{S_LW}, {L_K+(i%RKN)*8192}", f"  s_mov_b32 s{S_TILE}, {i*8192}"]
        for ii in range(2):
            out.append(f"  buffer_load_dwordx4 v{VKD+ii}, {R(R_K)}, s{S_TILE} offen offset:{ii*1024}{opt.nt} lds")
        fifo.push(('K', i), 2)
        if 'nodma' in opt.bench and i >= 8: return []
        return out
    def dmaV(i):
        out = [f"  s_add_u32 m0, s{S_LW}, {L_V+(i%RVN)*8192}", f"  s_mov_b32 s{S_TILE}, {i*8192}"]
        for ii in range(2):
            out.append(f"  buffer_load_dwordx4 v{VVD}, {R(R_V)}, s{S_TILE} offen offset:{ii*1024}{opt.nt} lds")
        fifo.push(('V', i), 2)
        if 'nodma' in opt.bench and i >= 8: return []
        return out
    if 'nowarm' not in opt.bench:
        a(f"  v_mov_b32 v5, 0")
        a(f"  s_add_u32 s{T0+2}, s{T0+1}, {WS_QF}")
        a(f"  buffer_load_dword v{V_DUM}, v{VMBT}, {R(R_WS)}, s{T0+2} offen")
        a(f"  s_lshl_b32 s{T0+2}, s{S_BG}, 7")
        a(f"  s_add_u32 s{T0+3}, s{T0+2}, {FQ_OFF}")
        a(f"  buffer_load_dword v{V_DUM}, v5, {R(R_WS)}, s{T0+3} offen")
        a(f"  buffer_load_dword v{V_DUM}, v5, {R(R_K)}, 0 offen")
        a(f"  buffer_load_dword v{V_DUM}, v5, {R(R_V)}, 0 offen")
        fifo.push('T', 4)
        if 'tlbwarm' in opt.bench:
            a(f"  s_lshl_b32 s{T0+3}, s{S_BG}, 18")
            a(f"  s_add_u32 s{T0+3}, s{T0+3}, {WS_MB}")
            a(f"  buffer_load_dword v{V_DUM}, v5, {R(R_WS)}, s{T0+3} offen")
            a(f"  s_lshl_b32 s{T0+3}, s{S_BG}, 13")
            a(f"  s_add_u32 s{T0+3}, s{T0+3}, {WS_ML}")
            a(f"  buffer_load_dword v{V_DUM}, v5, {R(R_WS)}, s{T0+3} offen")
            a(f"  s_lshl_b32 s{T0+3}, s{S_B}, 20")
            a(f"  s_lshl_b32 s{T0+4}, s{S_J}, 18")
            a(f"  s_add_u32 s{T0+3}, s{T0+3}, s{T0+4}")
            a(f"  s_add_u32 s{T0+3}, s{T0+3}, {WS_PO}")
            a(f"  buffer_load_dword v{V_DUM}, v5, {R(R_WS)}, s{T0+3} offen")
            a(f"  s_lshl_b32 s{T0+3}, s{S_G}, 19")
            a(f"  s_add_u32 s{T0+4}, s{P_WO}, s{T0+3}")
            a(f"  s_addc_u32 s{T0+5}, s{P_WO+1}, 0")
            a(f"  global_load_dword v{V_DUM}, v5, s[{T0+4}:{T0+5}]")
            fifo.push('T', 4)
    AF, BF, ACC = 32, 64, 128
    def reads(kc):
        out = []
        slot = kc % NCH; buf = kc & 1
        wo = WSLOT[slot] - (L_K + 0x8000)
        for ks in range(4):
            for rd in range(2):
                off = wo + ks*4096 + rd*1024
                out.append(f"  ds_read_b64_tr_b16 {vr(AF+buf*16+ks*4+rd*2,2)}, v{VWA+(off>>16)} offset:{off & 65535}")
            for qt in range(2):
                out.append(f"  ds_read_b128 {vr(BF+buf*32+ks*8+qt*4,4)}, v{VXA+ks} offset:{slot*8192+qt*4096}")
        return out
    if 'p1st' in opt.bench: stamp(a, "before C0 wait")
    a(f"  s_waitcnt vmcnt({fifo.after([('C',0)])})")
    a("  s_barrier")
    if 'p1st' in opt.bench: stamp(a, "C0 landed")
    emit(reads(0))
    kvpro = list(opt.kvpro)
    for c in range(8):
        if c + 1 < 8:
            a(f"  s_waitcnt vmcnt({fifo.after([('C',c+1)])}) lgkmcnt(0)")
            a("  s_barrier")
            if 'p1st' in opt.bench: stamp(a, f"C{c+1} landed")
            if c == 3:
                Ln = newlabel("nonce"); Lnx = newlabel("noncex"); Lnc = newlabel("noncechk")
                a(f"  s_mov_b32 s{S_SPIN}, {opt.timeout}")
                a(f"  s_branch {Lnc}")
                a(f"{Ln}:")
                a(f"  buffer_load_dword v8, v5, {R(R_DBG)}, 0 offen sc1")
                a(f"  s_sub_u32 s{S_SPIN}, s{S_SPIN}, 1")
                a(f"  s_cbranch_scc1 {Lnx}")
                a(f"  s_waitcnt vmcnt(0)")
                a(f"{Lnc}:")
                a(f"  v_readfirstlane_b32 s{S_N}, v8")
                a(f"  s_nop 3")
                a(f"  s_cmp_eq_u32 s{S_N}, 0")
                a(f"  s_cbranch_scc1 {Ln}")
                a(f"{Lnx}:")
                Lw = newlabel("hw"); Lwd = newlabel("hwd")
                a(f"  s_lshl_b32 s{T0+2}, s{S_BG}, 7")
                a(f"  s_lshl_b32 s{T0+3}, s{S_J}, 2")
                a(f"  s_add_u32 s{T0+2}, s{T0+2}, s{T0+3}")
                a(f"  s_add_u32 s{T0+2}, s{T0+2}, {HL_OFF}")
                a(f"  s_cmp_lg_u32 s{S_W}, 0")
                a(f"  s_cbranch_scc1 {Lw}")
                a(f"  s_or_b32 s{T0+3}, s{S_N}, s{S_XCC}")
                a(f"  v_mov_b32 v8, s{T0+3}")
                a(f"  s_mov_b64 exec, 1")
                a(f"  buffer_store_dword v8, v5, {R(R_WS)}, s{T0+2} offen sc0 sc1")
                a(f"  s_mov_b64 exec, -1")
                a(f"  s_branch {Lwd}")
                a(f"{Lw}:")
                a(f"  buffer_load_dword v{V_DUM}, v5, {R(R_DBG)}, 0 offen")
                a(f"{Lwd}:")
                fifo.push('H')
        else:
            a("  s_waitcnt lgkmcnt(0)")
        fill = []
        if c + 1 < 8: fill += reads(c + 1)
        dm = []
        if c + 3 < 8: dm += chunk_ops(c + 3)
        if c == 0:
            dm += [f"  v_mov_b32 v5, 0", f"  buffer_load_dword v8, v5, {R(R_DBG)}, 0 offen sc1"]
            fifo.push('NL')
        if c == opt.hlat:
            dm += [f"  s_lshl_b32 s{T0+2}, s{S_BG}, 7", f"  s_add_u32 s{T0+2}, s{T0+2}, {HL_OFF}",
                   f"  buffer_load_dwordx4 v[4:7], v5, {R(R_WS)}, s{T0+2} offen sc1"]
            fifo.push('HL')
        for (cc, kind, i) in kvpro:
            if cc == c: dm += (dmaK(i) if kind == 'K' else dmaV(i))
        buf = c & 1
        mf = []
        for ks in range(4):
            for qt in range(2):
                cc_ = vr(ACC+16*qt,16) if (c or ks) else "0"
                mf.append(f"  v_mfma_f32_32x32x16_bf16 {vr(ACC+16*qt,16)}, {vr(AF+buf*16+ks*4,4)}, {vr(BF+buf*32+ks*8+qt*4,4)}, {cc_}")
        allf = fill + dm
        n = len(mf)
        for i_, m_ in enumerate(mf):
            a(m_)
            lo = len(allf)*i_//n; hi = len(allf)*(i_+1)//n
            emit(allf[lo:hi])
    Lh = newlabel("hello"); Lhx = newlabel("hellox"); Lh2 = newlabel("hellochk")
    a(f"  s_mov_b32 s{S_SPIN}, {opt.timeout}")
    a(f"  s_waitcnt vmcnt({fifo.after(['HL'])})")
    a(f"  s_branch {Lh2}")
    a(f"{Lh}:")
    a(f"  buffer_load_dwordx4 v[4:7], v5x, {R(R_WS)}, s{T0+2} offen sc1".replace("v5x", "v1"))
    a(f"  s_sub_u32 s{S_SPIN}, s{S_SPIN}, 1")
    a(f"  s_cbranch_scc1 {Lhx}")
    a(f"  s_waitcnt vmcnt(0)")
    a(f"{Lh2}:")
    a(f"  v_mov_b32 v1, 0")
    a(f"  v_xor_b32 v4, s{S_N}, v4")
    a(f"  v_xor_b32 v5, s{S_N}, v5")
    a(f"  v_xor_b32 v6, s{S_N}, v6")
    a(f"  v_xor_b32 v7, s{S_N}, v7")
    a(f"  v_or_b32 v8, v4, v5")
    a(f"  v_or3_b32 v8, v8, v6, v7")
    a(f"  s_nop 0")
    a(f"  v_readfirstlane_b32 s{T0+3}, v8")
    a(f"  s_nop 3")
    a(f"  s_cmp_gt_u32 s{T0+3}, 7")
    a(f"  s_cbranch_scc1 {Lh}")
    a(f"{Lhx}:")
    a(f"  v_xor_b32 v4, s{S_XCC}, v4")
    a(f"  v_xor_b32 v5, s{S_XCC}, v5")
    a(f"  v_xor_b32 v6, s{S_XCC}, v6")
    a(f"  v_xor_b32 v7, s{S_XCC}, v7")
    a(f"  v_or_b32 v8, v4, v5")
    a(f"  v_or3_b32 v8, v8, v6, v7")
    a(f"  s_nop 0")
    a(f"  v_readfirstlane_b32 s{T0+3}, v8")
    a(f"  s_nop 3")
    a(f"  s_cmp_eq_u32 s{T0+3}, 0")
    a(f"  s_cselect_b32 s{S_LOC}, 1, 0")
    if opt.force_global:
        a(f"  s_mov_b32 s{S_LOC}, 0")
    a(f"  s_mov_b32 s{sO}, {f32hex(SCALE)}")
    for i in range(32):
        a(f"  v_mul_f32 v{ACC+i}, s{sO}, v{ACC+i}")
    for qt in range(2):
        for s in range(2):
            for p in range(4):
                r = ACC + 16*qt + 8*s + 2*p
                a(f"  v_cvt_pk_bf16_f32 v{32+qt*8+s*4+p}, v{r}, v{r+1}")
    if not ({'p2st','tailst','slowst'} & opt.bench): stamp(a, "P1 done")
    if 'p1st' in opt.bench:
        stamp_flush(a); a("L_done:"); a("  s_endpgm"); a(kernel_desc(KNAME, 512, 102, 256)); return a.text()
    def qst(fl):
        for qt in range(2):
            for s in range(2):
                a(f"  s_add_u32 s{T0+2}, s{T0+1}, {WS_QF + qt*8192+s*1024}")
                a(f"  buffer_store_dwordx4 {vr(32+qt*8+s*4,4)}, v{V_L16}, {R(R_WS)}, s{T0+2} offen{fl}")
    dual(a, qst)
    fifo.push('QS', 4)
    for kind, i in opt.kvmid:
        emit(dmaK(i) if kind == 'K' else dmaV(i))
    a("""  v_and_b32 v4, 31, v0
  v_lshrrev_b32 v5, 5, v0
  v_and_b32 v6, 15, v0""")
    for ks in range(8):
        a(f"  v_add_u32 v7, {2*ks}, v5")
        a(f"  v_xor_b32 v7, v7, v6")
        a(f"  v_lshlrev_b32 v7, 4, v7")
        a(f"  v_lshl_add_u32 v{VKA+ks}, v4, 8, v7")
    a(f"  s_lshl_b32 s{T0+2}, s{S_BG}, 7")
    a(f"  s_lshl_b32 s{T0+3}, s{S_J}, 4")
    a(f"  s_add_u32 s{T0+3}, s{T0+3}, s{T0+2}")
    a(f"  s_lshl_b32 s{T0+4}, s{S_W}, 2")
    a(f"  s_add_u32 s{T0+3}, s{T0+3}, s{T0+4}")
    a(f"  s_add_u32 s{T0+3}, s{T0+3}, {FQ_OFF}")
    a(f"  s_waitcnt vmcnt({fifo.after(['QS'])})")
    set_flag(a, f"s{T0+3}")
    if not ({'p2st','tailst','slowst'} & opt.bench): stamp(a, "Q published")
    for t in range(4):
        tr_addr(a, VVA+t, t, False, 'pv', 4, base=L_V)
    a(f"  s_lshl_b32 s{T0+3}, s{S_W}, 4")
    a(f"  s_add_u32 s{T0+3}, s{T0+3}, s{T0+2}")
    a(f"  s_add_u32 s{T0+3}, s{T0+3}, {FQ_OFF}")
    a(f"  s_lshl_b32 s{T0+4}, s{S_G}, 19")
    a(f"  s_lshl_b32 s{T0+5}, s{S_J}, 8")
    a(f"  s_add_u32 s{T0+4}, s{T0+4}, s{T0+5}")
    srd(a, R_WO, P_WO, f"s{T0+4}", "0x400000")
    a(f"  s_sub_u32 s{R_WO+2}, s{R_WO+2}, s{T0+4}")
    sWOp = T0+6
    for p in range(4):
        a(f"  s_add_u32 s{sWOp+p}, s{S_J}, {p}")
        a(f"  s_and_b32 s{sWOp+p}, s{sWOp+p}, 3")
        a(f"  s_lshl_b32 s{sWOp+p}, s{sWOp+p}, 17")
    sMB, sML = T0+13, T0+14
    a(f"  s_lshl_b32 s{sMB}, s{S_BG}, 2")
    a(f"  s_add_u32 s{sMB}, s{sMB}, s{S_W}")
    a(f"  s_lshl_b32 s{sMB}, s{sMB}, 2")
    a(f"  s_add_u32 s{sMB}, s{sMB}, s{S_J}        ; (bg*4+w)*4+j")
    a(f"  s_lshl_b32 s{sML}, s{sMB}, 9")
    a(f"  s_add_u32 s{sML}, s{sML}, {WS_ML}")
    a(f"  s_lshl_b32 s{sMB}, s{sMB}, 14")
    a(f"  s_add_u32 s{sMB}, s{sMB}, {WS_MB}")
    sMODE = T0+12
    a(f"  s_xor_b32 s{sMODE}, s{S_LOC}, 1")
    if opt.h1global: a(f"  s_mov_b32 s{sMODE}, 1")
    a(f"  s_cmp_eq_u32 s{S_W}, s{S_J}")
    a(f"  s_cselect_b32 s{sMODE}, 2, s{sMODE}")
    VT4, VT16, VWT = 235, 236, 234
    a(f"  v_and_b32 v{VT4}, 3, v0")
    a(f"  v_lshlrev_b32 v{VT4}, 7, v{VT4}         ; (lane&3)*128")
    a(f"  v_and_b32 v{VT16}, 15, v0")
    a(f"  s_cselect_b32 s{S_TILE}, 0, 128")
    a(f"  v_mul_u32_u24 v{VT16}, s{S_TILE}, v{VT16}")
    a(f"  v_bfe_u32 v4, v0, 3, 2")
    a(f"  v_and_b32 v5, 7, v0")
    a(f"  v_lshlrev_b32 v5, 7, v5")
    a(f"  v_lshl_add_u32 v{VWT}, v4, 10, v5")
    sOFp = T0+11
    a(f"  s_lshl_b32 s{sOFp}, s{S_B}, 5")
    a(f"  s_lshl_b32 s{S_TILE}, s{S_G}, 2")
    a(f"  s_add_u32 s{sOFp}, s{sOFp}, s{S_TILE}")
    a(f"  s_add_u32 s{sOFp}, s{sOFp}, s{S_J}")
    a(f"  s_lshl_b32 s{sOFp}, s{sOFp}, 14")
    a(f"  s_add_u32 s{sOFp}, s{sOFp}, s{S_LW}")
    a(f"  s_add_u32 s{sOFp}, s{sOFp}, {WS_OF}")
    poll(a, f"s{T0+3}", 4)
    fifo.ops = []
    a(f"  s_add_u32 s{T0+1}, s{T0}, s{S_W}")
    a(f"  s_lshl_b32 s{T0+1}, s{T0+1}, 14")
    for qt in range(2):
        for ks in range(8):
            off = qt*8192 + ks*1024
            if (off & 4095) == 0:
                a(f"  s_add_u32 s{T0+2}, s{T0+1}, {WS_QF + off}")
            a(f"  buffer_load_dwordx4 {ar(AQ+qt*32+ks*4,4)}, v{V_L16}, {R(R_WS)}, s{T0+2} offen offset:{off & 4095} sc1")
    fifo.push('Q', 16)
    a("  s_barrier")
    for l in [f"  ds_read_b128 {ar(AK+ks*4,4)}, v{VKA+ks} offset:{L_K}" for ks in range(8)]: a(l)
    for kind, i in opt.kvpost:
        emit(dmaK(i) if kind == 'K' else dmaV(i))
    NSTEP = 16
    def readK(i):
        if 'nolds' in opt.bench and i > 1: return []
        return [f"  ds_read_b128 {ar(AK+ks*4,4)}, v{VKA+ks} offset:{L_K+(i%RKN)*8192}" for ks in range(8)]
    def readV(i):
        out = []
        for s in range(2):
            for t in range(4):
                for rd in range(2):
                    out.append(f"  ds_read_b64_tr_b16 {ar(AV+(t*2+s)*4+rd*2,2)}, v{VVA+t} offset:{(i%RVN)*8192+s*4096+rd*2048}")
        return out
    def qk(i, first=False):
        buf = i & 1; out = []
        for qt in range(2):
            for ks in range(8):
                d = vr(VS+buf*32+qt*16, 16)
                c = d if ks > 0 else ("0" if first else vr(VN+qt*16, 16))
                out.append(f"  v_mfma_f32_32x32x16_bf16 {d}, {ar(AK+ks*4,4)}, {ar(AQ+qt*32+ks*4,4)}, {c}")
        return out
    def pv(i):
        buf = i & 1; out = []
        for qt in range(2):
            for s in range(2):
                for t in range(4):
                    d = Oreg(t, qt)
                    c = "0" if (i == 0 and s == 0) else d
                    out.append(f"  v_mfma_f32_32x32x16_bf16 {d}, {ar(AV+(t*2+s)*4,4)}, {vr(VP+buf*16+qt*8+s*4,4)}, {c}")
        return out
    def lmf(i, qt, s):
        buf = i & 1
        d = vr(VLA+qt*4, 4)
        c = "0" if (i == 0 and s == 0) else d
        return f"  v_mfma_f32_16x16x32_bf16 {d}, {vr(VONE,4)}, {vr(VP+buf*16+qt*8+s*4,4)}, {c}"
    def sm(i, qt):
        buf = i & 1
        r0 = VS+buf*32+qt*16
        groups = []
        for k in range(17):
            g = []
            if k < 16: g.append(f"  v_exp_f32 v{r0+k}, v{r0+k}")
            if k == 16 and opt.lmfma: g.append("  s_nop 0")
            if k >= 1 and not opt.lmfma: g.append(f"  v_add_f32 v{VL+qt}, v{VL+qt}, v{r0+k-1}")
            if k >= 2 and k % 2 == 0:
                p = k//2 - 1
                g.append(f"  v_cvt_pk_bf16_f32 v{VP+buf*16+qt*8+p}, v{r0+2*p}, v{r0+2*p+1}")
            groups.append(g)
        return groups
    def block(mfmas, groups, extra, pre=None, extra_start=0, post=None, extra_end=None, extra2=None):
        n = len(mfmas)
        if extra_end is None: extra_end = n
        for i, mf in enumerate(mfmas):
            a(mf)
            if post and i in post: a(post[i])
            if pre and i in pre:
                for l in pre[i]: a(l)
            if groups:
                for l in groups[i]: a(l)
            if extra and extra_start <= i < extra_end:
                span = extra_end - extra_start
                lo = (len(extra) * (i - extra_start)) // span
                hi = (len(extra) * (i - extra_start + 1)) // span
                for l in extra[lo:hi]: a(l)
            if extra2 and i >= extra_end:
                span = n - extra_end
                lo = (len(extra2) * (i - extra_end)) // span
                hi = (len(extra2) * (i - extra_end + 1)) // span
                for l in extra2[lo:hi]: a(l)
        if groups:
            for l in groups[16]: a(l)
    WOLOC = [L_X + u*8192 for u in range(4)] + [L_K + s_*8192 for s_ in range(8)] + [L_V + s_*8192 for s_ in range(4)]
    avail = {u: 0 for u in range(4)}
    for s_ in range(8): avail[4+s_] = 7+s_
    for s_ in range(4): avail[12+s_] = 9+s_
    wo_at = {}
    for u, it in zip(range(16), opt.wosched):
        assert it >= avail[u], (u, it)
        wo_at.setdefault(it, []).append(u)
    sWOp = T0+6
    sMB, sML = T0+13, T0+14
    sMODE = T0+12
    VT4, VT16, VWT = 235, 236, 234
    sOFp = T0+11
    def dmaWO(u):
        out = []
        for ii in range(2):
            out.append(f"  s_add_u32 m0, s{S_LW}, {WOLOC[u] + ii*1024}")
            out.append(f"  s_add_u32 s{S_TILE}, s{sWOp+(u>>2)}, {(u&3)*32768 + ii*4096}")
            out.append(f"  buffer_load_dwordx4 v{VWOD}, {R(R_WO)}, s{S_TILE} offen lds")
        fifo.push(('W', u), 2)
        return out
    tl = {}
    def addt(it, g): tl.setdefault(it, []).append(g)
    if opt.wotouch >= 0:
        addt(opt.wotouch, [f"  s_lshl_b32 s{S_TILE}, s{S_T32}, 2", f"  s_add_u32 s{S_TILE}, s{S_TILE}, s{S_W}", f"  s_lshl_b32 s{S_TILE}, s{S_TILE}, 12",
                           f"  buffer_load_dword v{V_DUM}, v{VWT}, {R(R_WO)}, s{S_TILE} offen"])
    if opt.h1global:
        addt(opt.fltouch, [f"  s_lshl_b32 s{S_TILE}, s{S_BG}, 7", f"  s_add_u32 s{S_TILE}, s{S_TILE}, {F2_OFF}",
                   f"  buffer_load_dword v{V_DUM}, v{V_FL}, {R(R_WS)}, s{S_TILE} offen"])
    if 'notouch2' not in opt.bench and not opt.h1global:
        for n in range(8):
            addt(opt.mbtouch[n * len(opt.mbtouch) // 8], [f"  s_add_u32 s{S_TILE}, s{sMB}, {n*2048}", f"  buffer_load_dword v{V_DUM}, v{VT16}, {R(R_WS)}, s{S_TILE} offen"])
        addt(opt.fltouch, [f"  buffer_load_dword v{V_DUM}, v{VT4}, {R(R_WS)}, s{sML} offen"])
        addt(opt.fltouch, [f"  s_lshl_b32 s{S_TILE}, s{S_BG}, 9", f"  s_add_u32 s{S_TILE}, s{S_TILE}, {F1_OFF}",
                   f"  buffer_load_dword v{V_DUM}, v{VT4}, {R(R_WS)}, s{S_TILE} offen"])
        addt(opt.fltouch, [f"  s_lshl_b32 s{S_TILE}, s{S_BG}, 7", f"  s_add_u32 s{S_TILE}, s{S_TILE}, {F2_OFF}",
                   f"  buffer_load_dword v{V_DUM}, v{V_FL}, {R(R_WS)}, s{S_TILE} offen"])
        if opt.oftouch >= 0:
            addt(opt.oftouch, [f"  buffer_load_dword v{V_DUM}, v{VMBT}, {R(R_WS)}, s{sOFp} offen"])
    dums = [252, 253, 254, 255, 237, 238, 239, 9]
    dcnt = [0]
    def touches(i):
        out = []
        for g in tl.get(i, []):
            d = dums[dcnt[0] % len(dums)] if 'nodumrot' not in opt.bench else V_DUM
            dcnt[0] += 1
            out += [x.replace(f"buffer_load_dword v{V_DUM},", f"buffer_load_dword v{d},") for x in g]; fifo.push('T')
        return out
    if opt.lmfma:
        a(f"  v_and_b32 v4, 15, v0")
        a(f"  v_bfe_u32 v5, v0, 4, 1")
        a(f"  v_cmp_eq_u32 vcc, v4, v5")
        a(f"  v_mov_b32 v6, 0x3f803f80")
        a(f"  s_nop 1")
        a(f"  v_cndmask_b32 v{VONE}, 0, v6, vcc")
        for k in range(1, 4): a(f"  v_mov_b32 v{VONE+k}, v{VONE}")
    if 'tailst' not in opt.bench: stamp(a, "P2 start")
    if 'p2st' in opt.bench: a("  s_memtime s[14:15]")
    if 'slowst' in opt.bench: a("  s_memtime s[100:101]")
    a(f"  s_waitcnt vmcnt({fifo.after(['Q'])}) lgkmcnt(0)")
    emit(qk(0, True))
    k1late = ('K', 1) in opt.kvpost
    if not k1late: emit(readK(1))
    a("  s_nop 7")
    for qt in range(2):
        r = VS + qt*16
        a(f"  v_max3_f32 v{VM+qt}, v{r}, v{r+1}, v{r+2}")
        for k in range(3, 15, 2):
            a(f"  v_max3_f32 v{VM+qt}, v{VM+qt}, v{r+k}, v{r+k+1}")
        a(f"  v_max_f32 v{VM+qt}, v{VM+qt}, v{r+15}")
        a(f"  v_mov_b32 v4, v{VM+qt}")
        a("  s_nop 1")
        a(f"  v_permlane32_swap_b32 v{VM+qt}, v4")
        a("  s_nop 1")
        a(f"  v_max_f32 v{VM+qt}, v{VM+qt}, v4")
        for k in range(16):
            a(f"  v_sub_f32 v{VN+qt*16+k}, 0, v{VM+qt}")
        for k in range(16):
            a(f"  v_sub_f32 v{r+k}, v{r+k}, v{VM+qt}")
    a(f"  v_mov_b32 v{VL}, 0")
    a(f"  v_mov_b32 v{VL+1}, 0")
    if k1late:
        a(f"  s_waitcnt vmcnt({fifo.after([('K',1)])})")
        a("  s_barrier")
        emit(readK(1))
    for g in sm(0, 0): emit(g)
    allpro = [(k_, i_) for (_, k_, i_) in opt.kvpro] + list(opt.kvmid) + list(opt.kvpost)
    nextK = [1 + max(i_ for k_, i_ in allpro if k_ == 'K')]
    nextV = [1 + max(i_ for k_, i_ in allpro if k_ == 'V')]
    for i in range(NSTEP):
        need = [('V', i)] + ([('K', i+2)] if i+2 < NSTEP else [])
        sync = [f"  s_waitcnt vmcnt({fifo.after(need)}) lgkmcnt(0)", "  s_barrier"]
        dma = []
        cand = []
        if nextK[0] < NSTEP and nextK[0] - RKN <= i + 1: pass
        cnt = 0
        MAXI = opt.maxi[min(i, len(opt.maxi)-1)]
        while cnt < MAXI:
            kfree = nextK[0] < NSTEP and (nextK[0] < RKN or nextK[0] - RKN <= i + 1)
            vfree = nextV[0] < NSTEP and (nextV[0] < RVN or nextV[0] - RVN <= i - 1)
            if not kfree and not vfree: break
            if kfree and (not vfree or nextK[0] - 2 <= nextV[0]):
                dma += dmaK(nextK[0]); nextK[0] += 1
            else:
                dma += dmaV(nextV[0]); nextV[0] += 1
            cnt += 1
        if 'nowo' not in opt.bench:
            for u in wo_at.get(i, []): dma += dmaWO(u)
        dma += touches(i)
        if i + 1 < NSTEP:
            a("  s_waitcnt lgkmcnt(0)")
            rk = readK(i+2) if i+2 < NSTEP else []
            rv = readV(i)
            pst = ({3: lmf(i,0,0), 7: lmf(i,0,1), 11: lmf(i,1,0), 15: lmf(i,1,1)} if opt.lmfma else None)
            if opt.dmapos == 'B0':
                block(qk(i+1), sm(i, 1), rv, pre={0: sync}, extra_start=1)
                a("  s_waitcnt lgkmcnt(0)")
                block(pv(i), sm(i+1, 0), dma + rk, extra_start=0, post=pst)
            elif opt.dmapos == 'E':
                block(qk(i+1), sm(i, 1), rv, pre={0: sync}, extra_start=1, extra_end=opt.vend)
                a("  s_waitcnt lgkmcnt(0)")
                block(pv(i), sm(i+1, 0), rk, extra_start=0, post=pst, extra_end=opt.kend, extra2=dma)
            elif opt.dmapos == 'F':
                block(qk(i+1), sm(i, 1), rv, pre={0: sync}, extra_start=1, extra_end=opt.vend, extra2=dma)
                a("  s_waitcnt lgkmcnt(0)")
                block(pv(i), sm(i+1, 0), rk, extra_start=0, post=pst, extra_end=opt.kend)
        else:
            last_dma = dma
            last_sync = sync
        if 'p2st' in opt.bench and i in (0, 2, 4, 6, 8, 11, 13): stamp(a, f"it{i} done")
        if 'slowst' in opt.bench and i in (2, 5, 8, 11, 13): stamp(a, f"it{i} done")
    VPK = 32
    OWN = L_V + 5*8192
    VOWN = 8
    def put(regs_off, n_list, qt):
        Lg = newlabel("pg"); Ll = newlabel("pl"); Le = newlabel("pe")
        out = [f"  s_cmp_eq_u32 s{sMODE}, 1", f"  s_cbranch_scc1 {Lg}", f"  s_cmp_eq_u32 s{sMODE}, 2", f"  s_cbranch_scc1 {Ll}"]
        def st(fl):
            o = []
            for n in n_list:
                off = qt*8192 + n*1024
                o.append(f"  s_add_u32 s{T0+4}, s{sMB}, {off}")
                o.append(f"  buffer_store_dwordx4 {vr(regs_off+n*4,4)}, v{V_L16}, {R(R_WS)}, s{T0+4} offen{fl}")
            return o
        out += st("") + [f"  s_branch {Le}", f"{Lg}:"] + st(" sc0 sc1") + [f"  s_branch {Le}", f"{Ll}:"]
        for n in n_list:
            out.append(f"  ds_write_b128 v{VOWN}, {vr(regs_off+n*4,4)} offset:{qt*8192+n*1024}")
        out.append(f"{Le}:")
        return out
    def cvt0(t):
        return [f"  v_cvt_pk_bf16_f32 v{VPK+(t*2+s)*4+p}, v{VO0+t*16+s*8+2*p}, v{VO0+t*16+s*8+2*p+1}" for s in range(2) for p in range(4)]
    def cvt1(t):
        o = [f"  v_accvgpr_read_b32 v{96+k}, a{AO1+t*16+k}" for k in range(16)]
        o += [f"  v_cvt_pk_bf16_f32 v{VPK+32+(t*2+s)*4+p}, v{96+s*8+2*p}, v{96+s*8+2*p+1}" for s in range(2) for p in range(4)]
        return o
    i = NSTEP - 1
    emit(last_sync)
    emit(readV(i))
    a(f"  v_add_u32 v{VOWN}, {hex(OWN)}, v{V_L16}")
    G = sm(i, 1)
    for g in G[:5]: emit(g)
    emit(last_dma)
    a("  s_waitcnt lgkmcnt(0)")
    pvl = pv(i)
    rest = [x for g in G[5:] for x in g]
    for n_, m_ in enumerate(pvl[:8]):
        a(m_)
        if opt.lmfma and n_ in (3, 7): a(lmf(i, 0, n_ >> 2))
        emit(rest[len(rest)*n_//8: len(rest)*(n_+1)//8])
    early = 'noearly' not in opt.bench
    for n_, m_ in enumerate(pvl[8:]):
        a(m_)
        if opt.lmfma and n_ in (0, 4): a(lmf(i, 1, n_ >> 2))
        if early and 2 <= n_ < 6:
            t = n_ - 2
            emit(cvt0(t))
            a("  s_nop 0")
            emit(put(VPK, [2*t, 2*t+1], 0))
    stamp(a, "P2 done")
    if 'slowst' in opt.bench:
        a(f"  s_memtime s[{T0}:{T0+1}]")
        a("  s_waitcnt lgkmcnt(0)")
        k = nstamp[0]; nstamp[0] += 1
        a(f"  s_sub_u32 s{T0}, s{T0}, s100")
        a(f"  s_mul_i32 s{T0}, s{T0}, 100")
        a(f"  s_add_u32 s{S_T+2*k}, s{S_T}, s{T0}")
        a(f"  s_addc_u32 s{S_T+2*k+1}, s{S_T+1}, 0")
    if 'p2st' in opt.bench:
        a(f"  s_memtime s[{T0}:{T0+1}]")
        a("  s_waitcnt lgkmcnt(0)")
        k = nstamp[0]; nstamp[0] += 1
        a(f"  s_sub_u32 s{T0}, s{T0}, s14")
        a(f"  s_mul_i32 s{T0}, s{T0}, 100")
        a(f"  s_add_u32 s{S_T+2*k}, s{S_T}, s{T0}")
        a(f"  s_addc_u32 s{S_T+2*k+1}, s{S_T+1}, 0")
    if 'p2exit' in opt.bench:
        stamp_flush(a); a("L_done:"); a("  s_endpgm"); a(kernel_desc(KNAME, 512, 102, 256)); return a.text()
    def lreduce():
        for qt in range(2):
            a(f"  v_mov_b32 v4, v{VL+qt}")
            a("  s_nop 1")
            a(f"  v_permlane32_swap_b32 v{VL+qt}, v4")
            a("  s_nop 1")
            a(f"  v_add_f32 v{VL+qt}, v{VL+qt}, v4")
    if opt.lmfma:
        a("  s_nop 7")
        for qt in range(2):
            a(f"  v_permlane16_swap_b32 v{VLA+qt*4}, v{VLA+qt*4+1}")
        a("  s_nop 1")
        for qt in range(2):
            a(f"  v_mov_b32 v{VL+qt}, v{VLA+qt*4}")
    else:
        lreduce()
    a(f"  v_max_f32 v4, v{VL}, v{VL+1}")
    a(f"  v_add_f32 v5, v{VL}, v{VL+1}")
    a(f"  s_mov_b32 s{T0}, {f32hex(2.0**24)}")
    a(f"  v_cmp_nge_f32 vcc, s{T0}, v4        ; !(2^24 >= max(l0,l1))")
    a(f"  v_cmp_u_f32 s[{T0+2}:{T0+3}], v5, v5")
    a("  s_nop 4")
    a(f"  s_or_b64 vcc, vcc, s[{T0+2}:{T0+3}]")
    a(f"  s_cselect_b32 s{T0+1}, 1, 0")
    if opt.force_safe:
        a(f"  s_mov_b32 s{T0+1}, 1")
    VOTE = L_V + 4*8192
    a(f"  v_mov_b32 v4, s{T0+1}")
    a(f"  s_lshl_b32 s{T0+2}, s{S_W}, 2")
    a(f"  v_mov_b32 v5, s{T0+2}")
    a(f"  v_add_u32 v5, {hex(VOTE)}, v5")
    a(f"  ds_write_b32 v5, v4")
    def publish_rest(with_q0):
        if with_q0:
            for t in range(4): emit(cvt0(t))
            a("  s_nop 0")
            emit(put(VPK, list(range(8)), 0))
        for t in range(4):
            emit(cvt1(t))
            a("  s_nop 0")
            emit(put(VPK+32, [2*t, 2*t+1], 1))
        a(f"  v_mov_b32 v4, v{VM}")
        a(f"  v_mov_b32 v5, v{VL}")
        a(f"  v_mov_b32 v6, v{VM+1}")
        a(f"  v_mov_b32 v7, v{VL+1}")
        def mlst(fl):
            a(f"  s_mov_b32 exec_hi, 0")
            a(f"  buffer_store_dwordx4 v[4:7], v{V_L16}, {R(R_WS)}, s{sML} offen{fl}")
            a(f"  s_mov_b32 exec_hi, -1")
        if opt.h1global: mlst(" sc0 sc1")
        else: dual(a, mlst)
    a("  s_waitcnt lgkmcnt(0)")
    a("  s_barrier")
    a(f"  v_mov_b32 v1, {hex(VOTE)}")
    a(f"  ds_read_b128 v[240:243], v1")
    publish_rest(not early)
    a(f"  s_lshl_b32 s{T0+2}, s{S_BG}, 9")
    a(f"  s_lshl_b32 s{T0+3}, s{S_W}, 7")
    a(f"  s_add_u32 s{T0+3}, s{T0+3}, s{T0+2}")
    a(f"  s_lshl_b32 s{T0+4}, s{S_J}, 2")
    a(f"  s_add_u32 s{T0+3}, s{T0+3}, s{T0+4}")
    a(f"  s_add_u32 s{T0+3}, s{T0+3}, {F1_OFF}")
    a("  s_waitcnt lgkmcnt(0)")
    a("  v_or_b32 v240, v240, v241")
    a("  v_or3_b32 v240, v240, v242, v243")
    a("  s_nop 0")
    a(f"  v_readfirstlane_b32 s{T0+1}, v240")
    a("  s_nop 3")
    a(f"  s_cmp_lg_u32 s{T0+1}, 0")
    a(f"  s_cbranch_scc1 L_safe")
    a("L_safe_back:")
    a("  s_waitcnt vmcnt(0) lgkmcnt(0)")
    set_flag(a, f"s{T0+3}", always_global=opt.h1global)
    if not ({'tailst','slowst'} & opt.bench): stamp(a, "H1 published")
    a("  s_barrier")
    VPA, VML, VAC = 32, 128, 96
    a(f"  s_lshl_b32 s{T0+4}, s{S_W}, 11")
    a(f"  v_add_u32 v8, s{T0+4}, v{V_L16}")
    a(f"  v_add_u32 v8, {hex(OWN)}, v8")
    a(f"  s_lshl_b32 s{T0+3}, s{S_J}, 7")
    a(f"  s_add_u32 s{T0+3}, s{T0+3}, s{T0+2}")
    a(f"  s_add_u32 s{T0+3}, s{T0+3}, {F1_OFF}")
    for qt in range(2):
        for s in range(2):
            a(f"  ds_read_b128 {vr(208+(qt*2+s)*4,4)}, v8 offset:{qt*8192+s*1024}")
    a(f"  s_lshl_b32 s{T0}, s{S_BG}, 2")
    a(f"  s_add_u32 s{T0}, s{T0}, s{S_J}")
    a(f"  s_lshl_b32 s{T0}, s{T0}, 2             ; (bg*4+j)*4")
    a(f"  s_lshl_b32 s{T0+1}, s{T0}, 14")
    a(f"  s_add_u32 s{T0+1}, s{T0+1}, s{S_LW}    ; + 2w*1024")
    a(f"  s_lshl_b32 s{T0+2}, s{T0}, 9")
    a("  v_and_b32 v2, 31, v0")
    a("  v_lshlrev_b32 v2, 4, v2")
    VWR = 192
    a(f"  s_lshl_b32 s{T0+4}, s{S_W}, 2")
    tr_addr(a, VWR, f"s{T0+4}", True, 'pv', 4)
    a(f"  v_add_u32 v{VWR+1}, 0x10000, v{VWR}")
    a(f"  v_add_u32 v{VWR+2}, 0x20000, v{VWR}")
    for kk in range(32):
        for r_ in range(2):
            off = WOLOC[kk >> 1] + (kk & 1)*4096 + r_*2048
            a(f"  ds_read_b64_tr_b16 {ar(128+kk*4+r_*2,2)}, v{VWR+(off>>16)} offset:{off & 65535}")
        if kk % 4 == 3 and kk < 31:
            a("  s_waitcnt lgkmcnt(4)")
    poll(a, f"s{T0+3}", 4)
    if not ({'tailst','slowst'} & opt.bench): stamp(a, "H1 flags seen")
    for jp in range(4):
        a(f"  s_add_u32 s{T0+3}, s{T0+2}, {WS_ML + jp*512}")
        a(f"  buffer_load_dwordx4 {vr(VML+jp*4,4)}, v2, {R(R_WS)}, s{T0+3} offen sc1")
    for jp in range(4):
        Ls = newlabel("skipown")
        a(f"  s_cmp_eq_u32 s{S_J}, {jp}")
        a(f"  s_cbranch_scc1 {Ls}")
        for qt in range(2):
            for s in range(2):
                a(f"  s_add_u32 s{T0+3}, s{T0+1}, {WS_MB + jp*16384 + qt*8192 + s*1024}")
                a(f"  buffer_load_dwordx4 {vr(VPA+jp*16+(qt*2+s)*4,4)}, v{V_L16}, {R(R_WS)}, s{T0+3} offen sc1")
        a(f"{Ls}:")
    a("  s_waitcnt vmcnt(12)")
    for qt in range(2):
        m = lambda jp: VML+jp*4+qt*2
        l = lambda jp: VML+jp*4+qt*2+1
        a(f"  v_max3_f32 v4, v{m(0)}, v{m(1)}, v{m(2)}")
        a(f"  v_max_f32 v4, v4, v{m(3)}")
        for jp in range(4):
            a(f"  v_sub_f32 v{m(jp)}, v{m(jp)}, v4")
        for jp in range(4):
            a(f"  v_exp_f32 v{m(jp)}, v{m(jp)}")
        a("  s_nop 0")
        a(f"  v_mul_f32 v5, v{m(0)}, v{l(0)}")
        for jp in range(1, 4):
            a(f"  v_fmac_f32 v5, v{m(jp)}, v{l(jp)}")
        a(f"  v_rcp_f32 v5, v5")
        a("  s_nop 0")
        for jp in range(4):
            a(f"  v_mul_f32 v{m(jp)}, v{m(jp)}, v5")
    for jp in range(4):
        Ls = newlabel("ownsc")
        a(f"  s_cmp_lg_u32 s{S_J}, {jp}")
        a(f"  s_cbranch_scc1 {Ls}")
        a(f"  v_mov_b32 v144, v{VML+jp*4}")
        a(f"  v_mov_b32 v146, v{VML+jp*4+2}")
        a(f"{Ls}:")
    a(f"  s_mov_b32 s{T0+4}, 0xffff0000")
    def acc_from(src, sc0, sc1, first):
        k = 0
        for qt in range(2):
            sc = sc0 if qt == 0 else sc1
            for s in range(2):
                for p in range(4):
                    r = src + (qt*2+s)*4 + p
                    d = VAC + qt*16 + s*8 + 2*p
                    t = 4 + 2*(k & 1); k += 1
                    a(f"  v_lshlrev_b32 v{t}, 16, v{r}")
                    a(f"  v_and_b32 v{t+1}, s{T0+4}, v{r}")
                    if first:
                        a(f"  v_pk_mul_f32 v[{d}:{d+1}], v[{t}:{t+1}], v[{sc}:{sc+1}] op_sel_hi:[1,0]")
                    else:
                        a(f"  v_pk_fma_f32 v[{d}:{d+1}], v[{t}:{t+1}], v[{sc}:{sc+1}], v[{d}:{d+1}] op_sel_hi:[1,0,1]")
    a("  s_waitcnt lgkmcnt(0)")
    acc_from(208, 144, 146, True)
    a("  s_waitcnt vmcnt(0)")
    for jp in range(4):
        Ls = newlabel("skipown2")
        a(f"  s_cmp_eq_u32 s{S_J}, {jp}")
        a(f"  s_cbranch_scc1 {Ls}")
        acc_from(VPA+jp*16, VML+jp*4, VML+jp*4+2, False)
        a(f"{Ls}:")
    VOF = 176
    for qt in range(2):
        for s in range(2):
            for p in range(4):
                r = VAC + qt*16 + s*8 + 2*p
                a(f"  v_cvt_pk_bf16_f32 v{VOF+(qt*2+s)*4+p}, v{r}, v{r+1}")
    a(f"  s_lshl_b32 s{T0}, s{S_B}, 5")
    a(f"  s_lshl_b32 s{T0+1}, s{S_G}, 2")
    a(f"  s_add_u32 s{T0}, s{T0}, s{T0+1}       ; b*32+4g")
    def ofst(fl):
        for qt in range(2):
            for s in range(2):
                a(f"  s_add_u32 s{T0+2}, s{sOFp}, {qt*8192+s*1024}")
                a(f"  buffer_store_dwordx4 {vr(VOF+(qt*2+s)*4,4)}, v{V_L16}, {R(R_WS)}, s{T0+2} offen{fl}")
    dual(a, ofst)
    a("  s_barrier")
    a(f"  v_add_u32 v8, s{S_LW}, v{V_L16}")
    for qt in range(2):
        for s in range(2):
            a(f"  ds_write_b128 v8, {vr(VOF+(qt*2+s)*4,4)} offset:{qt*8192+s*1024}")
    a(f"  s_lshl_b32 s{T0+2}, s{S_BG}, 7")
    a(f"  s_lshl_b32 s{T0+3}, s{S_J}, 4")
    a(f"  s_add_u32 s{T0+3}, s{T0+3}, s{T0+2}")
    a(f"  s_lshl_b32 s{T0+4}, s{S_W}, 2")
    a(f"  s_add_u32 s{T0+3}, s{T0+3}, s{T0+4}")
    a(f"  s_add_u32 s{T0+3}, s{T0+3}, {F2_OFF}")
    a("  s_waitcnt vmcnt(0)")
    set_flag(a, f"s{T0+3}")
    stamp(a, "OF published")
    a("  s_waitcnt lgkmcnt(0)")
    a("  s_barrier")
    ACC = 128
    NB = 6
    def rdB(kk):
        p, ks = kk >> 3, kk & 7
        return [f"  ds_read_b128 {vr(32+((kk%NB)*2+qt)*4,4)}, v{V_L16} offset:{(p*16+qt*8+ks)*1024}" for qt in range(2)]
    def gemm(k0, k1):
        for kk in range(k0, min(k0+NB-1, k1)): emit(rdB(kk))
        for kk in range(k0, k1):
            if kk + NB - 1 < k1:
                emit(rdB(kk+NB-1))
                a(f"  s_waitcnt lgkmcnt({2*(NB-1)})")
            else:
                a(f"  s_waitcnt lgkmcnt({2*(k1-1-kk)})")
            for qt in range(2):
                c = vr(ACC+16*qt,16) if kk else "0"
                a(f"  v_mfma_f32_32x32x16_bf16 {vr(ACC+16*qt,16)}, {ar(128+kk*4,4)}, {vr(32+((kk%NB)*2+qt)*4,4)}, {c}")
    gemm(0, 8)
    a(f"  s_add_u32 s{T0+3}, s{T0+2}, {F2_OFF}")
    poll(a, f"s{T0+3}", 16)
    if 'slowst' not in opt.bench: stamp(a, "H2 flags seen")
    a(f"  s_lshl_b32 s{T0+2}, s{S_W}, 12        ; w*4096")
    for p in range(1, 4):
        a(f"  s_add_u32 s{T0+1}, s{S_J}, {p}")
        a(f"  s_and_b32 s{T0+1}, s{T0+1}, 3")
        a(f"  s_add_u32 s{T0+1}, s{T0+1}, s{T0}")
        a(f"  s_lshl_b32 s{T0+1}, s{T0+1}, 14")
        a(f"  s_add_u32 s{T0+1}, s{T0+1}, s{T0+2}")
        for n in range(4):
            a(f"  s_add_u32 m0, s{T0+2}, {p*16384 + n*1024}")
            a(f"  s_add_u32 s{T0+3}, s{T0+1}, {WS_OF + n*1024}")
            a(f"  buffer_load_dwordx4 v{V_L16}, {R(R_WS)}, s{T0+3} offen sc1 lds")
    a("  s_waitcnt vmcnt(0)")
    a("  s_barrier")
    if 'tailst' in opt.bench: stamp(a, "OF landed"); a("  s_waitcnt lgkmcnt(0)")
    gemm(8, 32)
    if 'tailst' in opt.bench: stamp(a, "gemm done")
    a(f"  s_lshl_b32 s{T0}, s{S_B}, 2")
    a(f"  s_add_u32 s{T0}, s{T0}, s{S_J}        ; b*4+j")
    a(f"  s_lshl_b32 s{T0+1}, s{T0}, 3")
    a(f"  s_add_u32 s{T0+1}, s{T0+1}, s{S_G}")
    a(f"  s_lshl_b32 s{T0+1}, s{T0+1}, 15")
    a(f"  s_lshl_b32 s{T0+2}, s{S_W}, 13")
    a(f"  s_add_u32 s{T0+1}, s{T0+1}, s{T0+2}")
    a("  s_nop 7")
    for n in range(8):
        off = n*1024
        if (off & 4095) == 0:
            a(f"  s_add_u32 s{T0+2}, s{T0+1}, {WS_PO + off}")
        a(f"  buffer_store_dwordx4 {vr(ACC+n*4,4)}, v{V_L16}, {R(R_WS)}, s{T0+2} offen offset:{off & 4095} sc0 sc1")
    if 'tailst' in opt.bench: stamp(a, "PO stores issued")
    a("  s_waitcnt vmcnt(0)")
    a(f"  s_lshl_b32 s{T0+2}, s{T0}, 9")
    a(f"  s_lshl_b32 s{T0+3}, s{S_W}, 7")
    a(f"  s_add_u32 s{T0+3}, s{T0+3}, s{T0+2}")
    a(f"  s_lshl_b32 s{T0+4}, s{S_G}, 2")
    a(f"  s_add_u32 s{T0+3}, s{T0+3}, s{T0+4}")
    a(f"  s_add_u32 s{T0+3}, s{T0+3}, {F3_OFF}")
    set_flag(a, f"s{T0+3}", always_global=True)
    if 'slowst' not in opt.bench: stamp(a, "PO published")
    a(f"  s_lshr_b32 s{T0+3}, s{S_G}, 1")
    a(f"  s_lshl_b32 s{T0+3}, s{T0+3}, 7")
    a(f"  s_add_u32 s{T0+3}, s{T0+3}, s{T0+2}")
    a(f"  s_add_u32 s{T0+3}, s{T0+3}, {F3_OFF}")
    a(f"  s_lshl_b32 s{T0}, s{T0}, 18")
    a(f"  s_lshl_b32 s{T0+1}, s{S_G}, 12")
    a(f"  s_add_u32 s{T0}, s{T0}, s{T0+1}")
    a(f"  s_lshl_b32 s{T0+2}, s{S_W}, 10")
    a(f"  s_add_u32 s{T0}, s{T0}, s{T0+2}")
    if opt.progressive:
        Lp = newlabel("p5"); Lx = newlabel("p5x")
        sDONE, sNEW = T0+5, T0+6
        a(f"  s_mov_b32 s{sDONE}, 0")
        a(f"  s_mov_b32 s{S_SPIN}, {opt.timeout}")
        a(f"{Lp}:")
        a(f"  buffer_load_dword v4, v{V_FL}, {R(R_WS)}, s{T0+3} offen sc1")
        a(f"  s_sub_u32 s{S_SPIN}, s{S_SPIN}, 1")
        a(f"  s_cbranch_scc1 {Lx}")
        a(f"  s_waitcnt vmcnt(0)")
        a(f"  v_cmp_eq_u32 vcc, s{S_N}, v4")
        a(f"  s_nop 4")
        a(f"  s_andn2_b32 s{sNEW}, vcc_lo, s{sDONE}")
        a(f"  s_and_b32 s{sNEW}, s{sNEW}, 0xff")
        a(f"  s_or_b32 s{sDONE}, s{sDONE}, s{sNEW}")
        for gp in range(8):
            Ls = newlabel("p5s")
            a(f"  s_bitcmp1_b32 s{sNEW}, {gp}")
            a(f"  s_cbranch_scc0 {Ls}")
            a(f"  s_add_u32 s{T0+2}, s{T0}, {WS_PO + gp*32768}")
            a(f"  buffer_load_dwordx4 {vr(16+gp*4,4)}, v{V_L16}, {R(R_WS)}, s{T0+2} offen sc1")
            a(f"{Ls}:")
        a(f"  s_cmp_lg_u32 s{sDONE}, 0xff")
        a(f"  s_cbranch_scc1 {Lp}")
        a(f"{Lx}:")
        if 'tailst' in opt.bench: stamp(a, "H3 flags seen")
    else:
        poll(a, f"s{T0+3}", 8)
        if 'tailst' in opt.bench: stamp(a, "H3 flags seen")
        for gp in range(8):
            a(f"  s_add_u32 s{T0+2}, s{T0}, {WS_PO + gp*32768}")
            a(f"  buffer_load_dwordx4 {vr(16+gp*4,4)}, v{V_L16}, {R(R_WS)}, s{T0+2} offen sc1")
    srd(a, R_OUT, P_OUT, None, "0x80000")
    a(f"  s_lshl_b32 s{T0+3}, s{S_B}, 6")
    a(f"  s_and_b32 s{T0+4}, s{S_G}, 1")
    a(f"  s_lshl_b32 s{T0+4}, s{T0+4}, 5")
    a(f"  s_add_u32 s{T0+3}, s{T0+3}, s{T0+4}")
    a(f"  s_lshl_b32 s{T0+3}, s{T0+3}, 10")
    a(f"  s_lshl_b32 s{T0+4}, s{S_J}, 7")
    a(f"  s_lshr_b32 s{T0+5}, s{S_G}, 1")
    a(f"  s_lshl_b32 s{T0+5}, s{T0+5}, 5")
    a(f"  s_add_u32 s{T0+4}, s{T0+4}, s{T0+5}")
    a(f"  s_lshr_b32 s{T0+5}, s{S_W}, 1")
    a(f"  s_lshl_b32 s{T0+5}, s{T0+5}, 4")
    a(f"  s_add_u32 s{T0+4}, s{T0+4}, s{T0+5}")
    a(f"  s_and_b32 s{T0+5}, s{S_W}, 1")
    a(f"  s_lshl_b32 s{T0+5}, s{T0+5}, 2")
    a(f"  s_add_u32 s{T0+4}, s{T0+4}, s{T0+5}")
    a(f"  s_lshl_b32 s{T0+4}, s{T0+4}, 1")
    a(f"  s_add_u32 s{T0+3}, s{T0+3}, s{T0+4}")
    a("""  v_and_b32 v2, 31, v0
  v_lshrrev_b32 v3, 5, v0
  v_lshlrev_b32 v2, 10, v2
  v_lshl_add_u32 v2, v3, 4, v2""")
    a("  s_waitcnt vmcnt(0)")
    if 'tailst' in opt.bench: stamp(a, "PO loaded")
    for k in range(4):
        for gp in range(1, 8):
            a(f"  v_add_f32 v{16+k}, v{16+k}, v{16+gp*4+k}")
    a("  v_cvt_pk_bf16_f32 v4, v16, v17")
    a("  v_cvt_pk_bf16_f32 v5, v18, v19")
    a("  s_nop 1")
    a(f"  buffer_store_dwordx2 v[4:5], v2, {R(R_OUT)}, s{T0+3} offen")
    if opt.stamps:
        a("  s_waitcnt vmcnt(0)")
        stamp(a, "end")
        stamp_flush(a)
        if 'dbgst' in opt.bench:
            a("  s_cmp_lg_u32 s3, 0")
            a("  s_cbranch_scc1 L_done")
            for wg, base, idx in [(0, 1, [1, 3, 4, 5, 7, 9, 10]), (133, 8, [1, 3, 4, 5, 7, 9, 10])]:
                Lx = newlabel("dbg")
                a(f"  s_cmp_lg_u32 s2, {wg}")
                a(f"  s_cbranch_scc1 {Lx}")
                a("  s_mov_b64 exec, 1")
                for n_, k in enumerate(idx):
                    a(f"  s_sub_u32 s{T0}, s{S_T+2*k}, s{S_T}")
                    a(f"  v_mov_b32 v4, s{T0}")
                    a(f"  v_mov_b32 v5, {4*(base+n_)}")
                    a(f"  buffer_store_dword v4, v5, {R(R_DBG)}, 0 offen")
                    a("  s_nop 1")
                a(f"{Lx}:")
    a("L_done:")
    a("  s_endpgm")
    a("L_safe:")
    SK, SV = L_V + 6*8192, L_V + 7*8192
    a("  s_waitcnt vmcnt(0)")
    a("  s_barrier")
    for ks in range(8):
        a(f"  v_add_u32 v{224+ks}, {hex(SK)}, v{VKA+ks}")
    for qt in range(2):
        a(f"  v_mov_b32 v{VM+qt}, 0xff800000      ; -inf")
        a(f"  v_mov_b32 v{VL+qt}, 0")
    for r in range(64):
        a(f"  v_mov_b32 v{VO0+r}, 0")
        a(f"  v_accvgpr_write_b32 a{AO1+r}, 0")
    sI = 7
    a(f"  s_mov_b32 s{sI}, 0")
    a("L_safe_loop:")
    a(f"  s_add_u32 m0, s{S_LW}, {SK}")
    a(f"  s_nop 0")
    for ii in range(2):
        a(f"  buffer_load_dwordx4 v{VKD+ii}, {R(R_K)}, s{sI} offen offset:{ii*1024} lds")
    a(f"  s_add_u32 m0, s{S_LW}, {SV}")
    a(f"  s_nop 0")
    for ii in range(2):
        a(f"  buffer_load_dwordx4 v{VVD}, {R(R_V)}, s{sI} offen offset:{ii*1024} lds")
    a("  s_waitcnt vmcnt(0)")
    a("  s_barrier")
    for ks in range(8):
        a(f"  ds_read_b128 {ar(AK+ks*4,4)}, v{224+ks}")
    for s in range(2):
        for t in range(4):
            for rd in range(2):
                a(f"  ds_read_b64_tr_b16 {ar(AV+(t*2+s)*4+rd*2,2)}, v{VVA+t} offset:{7*8192+s*4096+rd*2048}")
    a("  s_waitcnt lgkmcnt(0)")
    a("  s_barrier")
    for qt in range(2):
        for ks in range(8):
            d = vr(VS+qt*16, 16)
            a(f"  v_mfma_f32_32x32x16_bf16 {d}, {ar(AK+ks*4,4)}, {ar(AQ+qt*32+ks*4,4)}, {d if ks else '0'}")
    a("  s_nop 15")
    for qt in range(2):
        r = VS + qt*16
        a(f"  v_max3_f32 v4, v{r}, v{r+1}, v{r+2}")
        for k in range(3, 15, 2):
            a(f"  v_max3_f32 v4, v4, v{r+k}, v{r+k+1}")
        a(f"  v_max_f32 v4, v4, v{r+15}")
        a(f"  v_mov_b32 v5, v4")
        a("  s_nop 1")
        a(f"  v_permlane32_swap_b32 v4, v5")
        a("  s_nop 1")
        a(f"  v_max3_f32 v4, v4, v5, v{VM+qt}")
        a(f"  v_sub_f32 v5, v{VM+qt}, v4")
        a(f"  v_exp_f32 v5, v5")
        a(f"  v_mov_b32 v{VM+qt}, v4")
        a(f"  v_mul_f32 v{VL+qt}, v{VL+qt}, v5")
        for k in range(16):
            a(f"  v_sub_f32 v{r+k}, v{r+k}, v4")
        for k in range(16):
            a(f"  v_exp_f32 v{r+k}, v{r+k}")
        a("  s_nop 0")
        for k in range(16):
            a(f"  v_add_f32 v{VL+qt}, v{VL+qt}, v{r+k}")
        for p in range(8):
            a(f"  v_cvt_pk_bf16_f32 v{VP+qt*8+p}, v{r+2*p}, v{r+2*p+1}")
        for t in range(4):
            for k in range(16):
                if qt == 0:
                    a(f"  v_mul_f32 v{VO0+t*16+k}, v{VO0+t*16+k}, v5")
                else:
                    a(f"  v_accvgpr_read_b32 v6, a{AO1+t*16+k}")
                    a(f"  v_mul_f32 v6, v6, v5")
                    a(f"  v_accvgpr_write_b32 a{AO1+t*16+k}, v6")
    a("  s_nop 1")
    for qt in range(2):
        for s in range(2):
            for t in range(4):
                d = Oreg(t, qt)
                a(f"  v_mfma_f32_32x32x16_bf16 {d}, {ar(AV+(t*2+s)*4,4)}, {vr(VP+qt*8+s*4,4)}, {d}")
    a(f"  s_add_u32 s{sI}, s{sI}, 8192")
    a(f"  s_cmp_lt_u32 s{sI}, {16*8192}")
    a("  s_nop 15")
    a(f"  s_cbranch_scc1 L_safe_loop")
    lreduce()
    a("  s_nop 7")
    a("  s_barrier")
    a(f"  v_add_u32 v{VOWN}, {hex(OWN)}, v{V_L16}")
    publish_rest(True)
    a(f"  s_lshl_b32 s{T0+2}, s{S_BG}, 9")
    a(f"  s_lshl_b32 s{T0+3}, s{S_W}, 7")
    a(f"  s_add_u32 s{T0+3}, s{T0+3}, s{T0+2}")
    a(f"  s_lshl_b32 s{T0+4}, s{S_J}, 2")
    a(f"  s_add_u32 s{T0+3}, s{T0+3}, s{T0+4}")
    a(f"  s_add_u32 s{T0+3}, s{T0+3}, {F1_OFF}")
    a("  s_branch L_safe_back")
    a(kernel_desc(KNAME, 512, 102, 256))
    return a.text()

if __name__ == "__main__":
    import argparse
    ap = argparse.ArgumentParser()
    ap.add_argument("out")
    ap.add_argument("--nostamps", action="store_true")
    ap.add_argument("--plain", action="store_true")
    ap.add_argument("--global_", action="store_true")
    ap.add_argument("--safe", action="store_true")
    ap.add_argument("--nolmfma", action="store_true")
    ap.add_argument("--noprog", action="store_true")
    ap.add_argument("--h1global", action="store_true")
    ap.add_argument("--dmapos", type=str, default="E")
    ap.add_argument("--vend", type=int, default=12)
    ap.add_argument("--kend", type=int, default=8)
    ap.add_argument("--hlat", type=int, default=6)
    ap.add_argument("--bench", type=str, default="")
    ap.add_argument("--tstart", type=int, default=11)
    ap.add_argument("--maxi", type=str, default="3,3,2")
    ap.add_argument("--kvpro", type=str, default="")
    ap.add_argument("--kvpost", type=str, default="")
    ap.add_argument("--kvmid", type=str, default="")
    ap.add_argument("--wosched", type=str, default="")
    ap.add_argument("--mbtouch", type=str, default="")
    ap.add_argument("--oftouch", type=int, default=-1)
    ap.add_argument("--fltouch", type=int, default=7)
    ap.add_argument("--wostart", type=int, default=10)
    ap.add_argument("--woper", type=int, default=3)
    x = ap.parse_args()
    opt.stamps = not x.nostamps
    opt.nt = "" if x.plain else " nt"
    opt.force_global = x.global_
    opt.force_safe = x.safe
    opt.lmfma = not x.nolmfma
    opt.progressive = not x.noprog
    opt.h1global = x.h1global
    opt.dmapos = x.dmapos
    opt.vend = x.vend
    opt.kend = x.kend
    opt.hlat = x.hlat
    opt.tstart = x.tstart
    if x.wosched: opt.wosched = [int(t) for t in x.wosched.split(',')]
    if x.mbtouch: opt.mbtouch = [int(t) for t in x.mbtouch.split(',')]
    opt.oftouch = x.oftouch
    opt.fltouch = x.fltouch
    opt.wostart = x.wostart
    opt.woper = x.woper
    opt.maxi = [int(t) for t in x.maxi.split(',')]
    if x.kvpro: opt.kvpro = [(int(t[0]), t[1], int(t[2:])) for t in x.kvpro.split(',')]
    if x.kvmid: opt.kvmid = [(t[0], int(t[1:])) for t in x.kvmid.split(',')]
    if x.kvpost: opt.kvpost = [(t[0], int(t[1:])) for t in x.kvpost.split(',')]
    opt.bench = set(x.bench.split(",")) if x.bench else set()
    open(x.out, "w").write(build())
```

```python
import sys, math, struct
from asmlib import *

WS_QF = 0x0000000
WS_MB = 0x0400000
WS_ML = 0x1400000
WS_OF = 0x0000000
WS_PO = 0x1900000
WS_FL = 0x2100000
FQ_OFF = WS_FL
F1_OFF = WS_FL + 0x4000
F2_OFF = WS_FL + 0x10000
F3_OFF = WS_FL + 0x14000
HL_OFF = WS_FL + 0x18000
WS_ST = 0x2200000
WS_SIZE = 0x2400000

def vr(a, n=1): return f"v{a}" if n == 1 else f"v[{a}:{a+n-1}]"
def ar(a, n=1): return f"a{a}" if n == 1 else f"a[{a}:{a+n-1}]"
def R(r): return f"s[{r}:{r+3}]"
SCALE = math.log2(math.e) / math.sqrt(128.0)
def f32hex(x): return "0x%08x" % struct.unpack("<I", struct.pack("<f", x))[0]

S_W, S_G, S_B, S_J = 3, 4, 5, 6
S_N, S_LOC, S_XCC, S_BG = 8, 9, 10, 11
S_LW, S_TILE, S_SPIN, S_T32 = 12, 13, 14, 15
P_X, P_K, P_V, P_WQ, P_WO, P_OUT, P_DBG, P_WS = 16, 18, 20, 22, 24, 26, 28, 30
R_K, R_V, R_X, R_WQ, R_WO, R_WS, R_OUT, R_DBG = 32, 36, 40, 44, 48, 52, 56, 60
T0 = 64
S_T = 80

L_K, L_V, L_X = 0x00000, 0x10000, 0x20000

V_DUM = 9
VKD, VVD, VWOD, V_L16, V_FL = 10, 12, 13, 14, 15
VKA, VVA, VL, VM = 16, 24, 28, 30
VS, VP, VN, VO0 = 32, 96, 128, 160
VXD, VWD, VWA, VXA = 224, 226, 227, 229
VONE, VLA = 240, 244
AO1, AQ, AK, AV = 0, 128, 192, 224
def Oreg(t, qt, k=0, n=16):
    return (vr(VO0+t*16+k, n) if qt == 0 else ar(AO1+t*16+k, n))

class Opt:
    stamps = True
    nt = " nt"
    timeout = 1 << 16
    force_global = False
    force_safe = False
    lmfma = True
    gemmq = True
    fastpro = True
    touchfl = ''
    h1global = False
    dmapos = 'B0'
    vend = 12
    kend = 8
    hlat = 6
    progressive = True
    tstart = 9
    wosched = [0,1,2,3, 7,8,9,10,11,12,13,14, 11,12,13,14]
    wotouch = -1
    mbtouch = [8,9,10,11,12,13,14,15]
    fltouch = 7
    oftouch = -1
    wostart = 10
    woper = 3
    maxi = [2]
    kvpro = [(5,'K',0), (6,'K',1), (7,'V',0)]
    kvmid = [('K',2)]
    kvpost = [('V',1), ('K',3), ('V',2), ('V',3)]
    bench = set()
opt = Opt()

def srd(a, r, p, off, size):
    if off is None:
        a(f"  s_mov_b32 s{r}, s{p}")
        a(f"  s_mov_b32 s{r+1}, s{p+1}")
    else:
        a(f"  s_add_u32 s{r}, s{p}, {off}")
        a(f"  s_addc_u32 s{r+1}, s{p+1}, 0")
    a(f"  s_mov_b32 s{r+2}, {size}")
    a(f"  s_mov_b32 s{r+3}, 0x20000")

nstamp = [0]
def stamp(a, name=""):
    if opt.stamps:
        k = nstamp[0]; nstamp[0] += 1
        assert k < 11, "too many stamps"
        a(f"  s_memrealtime s[{S_T+2*k}:{S_T+2*k+1}]")
def stamp_flush(a):
    if not opt.stamps: return
    n = nstamp[0]
    a("  s_waitcnt lgkmcnt(0)")
    a(f"  s_lshl_b32 s{T0}, s2, 2")
    a(f"  s_add_u32 s{T0}, s{T0}, s{S_W}")
    a(f"  s_mul_i32 s{T0}, s{T0}, 96")
    a(f"  s_add_u32 s{T0}, s{T0}, {WS_ST}")
    a("  v_mov_b32 v8, 0")
    for k in range(0, 12, 2):
        for u in range(2):
            kk = min(k+u, n-1)
            a(f"  v_mov_b32 v{4+2*u}, s{S_T+2*kk}")
            a(f"  v_mov_b32 v{5+2*u}, s{S_T+2*kk+1}")
        a(f"  s_add_u32 s{T0+1}, s{T0}, {k*8}")
        a(f"  s_mov_b64 exec, 1")
        a(f"  buffer_store_dwordx4 v[4:7], v8, {R(R_WS)}, s{T0+1} offen")
        a(f"  s_mov_b64 exec, -1")
        a("  s_nop 1")

def tr_addr(a, dst, tile, sigma, row_mode, tmp, base=0):
    t0, t1, t2, t3 = tmp, tmp+1, tmp+2, tmp+3
    a(f"  v_bfe_u32 v{t0}, v0, 4, 1")
    a(f"  v_and_b32 v{t1}, 3, v0")
    if sigma:
        a(f"  v_and_b32 v{t2}, 1, v{t1}")
        a(f"  v_lshrrev_b32 v{t1}, 1, v{t1}")
    else:
        a(f"  v_lshrrev_b32 v{t2}, 1, v{t1}")
        a(f"  v_and_b32 v{t1}, 1, v{t1}")
    a(f"  v_lshl_add_u32 v{t2}, v{t0}, 1, v{t2}")
    if isinstance(tile, int):
        a(f"  v_add_u32 v{t2}, {4*tile}, v{t2}")
    else:
        a(f"  v_add_u32 v{t2}, {tile}, v{t2}")
    a(f"  v_bfe_u32 v{t0}, v0, 2, 2")
    a(f"  v_lshlrev_b32 v{t3}, 2, v{t0}")
    a(f"  v_xor_b32 v{t2}, v{t2}, v{t3}")
    a(f"  v_lshlrev_b32 v{t2}, 4, v{t2}")
    a(f"  v_lshl_add_u32 v{t2}, v{t1}, 3, v{t2}")
    a(f"  v_lshrrev_b32 v{t3}, 5, v0")
    a(f"  v_lshl_add_u32 v{t3}, v{t3}, {3 if row_mode=='nat' else 2}, v{t0}")
    a(f"  v_lshl_add_u32 v{dst}, v{t3}, 8, v{t2}")
    if base:
        a(f"  v_add_u32 v{dst}, {hex(base)}, v{dst}")

lab = [0]
def newlabel(p):
    lab[0] += 1
    return f"L_{p}_{lab[0]}"

def poll(a, soff, nwords):
    L = newlabel("poll"); Lx = newlabel("pollx")
    mask = (1 << nwords) - 1
    a(f"  s_mov_b32 s{S_SPIN}, {opt.timeout}")
    a(f"{L}:")
    a(f"  buffer_load_dword v4, v{V_FL}, {R(R_WS)}, {soff} offen sc1")
    a(f"  s_sub_u32 s{S_SPIN}, s{S_SPIN}, 1")
    a(f"  s_cbranch_scc1 {Lx}")
    a(f"  s_waitcnt vmcnt(0)")
    a(f"  v_cmp_ne_u32 vcc, s{S_N}, v4")
    a(f"  s_nop 4")
    a(f"  s_and_b32 s{T0+15}, vcc_lo, {hex(mask)}")
    a(f"  s_cbranch_scc1 {L}")
    a(f"{Lx}:")

def set_flag(a, soff, always_global=False):
    a(f"  v_mov_b32 v4, s{S_N}")
    a(f"  v_mov_b32 v5, 0")
    a(f"  s_mov_b64 exec, 1")
    if always_global:
        a(f"  buffer_store_dword v4, v5, {R(R_WS)}, {soff} offen sc0 sc1")
    else:
        Lg = newlabel("fg"); Le = newlabel("fe")
        a(f"  s_cmp_eq_u32 s{S_LOC}, 0")
        a(f"  s_cbranch_scc1 {Lg}")
        a(f"  buffer_store_dword v4, v5, {R(R_WS)}, {soff} offen")
        a(f"  s_branch {Le}")
        a(f"{Lg}:")
        a(f"  buffer_store_dword v4, v5, {R(R_WS)}, {soff} offen sc0 sc1")
        a(f"{Le}:")
    a(f"  s_mov_b64 exec, -1")

def dual(a, emit):
    Lg = newlabel("sg"); Le = newlabel("se")
    a(f"  s_cmp_eq_u32 s{S_LOC}, 0")
    a(f"  s_cbranch_scc1 {Lg}")
    emit("")
    a(f"  s_branch {Le}")
    a(f"{Lg}:")
    emit(" sc0 sc1")
    a(f"{Le}:")

class Fifo:
    def __init__(self): self.ops = []
    def push(self, tag, n=1): self.ops += [tag] * n
    def after(self, tags):
        idx = [i for i, t in enumerate(self.ops) if t in tags]
        if not idx: return 63
        return min(63, len(self.ops) - 1 - max(idx))

def build():
    nstamp[0] = 0
    a = Asm()
    a(HEADER_COMMENT.rstrip())
    a("; @launch grid=(256,1,1) block=(256,1,1) lds=163840")
    a("""; One fused launch, 256 workgroups (one per CU), workgroup id = g + 8*(4*b + j): kv head g, batch b, key quarter j.
; stores only when the four workgroups report the same XCC id, write-through (sc0 sc1) stores otherwise; readers use sc1 loads.""")
    a('.amdgcn_target "amdgcn-amd-amdhsa--gfx950"')
    a(kernel_start(KNAME).rstrip())
    fifo = Fifo()
    def emit(lst):
        for l in lst: a(l)
    a(f"""  s_cmp_ge_u32 s2, 256
  s_cbranch_scc1 L_done
  s_load_dwordx16 s[16:31], s[0:1], 0
  s_memrealtime s[{T0}:{T0+1}]
  s_getreg_b32 s{S_XCC}, hwreg(HW_REG_XCC_ID)
  v_lshrrev_b32 v1, 6, v0
  v_and_b32 v0, 63, v0
  s_and_b32 s{S_G}, s2, 7
  v_readfirstlane_b32 s{S_W}, v1
  s_lshr_b32 s{S_T32}, s2, 3
  s_lshr_b32 s{S_B}, s{S_T32}, 2
  s_and_b32 s{S_J}, s{S_T32}, 3
  s_and_b32 s{S_XCC}, s{S_XCC}, 7
  s_lshl_b32 s{S_BG}, s{S_B}, 3
  s_add_u32 s{S_BG}, s{S_BG}, s{S_G}
  v_lshlrev_b32 v{V_L16}, 4, v0
  v_lshlrev_b32 v{V_FL}, 2, v0
  s_lshl_b32 s{S_LW}, s{S_W}, 11
  v_lshrrev_b32 v2, 4, v0             ; l>>4
  v_and_b32 v3, 15, v0                ; l&15
  v_lshrrev_b32 v4, 3, v0             ; l>>3
  v_and_b32 v5, 7, v0                 ; l&7
  v_xor_b32 v6, v5, v2
  v_lshlrev_b32 v6, 4, v6
  v_lshl_add_u32 v{VXD}, v4, 10, v6
  v_add_u32 v7, 4, v2
  v_xor_b32 v6, v5, v7
  v_lshlrev_b32 v6, 4, v6
  v_lshl_add_u32 v{VXD+1}, v4, 10, v6
  v_lshlrev_b32 v6, 2, v2
  v_xor_b32 v6, v6, v3
  v_lshlrev_b32 v6, 4, v6
  v_lshl_add_u32 v{VWD}, v2, 13, v6
  v_lshlrev_b32 v8, 7, v5
  s_waitcnt lgkmcnt(0)""")
    if opt.stamps:
        a(f"  s_mov_b32 s{S_T}, s{T0}")
        a(f"  s_mov_b32 s{S_T+1}, s{T0+1}")
        nstamp[0] = 1
    a(f"  s_lshl_b32 s{T0+2}, s{S_T32}, 2")
    a(f"  s_add_u32 s{T0+2}, s{T0+2}, s{S_W}        ; id")
    srd(a, R_WQ, P_WQ, None, "0x400000")
    srd(a, R_X, P_X, None, "0x80000")
    if 'touch1' in opt.bench:
        a(f"  s_cmp_ge_u32 s{T0+2}, 64")
        a(f"  s_cbranch_scc1 L_touchx")
        a(f"  v_lshl_add_u32 v7, v4, 13, v8          ; (l>>3)*8192 + (l&7)*128")
        a(f"  s_lshl_b32 s{T0+3}, s{T0+2}, 16        ; 8*id*8192")
        a(f"  s_lshl_b32 s{T0+4}, s{S_G}, 10")
        a(f"  s_add_u32 s{T0+3}, s{T0+3}, s{T0+4}")
        a(f"  buffer_load_dword v{V_DUM}, v7, {R(R_WQ)}, s{T0+3} offen")
        a(f"  s_branch L_touchd")
        a(f"L_touchx:")
        a(f"  v_lshl_add_u32 v7, v4, 10, v8          ; (l>>3)*1024 + (l&7)*128")
        a(f"  s_sub_u32 s{T0+3}, s{T0+2}, 64")
        a(f"  s_lshl_b32 s{T0+3}, s{T0+3}, 13        ; 8*rows*1024")
        a(f"  buffer_load_dword v{V_DUM}, v7, {R(R_X)}, s{T0+3} offen")
        a(f"L_touchd:")
        fifo.push('T')
    srd(a, R_WS, P_WS, None, hex(WS_SIZE))
    srd(a, R_DBG, P_DBG, None, "0x100")
    a(f"  s_mov_b32 s{S_SPIN}, s{T0}")
    a(f"""  s_cmp_lg_u32 s2, 0
  s_cbranch_scc1 L_nononce
  s_cmp_lg_u32 s{S_W}, 0
  s_cbranch_scc1 L_nononce
  s_lshl_b32 s{T0+4}, s{S_SPIN}, 4
  s_or_b32 s{T0+4}, s{T0+4}, 0x80000000
  v_mov_b32 v6, s{T0+4}
  v_mov_b32 v7, 0
  s_mov_b64 exec, 1
  buffer_store_dword v6, v7, {R(R_DBG)}, 0 offen sc0 sc1
  s_mov_b64 exec, -1
L_nononce:""")
    a(f"  s_lshl_b32 s{T0+3}, s{S_B}, 16")
    srd(a, R_X, P_X, f"s{T0+3}", "0x10000")
    a(f"  s_lshl_b32 s{T0+3}, s{S_G}, 2")
    a(f"  s_add_u32 s{T0+3}, s{T0+3}, s{S_J}          ; h_own")
    a(f"  s_lshl_b32 s{T0+4}, s{T0+3}, 8")
    srd(a, R_WQ, P_WQ, f"s{T0+4}", "0x400000")
    a(f"  s_sub_u32 s{R_WQ+2}, s{R_WQ+2}, s{T0+4}")
    sXg, sXl, sWg, sWl, sO = T0+6, T0+7, T0+8, T0+9, T0+10
    a(f"  s_lshl_b32 s{sXg}, s{S_W}, 14")
    a(f"  s_lshl_b32 s{sWg}, s{S_W}, 17")
    a(f"  s_lshl_b32 s{sWl}, s{S_W}, 12")
    NCH = 4
    WSLOT = [L_K + 0x8000, L_K + 0xC000, L_V + 0x8000, L_V + 0xC000]
    XSLOT = [L_X + i*0x2000 for i in range(4)]
    sROT, sWc, sXc = T0+11, T0+12, T0+7
    a(f"  s_lshl_b32 s{sROT}, s{S_J}, 1")
    a(f"  s_add_u32 s{sROT}, s{sROT}, s{S_B}")
    def chunk_ops(c):
        slot = c % NCH
        out = [f"  s_add_u32 s{sWc}, s{sROT}, {c}",
               f"  s_and_b32 s{sWc}, s{sWc}, 7",
               f"  s_lshl_b32 s{sXc}, s{sWc}, 7",
               f"  s_add_u32 s{sXc}, s{sXc}, s{sXg}",
               f"  s_lshl_b32 s{sWc}, s{sWc}, 19",
               f"  s_add_u32 s{sWc}, s{sWc}, s{sWg}"]
        for ii in range(4):
            out.append(f"  s_add_u32 m0, s{sWl}, {WSLOT[slot] + ii*1024}")
            out.append(f"  s_add_u32 s{sO}, s{sWc}, {ii*32768}")
            out.append(f"  buffer_load_dwordx4 v{VWD}, {R(R_WQ)}, s{sO} offen lds")
        for ii in range(2):
            out.append(f"  s_add_u32 m0, s{S_LW}, {XSLOT[slot] + ii*1024}")
            out.append(f"  s_add_u32 s{sO}, s{sXc}, {ii*8192}")
            out.append(f"  buffer_load_dwordx4 v{VXD+ii}, {R(R_X)}, s{sO} offen lds")
        fifo.push(('C', c), 6)
        return out
    def issue_chunk(c):
        emit(chunk_ops(c))
    issue_chunk(0)
    a(f"  s_lshl_b32 s{T0}, s{S_B}, 5")
    a(f"  s_lshl_b32 s{T0+1}, s{S_G}, 2")
    a(f"  s_add_u32 s{T0}, s{T0}, s{T0+1}")
    a(f"  s_add_u32 s{T0+1}, s{T0}, s{S_J}")
    a(f"  s_lshl_b32 s{T0+1}, s{T0+1}, 14")
    a(f"  s_add_u32 s{T0+1}, s{T0+1}, s{S_LW}")
    VMBT = 233
    a(f"""  v_bfe_u32 v4, v0, 4, 1
  v_bfe_u32 v5, v0, 3, 1
  v_and_b32 v6, 7, v0
  v_lshlrev_b32 v4, 13, v4
  v_lshl_add_u32 v4, v5, 10, v4
  v_lshl_add_u32 v{VMBT}, v6, 7, v4        ; qt*8192 + s*1024 + u*128""")
    issue_chunk(1)
    a(f"  s_lshl_b32 s{T0+2}, s{S_W}, 2")
    tr_addr(a, VWA, f"s{T0+2}", True, 'nat', 4, base=L_K + 0x8000)
    a(f"  v_add_u32 v{VWA+1}, 0x10000, v{VWA}")
    a("""  v_and_b32 v6, 31, v0
  v_lshrrev_b32 v7, 5, v0
  v_bfe_u32 v8, v0, 1, 3""")
    for ks in range(4):
        a(f"  v_add_u32 v1, {2*ks}, v7")
        a(f"  v_xor_b32 v1, v1, v8")
        a(f"  v_lshlrev_b32 v1, 4, v1")
        a(f"  v_lshl_add_u32 v{VXA+ks}, v6, 7, v1")
        a(f"  v_add_u32 v{VXA+ks}, {hex(L_X)}, v{VXA+ks}")
    issue_chunk(2)
    a(f"  s_lshl_b32 s{T0+3}, s{S_BG}, 19")
    a(f"  s_lshl_b32 s{T0+4}, s{S_J}, 17")
    a(f"  s_add_u32 s{T0+3}, s{T0+3}, s{T0+4}")
    srd(a, R_K, P_K, f"s{T0+3}", "0x20000")
    srd(a, R_V, P_V, f"s{T0+3}", "0x20000")
    a(f"  s_lshl_b32 s{T0+2}, s{S_W}, 3")
    for i in range(2):
        a(f"  v_add_u32 v4, s{T0+2}, v2")
        a(f"  v_add_u32 v5, {4*i}, v4")
        a(f"  v_and_b32 v5, 15, v5")
        a(f"  v_xor_b32 v5, v5, v3")
        a(f"  v_lshlrev_b32 v5, 4, v5")
        a(f"  v_lshl_add_u32 v{VKD+i}, v4, 8, v5")
    a(f"  v_lshlrev_b32 v5, 2, v2")
    a(f"  v_xor_b32 v5, v5, v3")
    a(f"  v_lshlrev_b32 v5, 4, v5")
    a(f"  v_lshl_add_u32 v{VVD}, v4, 8, v5")
    a(f"  v_lshl_add_u32 v{VWOD}, v4, 10, v5")
    RKN = RVN = 8
    def dmaK(i):
        out = [f"  s_add_u32 m0, s{S_LW}, {L_K+(i%RKN)*8192}", f"  s_mov_b32 s{S_TILE}, {i*8192}"]
        for ii in range(2):
            out.append(f"  buffer_load_dwordx4 v{VKD+ii}, {R(R_K)}, s{S_TILE} offen offset:{ii*1024}{opt.nt} lds")
        fifo.push(('K', i), 2)
        if 'nodma' in opt.bench and i >= 8: return []
        return out
    def dmaV(i):
        out = [f"  s_add_u32 m0, s{S_LW}, {L_V+(i%RVN)*8192}", f"  s_mov_b32 s{S_TILE}, {i*8192}"]
        for ii in range(2):
            out.append(f"  buffer_load_dwordx4 v{VVD}, {R(R_V)}, s{S_TILE} offen offset:{ii*1024}{opt.nt} lds")
        fifo.push(('V', i), 2)
        if 'nodma' in opt.bench and i >= 8: return []
        return out
    if 'nowarm' not in opt.bench:
        a(f"  v_mov_b32 v5, 0")
        a(f"  s_add_u32 s{T0+2}, s{T0+1}, {WS_QF}")
        a(f"  buffer_load_dword v{V_DUM}, v{VMBT}, {R(R_WS)}, s{T0+2} offen")
        a(f"  s_lshl_b32 s{T0+2}, s{S_BG}, 7")
        a(f"  s_add_u32 s{T0+3}, s{T0+2}, {FQ_OFF}")
        a(f"  buffer_load_dword v{V_DUM}, v5, {R(R_WS)}, s{T0+3} offen")
        a(f"  buffer_load_dword v{V_DUM}, v5, {R(R_K)}, 0 offen")
        a(f"  buffer_load_dword v{V_DUM}, v5, {R(R_V)}, 0 offen")
        fifo.push('T', 4)
        if 'tlbwarm' in opt.bench:
            a(f"  s_lshl_b32 s{T0+3}, s{S_BG}, 18")
            a(f"  s_add_u32 s{T0+3}, s{T0+3}, {WS_MB}")
            a(f"  buffer_load_dword v{V_DUM}, v5, {R(R_WS)}, s{T0+3} offen")
            a(f"  s_lshl_b32 s{T0+3}, s{S_BG}, 13")
            a(f"  s_add_u32 s{T0+3}, s{T0+3}, {WS_ML}")
            a(f"  buffer_load_dword v{V_DUM}, v5, {R(R_WS)}, s{T0+3} offen")
            a(f"  s_lshl_b32 s{T0+3}, s{S_B}, 20")
            a(f"  s_lshl_b32 s{T0+4}, s{S_J}, 18")
            a(f"  s_add_u32 s{T0+3}, s{T0+3}, s{T0+4}")
            a(f"  s_add_u32 s{T0+3}, s{T0+3}, {WS_PO}")
            a(f"  buffer_load_dword v{V_DUM}, v5, {R(R_WS)}, s{T0+3} offen")
            a(f"  s_lshl_b32 s{T0+3}, s{S_G}, 19")
            a(f"  s_add_u32 s{T0+4}, s{P_WO}, s{T0+3}")
            a(f"  s_addc_u32 s{T0+5}, s{P_WO+1}, 0")
            a(f"  global_load_dword v{V_DUM}, v5, s[{T0+4}:{T0+5}]")
            fifo.push('T', 4)
    AF, BF, ACC = 32, 64, 128
    def reads(kc):
        out = []
        slot = kc % NCH; buf = kc & 1
        wo = WSLOT[slot] - (L_K + 0x8000)
        for ks in range(4):
            for rd in range(2):
                off = wo + ks*4096 + rd*1024
                out.append(f"  ds_read_b64_tr_b16 {vr(AF+buf*16+ks*4+rd*2,2)}, v{VWA+(off>>16)} offset:{off & 65535}")
            for qt in range(2):
                out.append(f"  ds_read_b128 {vr(BF+buf*32+ks*8+qt*4,4)}, v{VXA+ks} offset:{slot*8192+qt*4096}")
        return out
    if 'p1st' in opt.bench: stamp(a, "before C0 wait")
    a(f"  s_waitcnt vmcnt({fifo.after([('C',0)])})")
    a("  s_barrier")
    if 'p1st' in opt.bench: stamp(a, "C0 landed")
    emit(reads(0))
    kvpro = list(opt.kvpro)
    for c in range(8):
        if c + 1 < 8:
            a(f"  s_waitcnt vmcnt({fifo.after([('C',c+1)])}) lgkmcnt(0)")
            a("  s_barrier")
            if 'p1st' in opt.bench: stamp(a, f"C{c+1} landed")
            if c == 3:
                Ln = newlabel("nonce"); Lnx = newlabel("noncex"); Lnc = newlabel("noncechk")
                a(f"  s_mov_b32 s{S_SPIN}, {opt.timeout}")
                a(f"  s_branch {Lnc}")
                a(f"{Ln}:")
                a(f"  buffer_load_dword v8, v5, {R(R_DBG)}, 0 offen sc1")
                a(f"  s_sub_u32 s{S_SPIN}, s{S_SPIN}, 1")
                a(f"  s_cbranch_scc1 {Lnx}")
                a(f"  s_waitcnt vmcnt(0)")
                a(f"{Lnc}:")
                a(f"  v_readfirstlane_b32 s{S_N}, v8")
                a(f"  s_nop 3")
                a(f"  s_cmp_eq_u32 s{S_N}, 0")
                a(f"  s_cbranch_scc1 {Ln}")
                a(f"{Lnx}:")
                Lw = newlabel("hw"); Lwd = newlabel("hwd")
                a(f"  s_lshl_b32 s{T0+2}, s{S_BG}, 7")
                a(f"  s_lshl_b32 s{T0+3}, s{S_J}, 2")
                a(f"  s_add_u32 s{T0+2}, s{T0+2}, s{T0+3}")
                a(f"  s_add_u32 s{T0+2}, s{T0+2}, {HL_OFF}")
                a(f"  s_cmp_lg_u32 s{S_W}, 0")
                a(f"  s_cbranch_scc1 {Lw}")
                a(f"  s_or_b32 s{T0+3}, s{S_N}, s{S_XCC}")
                a(f"  v_mov_b32 v8, s{T0+3}")
                a(f"  s_mov_b64 exec, 1")
                a(f"  buffer_store_dword v8, v5, {R(R_WS)}, s{T0+2} offen sc0 sc1")
                a(f"  s_mov_b64 exec, -1")
                a(f"  s_branch {Lwd}")
                a(f"{Lw}:")
                a(f"  buffer_load_dword v{V_DUM}, v5, {R(R_DBG)}, 0 offen")
                a(f"{Lwd}:")
                fifo.push('H')
        else:
            a("  s_waitcnt lgkmcnt(0)")
        fill = []
        if c + 1 < 8: fill += reads(c + 1)
        dm = []
        if c + 3 < 8: dm += chunk_ops(c + 3)
        if c == 0:
            dm += [f"  v_mov_b32 v5, 0", f"  buffer_load_dword v8, v5, {R(R_DBG)}, 0 offen sc1"]
            fifo.push('NL')
        if c == opt.hlat:
            dm += [f"  s_lshl_b32 s{T0+2}, s{S_BG}, 7", f"  s_add_u32 s{T0+2}, s{T0+2}, {HL_OFF}",
                   f"  buffer_load_dwordx4 v[4:7], v5, {R(R_WS)}, s{T0+2} offen sc1"]
            fifo.push('HL')
        for (cc, kind, i) in kvpro:
            if cc == c: dm += (dmaK(i) if kind == 'K' else dmaV(i))
        buf = c & 1
        mf = []
        for ks in range(4):
            for qt in range(2):
                cc_ = vr(ACC+16*qt,16) if (c or ks) else "0"
                mf.append(f"  v_mfma_f32_32x32x16_bf16 {vr(ACC+16*qt,16)}, {vr(AF+buf*16+ks*4,4)}, {vr(BF+buf*32+ks*8+qt*4,4)}, {cc_}")
        allf = fill + dm
        n = len(mf)
        for i_, m_ in enumerate(mf):
            a(m_)
            lo = len(allf)*i_//n; hi = len(allf)*(i_+1)//n
            emit(allf[lo:hi])
    Lh = newlabel("hello"); Lhx = newlabel("hellox"); Lh2 = newlabel("hellochk")
    a(f"  s_mov_b32 s{S_SPIN}, {opt.timeout}")
    a(f"  s_waitcnt vmcnt({fifo.after(['HL'])})")
    a(f"  s_branch {Lh2}")
    a(f"{Lh}:")
    a(f"  buffer_load_dwordx4 v[4:7], v5x, {R(R_WS)}, s{T0+2} offen sc1".replace("v5x", "v1"))
    a(f"  s_sub_u32 s{S_SPIN}, s{S_SPIN}, 1")
    a(f"  s_cbranch_scc1 {Lhx}")
    a(f"  s_waitcnt vmcnt(0)")
    a(f"{Lh2}:")
    a(f"  v_mov_b32 v1, 0")
    a(f"  v_xor_b32 v4, s{S_N}, v4")
    a(f"  v_xor_b32 v5, s{S_N}, v5")
    a(f"  v_xor_b32 v6, s{S_N}, v6")
    a(f"  v_xor_b32 v7, s{S_N}, v7")
    a(f"  v_or_b32 v8, v4, v5")
    a(f"  v_or3_b32 v8, v8, v6, v7")
    a(f"  s_nop 0")
    a(f"  v_readfirstlane_b32 s{T0+3}, v8")
    a(f"  s_nop 3")
    a(f"  s_cmp_gt_u32 s{T0+3}, 7")
    a(f"  s_cbranch_scc1 {Lh}")
    a(f"{Lhx}:")
    a(f"  v_xor_b32 v4, s{S_XCC}, v4")
    a(f"  v_xor_b32 v5, s{S_XCC}, v5")
    a(f"  v_xor_b32 v6, s{S_XCC}, v6")
    a(f"  v_xor_b32 v7, s{S_XCC}, v7")
    a(f"  v_or_b32 v8, v4, v5")
    a(f"  v_or3_b32 v8, v8, v6, v7")
    a(f"  s_nop 0")
    a(f"  v_readfirstlane_b32 s{T0+3}, v8")
    a(f"  s_nop 3")
    a(f"  s_cmp_eq_u32 s{T0+3}, 0")
    a(f"  s_cselect_b32 s{S_LOC}, 1, 0")
    if opt.force_global:
        a(f"  s_mov_b32 s{S_LOC}, 0")
    a(f"  s_mov_b32 s{sO}, {f32hex(SCALE)}")
    for i in range(32):
        a(f"  v_mul_f32 v{ACC+i}, s{sO}, v{ACC+i}")
    for qt in range(2):
        for s in range(2):
            for p in range(4):
                r = ACC + 16*qt + 8*s + 2*p
                a(f"  v_cvt_pk_bf16_f32 v{32+qt*8+s*4+p}, v{r}, v{r+1}")
    if not ({'p2st','tailst','slowst'} & opt.bench): stamp(a, "P1 done")
    if 'p1st' in opt.bench:
        stamp_flush(a); a("L_done:"); a("  s_endpgm"); a(kernel_desc(KNAME, 512, 102, 256)); return a.text()
    def qst(fl):
        for qt in range(2):
            for s in range(2):
                a(f"  s_add_u32 s{T0+2}, s{T0+1}, {WS_QF + qt*8192+s*1024}")
                a(f"  buffer_store_dwordx4 {vr(32+qt*8+s*4,4)}, v{V_L16}, {R(R_WS)}, s{T0+2} offen{fl}")
    dual(a, qst)
    fifo.push('QS', 4)
    for kind, i in opt.kvmid:
        emit(dmaK(i) if kind == 'K' else dmaV(i))
    a("""  v_and_b32 v4, 31, v0
  v_lshrrev_b32 v5, 5, v0
  v_and_b32 v6, 15, v0""")
    for ks in range(8):
        a(f"  v_add_u32 v7, {2*ks}, v5")
        a(f"  v_xor_b32 v7, v7, v6")
        a(f"  v_lshlrev_b32 v7, 4, v7")
        a(f"  v_lshl_add_u32 v{VKA+ks}, v4, 8, v7")
    a(f"  s_lshl_b32 s{T0+2}, s{S_BG}, 7")
    a(f"  s_lshl_b32 s{T0+3}, s{S_J}, 4")
    a(f"  s_add_u32 s{T0+3}, s{T0+3}, s{T0+2}")
    a(f"  s_lshl_b32 s{T0+4}, s{S_W}, 2")
    a(f"  s_add_u32 s{T0+3}, s{T0+3}, s{T0+4}")
    a(f"  s_add_u32 s{T0+3}, s{T0+3}, {FQ_OFF}")
    a(f"  s_waitcnt vmcnt({fifo.after(['QS'])})")
    set_flag(a, f"s{T0+3}")
    if not ({'p2st','tailst','slowst'} & opt.bench): stamp(a, "Q published")
    for t in range(4):
        tr_addr(a, VVA+t, t, False, 'pv', 4, base=L_V)
    a(f"  s_lshl_b32 s{T0+3}, s{S_W}, 4")
    a(f"  s_add_u32 s{T0+3}, s{T0+3}, s{T0+2}")
    a(f"  s_add_u32 s{T0+3}, s{T0+3}, {FQ_OFF}")
    a(f"  s_lshl_b32 s{T0+4}, s{S_G}, 19")
    a(f"  s_lshl_b32 s{T0+5}, s{S_J}, 8")
    a(f"  s_add_u32 s{T0+4}, s{T0+4}, s{T0+5}")
    srd(a, R_WO, P_WO, f"s{T0+4}", "0x400000")
    a(f"  s_sub_u32 s{R_WO+2}, s{R_WO+2}, s{T0+4}")
    sWOp = T0+6
    for p in range(4):
        a(f"  s_add_u32 s{sWOp+p}, s{S_J}, {p}")
        a(f"  s_and_b32 s{sWOp+p}, s{sWOp+p}, 3")
        a(f"  s_lshl_b32 s{sWOp+p}, s{sWOp+p}, 17")
    sMB, sML = T0+13, T0+14
    a(f"  s_lshl_b32 s{sMB}, s{S_BG}, 2")
    a(f"  s_add_u32 s{sMB}, s{sMB}, s{S_W}")
    a(f"  s_lshl_b32 s{sMB}, s{sMB}, 2")
    a(f"  s_add_u32 s{sMB}, s{sMB}, s{S_J}        ; (bg*4+w)*4+j")
    a(f"  s_lshl_b32 s{sML}, s{sMB}, 9")
    a(f"  s_add_u32 s{sML}, s{sML}, {WS_ML}")
    a(f"  s_lshl_b32 s{sMB}, s{sMB}, 14")
    a(f"  s_add_u32 s{sMB}, s{sMB}, {WS_MB}")
    sMODE = T0+12
    a(f"  s_xor_b32 s{sMODE}, s{S_LOC}, 1")
    if opt.h1global: a(f"  s_mov_b32 s{sMODE}, 1")
    a(f"  s_cmp_eq_u32 s{S_W}, s{S_J}")
    a(f"  s_cselect_b32 s{sMODE}, 2, s{sMODE}")
    VT4, VT16, VWT = 235, 236, 234
    a(f"  v_and_b32 v{VT4}, 3, v0")
    a(f"  v_lshlrev_b32 v{VT4}, 7, v{VT4}         ; (lane&3)*128")
    a(f"  v_and_b32 v{VT16}, 15, v0")
    a(f"  s_cselect_b32 s{S_TILE}, 0, 128")
    a(f"  v_mul_u32_u24 v{VT16}, s{S_TILE}, v{VT16}")
    a(f"  v_bfe_u32 v4, v0, 3, 2")
    a(f"  v_and_b32 v5, 7, v0")
    a(f"  v_lshlrev_b32 v5, 7, v5")
    a(f"  v_lshl_add_u32 v{VWT}, v4, 10, v5")
    sOFp = T0+11
    a(f"  s_lshl_b32 s{sOFp}, s{S_B}, 5")
    a(f"  s_lshl_b32 s{S_TILE}, s{S_G}, 2")
    a(f"  s_add_u32 s{sOFp}, s{sOFp}, s{S_TILE}")
    a(f"  s_add_u32 s{sOFp}, s{sOFp}, s{S_J}")
    a(f"  s_lshl_b32 s{sOFp}, s{sOFp}, 14")
    a(f"  s_add_u32 s{sOFp}, s{sOFp}, s{S_LW}")
    a(f"  s_add_u32 s{sOFp}, s{sOFp}, {WS_OF}")
    poll(a, f"s{T0+3}", 4)
    fifo.ops = []
    a(f"  s_add_u32 s{T0+1}, s{T0}, s{S_W}")
    a(f"  s_lshl_b32 s{T0+1}, s{T0+1}, 14")
    for qt in range(2):
        for ks in range(8):
            off = qt*8192 + ks*1024
            if (off & 4095) == 0:
                a(f"  s_add_u32 s{T0+2}, s{T0+1}, {WS_QF + off}")
            a(f"  buffer_load_dwordx4 {ar(AQ+qt*32+ks*4,4)}, v{V_L16}, {R(R_WS)}, s{T0+2} offen offset:{off & 4095} sc1")
    fifo.push('Q', 16)
    a("  s_barrier")
    for l in [f"  ds_read_b128 {ar(AK+ks*4,4)}, v{VKA+ks} offset:{L_K}" for ks in range(8)]: a(l)
    for kind, i in opt.kvpost:
        emit(dmaK(i) if kind == 'K' else dmaV(i))
    NSTEP = 16
    def readK(i):
        if 'nolds' in opt.bench and i > 1: return []
        return [f"  ds_read_b128 {ar(AK+ks*4,4)}, v{VKA+ks} offset:{L_K+(i%RKN)*8192}" for ks in range(8)]
    def readV(i):
        out = []
        for s in range(2):
            for t in range(4):
                for rd in range(2):
                    out.append(f"  ds_read_b64_tr_b16 {ar(AV+(t*2+s)*4+rd*2,2)}, v{VVA+t} offset:{(i%RVN)*8192+s*4096+rd*2048}")
        return out
    def qk(i, first=False):
        buf = i & 1; out = []
        for qt in range(2):
            for ks in range(8):
                d = vr(VS+buf*32+qt*16, 16)
                c = d if ks > 0 else ("0" if first else vr(VN+qt*16, 16))
                out.append(f"  v_mfma_f32_32x32x16_bf16 {d}, {ar(AK+ks*4,4)}, {ar(AQ+qt*32+ks*4,4)}, {c}")
        return out
    def pv(i):
        buf = i & 1; out = []
        for qt in range(2):
            for s in range(2):
                for t in range(4):
                    d = Oreg(t, qt)
                    c = "0" if (i == 0 and s == 0) else d
                    out.append(f"  v_mfma_f32_32x32x16_bf16 {d}, {ar(AV+(t*2+s)*4,4)}, {vr(VP+buf*16+qt*8+s*4,4)}, {c}")
        return out
    def lmf(i, qt, s):
        buf = i & 1
        d = vr(VLA+qt*4, 4)
        c = "0" if (i == 0 and s == 0) else d
        return f"  v_mfma_f32_16x16x32_bf16 {d}, {vr(VONE,4)}, {vr(VP+buf*16+qt*8+s*4,4)}, {c}"
    def sm(i, qt):
        buf = i & 1
        r0 = VS+buf*32+qt*16
        groups = []
        for k in range(17):
            g = []
            if k < 16: g.append(f"  v_exp_f32 v{r0+k}, v{r0+k}")
            if k == 16 and opt.lmfma: g.append("  s_nop 0")
            if k >= 1 and not opt.lmfma: g.append(f"  v_add_f32 v{VL+qt}, v{VL+qt}, v{r0+k-1}")
            if k >= 2 and k % 2 == 0:
                p = k//2 - 1
                g.append(f"  v_cvt_pk_bf16_f32 v{VP+buf*16+qt*8+p}, v{r0+2*p}, v{r0+2*p+1}")
            groups.append(g)
        return groups
    def block(mfmas, groups, extra, pre=None, extra_start=0, post=None, extra_end=None, extra2=None):
        n = len(mfmas)
        if extra_end is None: extra_end = n
        for i, mf in enumerate(mfmas):
            a(mf)
            if post and i in post: a(post[i])
            if pre and i in pre:
                for l in pre[i]: a(l)
            if groups:
                for l in groups[i]: a(l)
            if extra and extra_start <= i < extra_end:
                span = extra_end - extra_start
                lo = (len(extra) * (i - extra_start)) // span
                hi = (len(extra) * (i - extra_start + 1)) // span
                for l in extra[lo:hi]: a(l)
            if extra2 and i >= extra_end:
                span = n - extra_end
                lo = (len(extra2) * (i - extra_end)) // span
                hi = (len(extra2) * (i - extra_end + 1)) // span
                for l in extra2[lo:hi]: a(l)
        if groups:
            for l in groups[16]: a(l)
    WOLOC = [L_X + u*8192 for u in range(4)] + [L_K + s_*8192 for s_ in range(8)] + [L_V + s_*8192 for s_ in range(4)]
    avail = {u: 0 for u in range(4)}
    for s_ in range(8): avail[4+s_] = 7+s_
    for s_ in range(4): avail[12+s_] = 9+s_
    wo_at = {}
    for u, it in zip(range(16), opt.wosched):
        assert it >= avail[u], (u, it)
        wo_at.setdefault(it, []).append(u)
    sWOp = T0+6
    sMB, sML = T0+13, T0+14
    sMODE = T0+12
    VT4, VT16, VWT = 235, 236, 234
    sOFp = T0+11
    def dmaWO(u):
        out = []
        for ii in range(2):
            out.append(f"  s_add_u32 m0, s{S_LW}, {WOLOC[u] + ii*1024}")
            out.append(f"  s_add_u32 s{S_TILE}, s{sWOp+(u>>2)}, {(u&3)*32768 + ii*4096}")
            out.append(f"  buffer_load_dwordx4 v{VWOD}, {R(R_WO)}, s{S_TILE} offen lds")
        fifo.push(('W', u), 2)
        return out
    tl = {}
    def addt(it, g): tl.setdefault(it, []).append(g)
    if opt.wotouch >= 0:
        addt(opt.wotouch, [f"  s_lshl_b32 s{S_TILE}, s{S_T32}, 2", f"  s_add_u32 s{S_TILE}, s{S_TILE}, s{S_W}", f"  s_lshl_b32 s{S_TILE}, s{S_TILE}, 12",
                           f"  buffer_load_dword v{V_DUM}, v{VWT}, {R(R_WO)}, s{S_TILE} offen"])
    if opt.h1global:
        addt(opt.fltouch, [f"  s_lshl_b32 s{S_TILE}, s{S_BG}, 7", f"  s_add_u32 s{S_TILE}, s{S_TILE}, {F2_OFF}",
                   f"  buffer_load_dword v{V_DUM}, v{V_FL}, {R(R_WS)}, s{S_TILE} offen"])
    if 'notouch2' not in opt.bench and not opt.h1global:
        for n in range(8):
            addt(opt.mbtouch[n * len(opt.mbtouch) // 8], [f"  s_add_u32 s{S_TILE}, s{sMB}, {n*2048}", f"  buffer_load_dword v{V_DUM}, v{VT16}, {R(R_WS)}, s{S_TILE} offen"])
        addt(opt.fltouch, [f"  buffer_load_dword v{V_DUM}, v{VT4}, {R(R_WS)}, s{sML} offen"])
        addt(opt.fltouch, [f"  s_lshl_b32 s{S_TILE}, s{S_BG}, 9", f"  s_add_u32 s{S_TILE}, s{S_TILE}, {F1_OFF}",
                   f"  buffer_load_dword v{V_DUM}, v{VT4}, {R(R_WS)}, s{S_TILE} offen"])
        addt(opt.fltouch, [f"  s_lshl_b32 s{S_TILE}, s{S_BG}, 7", f"  s_add_u32 s{S_TILE}, s{S_TILE}, {F2_OFF}",
                   f"  buffer_load_dword v{V_DUM}, v{V_FL}, {R(R_WS)}, s{S_TILE} offen"])
        if opt.oftouch >= 0:
            addt(opt.oftouch, [f"  buffer_load_dword v{V_DUM}, v{VMBT}, {R(R_WS)}, s{sOFp} offen"])
    dums = [252, 253, 254, 255, 237, 238, 239, 9]
    dcnt = [0]
    def touches(i):
        out = []
        for g in tl.get(i, []):
            d = dums[dcnt[0] % len(dums)] if 'nodumrot' not in opt.bench else V_DUM
            dcnt[0] += 1
            out += [(x.replace(f"buffer_load_dword v{V_DUM},", f"buffer_load_dword v{d},") + (opt.touchfl if "buffer_load" in x else "")) for x in g]; fifo.push('T')
        return out
    if opt.lmfma:
        a(f"  v_and_b32 v4, 15, v0")
        a(f"  v_bfe_u32 v5, v0, 4, 1")
        a(f"  v_cmp_eq_u32 vcc, v4, v5")
        a(f"  v_mov_b32 v6, 0x3f803f80")
        a(f"  s_nop 1")
        a(f"  v_cndmask_b32 v{VONE}, 0, v6, vcc")
        for k in range(1, 4): a(f"  v_mov_b32 v{VONE+k}, v{VONE}")
    if 'tailst' not in opt.bench: stamp(a, "P2 start")
    if 'p2st' in opt.bench: a("  s_memtime s[14:15]")
    if 'slowst' in opt.bench: a("  s_memtime s[100:101]")
    a(f"  s_waitcnt vmcnt({fifo.after(['Q'])}) lgkmcnt(0)")
    k1late = ('K', 1) in opt.kvpost
    assert not k1late
    def prep(qt):
        r = VS + qt*16
        o = [f"  v_max3_f32 v{VM+qt}, v{r}, v{r+1}, v{r+2}"]
        for k in range(3, 15, 2):
            o.append(f"  v_max3_f32 v{VM+qt}, v{VM+qt}, v{r+k}, v{r+k+1}")
        o.append(f"  v_max_f32 v{VM+qt}, v{VM+qt}, v{r+15}")
        o.append(f"  v_mov_b32 v4, v{VM+qt}")
        o.append("  s_nop 1")
        o.append(f"  v_permlane32_swap_b32 v{VM+qt}, v4")
        o.append("  s_nop 1")
        o.append(f"  v_max_f32 v{VM+qt}, v{VM+qt}, v4")
        for k in range(16):
            o.append(f"  v_sub_f32 v{VN+qt*16+k}, 0, v{VM+qt}")
        for k in range(16):
            o.append(f"  v_sub_f32 v{r+k}, v{r+k}, v{VM+qt}")
        return o
    q0 = qk(0, True)
    if opt.fastpro:
        p0 = prep(0)
        for n_, m_ in enumerate(q0):
            a(m_)
            if n_ == 10: a("  s_nop 8")
            if n_ >= 10:
                k = n_ - 10
                emit(p0[len(p0)*k//6: len(p0)*(k+1)//6])
        emit(readK(1))
        a(f"  v_mov_b32 v{VL}, 0")
        a(f"  v_mov_b32 v{VL+1}, 0")
    else:
        emit(q0)
        emit(readK(1))
        a("  s_nop 7")
        emit(prep(0)); emit(prep(1))
        a(f"  v_mov_b32 v{VL}, 0")
        a(f"  v_mov_b32 v{VL+1}, 0")
        for g in sm(0, 0): emit(g)
    allpro = [(k_, i_) for (_, k_, i_) in opt.kvpro] + list(opt.kvmid) + list(opt.kvpost)
    nextK = [1 + max(i_ for k_, i_ in allpro if k_ == 'K')]
    nextV = [1 + max(i_ for k_, i_ in allpro if k_ == 'V')]
    for i in range(NSTEP):
        need = [('V', i)] + ([('K', i+2)] if i+2 < NSTEP else [])
        sync = [f"  s_waitcnt vmcnt({fifo.after(need)}) lgkmcnt(0)", "  s_barrier"]
        dma = []
        cand = []
        if nextK[0] < NSTEP and nextK[0] - RKN <= i + 1: pass
        cnt = 0
        MAXI = opt.maxi[min(i, len(opt.maxi)-1)]
        while cnt < MAXI:
            kfree = nextK[0] < NSTEP and (nextK[0] < RKN or nextK[0] - RKN <= i + 1)
            vfree = nextV[0] < NSTEP and (nextV[0] < RVN or nextV[0] - RVN <= i - 1)
            if not kfree and not vfree: break
            if kfree and (not vfree or nextK[0] - 2 <= nextV[0]):
                dma += dmaK(nextK[0]); nextK[0] += 1
            else:
                dma += dmaV(nextV[0]); nextV[0] += 1
            cnt += 1
        if 'nowo' not in opt.bench:
            for u in wo_at.get(i, []): dma += dmaWO(u)
        dma += touches(i)
        if i + 1 < NSTEP:
            a("  s_waitcnt lgkmcnt(0)")
            rk = readK(i+2) if i+2 < NSTEP else []
            rv = readV(i)
            pst = ({3: lmf(i,0,0), 7: lmf(i,0,1), 11: lmf(i,1,0), 15: lmf(i,1,1)} if opt.lmfma else None)
            gA = sm(i, 1)
            if i == 0 and opt.fastpro:
                seq = [x for g in sm(0, 0) for x in g] + prep(1)
                s1 = sm(0, 1)
                gA = [seq[len(seq)*k//8: len(seq)*(k+1)//8] for k in range(8)]
                gA[7] = gA[7] + ["  s_nop 1"]
                gA += [s1[2*k] + s1[2*k+1] for k in range(8)] + [s1[16]]
            if opt.dmapos == 'B0':
                block(qk(i+1), gA, rv, pre={0: sync}, extra_start=1)
                a("  s_waitcnt lgkmcnt(0)")
                block(pv(i), sm(i+1, 0), dma + rk, extra_start=0, post=pst)
            elif opt.dmapos == 'E':
                block(qk(i+1), gA, rv, pre={0: sync}, extra_start=1, extra_end=opt.vend)
                a("  s_waitcnt lgkmcnt(0)")
                block(pv(i), sm(i+1, 0), rk, extra_start=0, post=pst, extra_end=opt.kend, extra2=dma)
            elif opt.dmapos == 'F':
                block(qk(i+1), gA, rv, pre={0: sync}, extra_start=1, extra_end=opt.vend, extra2=dma)
                a("  s_waitcnt lgkmcnt(0)")
                block(pv(i), sm(i+1, 0), rk, extra_start=0, post=pst, extra_end=opt.kend)
        else:
            last_dma = dma
            last_sync = sync
        if 'p2st' in opt.bench and i in (0, 2, 4, 6, 8, 11, 13): stamp(a, f"it{i} done")
        if 'slowst' in opt.bench and i in (2, 5, 8, 11, 13): stamp(a, f"it{i} done")
    VPK = 32
    OWN = L_V + 5*8192
    VOWN = 8
    def put(regs_off, n_list, qt):
        Lg = newlabel("pg"); Ll = newlabel("pl"); Le = newlabel("pe")
        out = [f"  s_cmp_eq_u32 s{sMODE}, 1", f"  s_cbranch_scc1 {Lg}", f"  s_cmp_eq_u32 s{sMODE}, 2", f"  s_cbranch_scc1 {Ll}"]
        def st(fl):
            o = []
            for n in n_list:
                off = qt*8192 + n*1024
                o.append(f"  s_add_u32 s{T0+4}, s{sMB}, {off}")
                o.append(f"  buffer_store_dwordx4 {vr(regs_off+n*4,4)}, v{V_L16}, {R(R_WS)}, s{T0+4} offen{fl}")
            return o
        out += st("") + [f"  s_branch {Le}", f"{Lg}:"] + st(" sc0 sc1") + [f"  s_branch {Le}", f"{Ll}:"]
        for n in n_list:
            out.append(f"  ds_write_b128 v{VOWN}, {vr(regs_off+n*4,4)} offset:{qt*8192+n*1024}")
        out.append(f"{Le}:")
        return out
    def cvt0(t):
        return [f"  v_cvt_pk_bf16_f32 v{VPK+(t*2+s)*4+p}, v{VO0+t*16+s*8+2*p}, v{VO0+t*16+s*8+2*p+1}" for s in range(2) for p in range(4)]
    def cvt1(t):
        o = [f"  v_accvgpr_read_b32 v{96+k}, a{AO1+t*16+k}" for k in range(16)]
        o += [f"  v_cvt_pk_bf16_f32 v{VPK+32+(t*2+s)*4+p}, v{96+s*8+2*p}, v{96+s*8+2*p+1}" for s in range(2) for p in range(4)]
        return o
    i = NSTEP - 1
    emit(last_sync)
    emit(readV(i))
    a(f"  v_add_u32 v{VOWN}, {hex(OWN)}, v{V_L16}")
    G = sm(i, 1)
    for g in G[:5]: emit(g)
    emit(last_dma)
    a("  s_waitcnt lgkmcnt(0)")
    pvl = pv(i)
    rest = [x for g in G[5:] for x in g]
    for n_, m_ in enumerate(pvl[:8]):
        a(m_)
        if opt.lmfma and n_ in (3, 7): a(lmf(i, 0, n_ >> 2))
        emit(rest[len(rest)*n_//8: len(rest)*(n_+1)//8])
    early = 'noearly' not in opt.bench
    for n_, m_ in enumerate(pvl[8:]):
        a(m_)
        if opt.lmfma and n_ in (0, 4): a(lmf(i, 1, n_ >> 2))
        if early and 2 <= n_ < 6:
            t = n_ - 2
            emit(cvt0(t))
            a("  s_nop 0")
            emit(put(VPK, [2*t, 2*t+1], 0))
    stamp(a, "P2 done")
    if 'slowst' in opt.bench:
        a(f"  s_memtime s[{T0}:{T0+1}]")
        a("  s_waitcnt lgkmcnt(0)")
        k = nstamp[0]; nstamp[0] += 1
        a(f"  s_sub_u32 s{T0}, s{T0}, s100")
        a(f"  s_mul_i32 s{T0}, s{T0}, 100")
        a(f"  s_add_u32 s{S_T+2*k}, s{S_T}, s{T0}")
        a(f"  s_addc_u32 s{S_T+2*k+1}, s{S_T+1}, 0")
    if 'p2st' in opt.bench:
        a(f"  s_memtime s[{T0}:{T0+1}]")
        a("  s_waitcnt lgkmcnt(0)")
        k = nstamp[0]; nstamp[0] += 1
        a(f"  s_sub_u32 s{T0}, s{T0}, s14")
        a(f"  s_mul_i32 s{T0}, s{T0}, 100")
        a(f"  s_add_u32 s{S_T+2*k}, s{S_T}, s{T0}")
        a(f"  s_addc_u32 s{S_T+2*k+1}, s{S_T+1}, 0")
    if 'p2exit' in opt.bench:
        stamp_flush(a); a("L_done:"); a("  s_endpgm"); a(kernel_desc(KNAME, 512, 102, 256)); return a.text()
    def lreduce():
        for qt in range(2):
            a(f"  v_mov_b32 v4, v{VL+qt}")
            a("  s_nop 1")
            a(f"  v_permlane32_swap_b32 v{VL+qt}, v4")
            a("  s_nop 1")
            a(f"  v_add_f32 v{VL+qt}, v{VL+qt}, v4")
    if opt.lmfma:
        a("  s_nop 7")
        for qt in range(2):
            a(f"  v_permlane16_swap_b32 v{VLA+qt*4}, v{VLA+qt*4+1}")
        a("  s_nop 1")
        for qt in range(2):
            a(f"  v_mov_b32 v{VL+qt}, v{VLA+qt*4}")
    else:
        lreduce()
    a(f"  v_max_f32 v4, v{VL}, v{VL+1}")
    a(f"  v_add_f32 v5, v{VL}, v{VL+1}")
    a(f"  s_mov_b32 s{T0}, {f32hex(2.0**24)}")
    a(f"  v_cmp_nge_f32 vcc, s{T0}, v4        ; !(2^24 >= max(l0,l1))")
    a(f"  v_cmp_u_f32 s[{T0+2}:{T0+3}], v5, v5")
    a("  s_nop 4")
    a(f"  s_or_b64 vcc, vcc, s[{T0+2}:{T0+3}]")
    a(f"  s_cselect_b32 s{T0+1}, 1, 0")
    if opt.force_safe:
        a(f"  s_mov_b32 s{T0+1}, 1")
    VOTE = L_V + 4*8192
    a(f"  v_mov_b32 v4, s{T0+1}")
    a(f"  s_lshl_b32 s{T0+2}, s{S_W}, 2")
    a(f"  v_mov_b32 v5, s{T0+2}")
    a(f"  v_add_u32 v5, {hex(VOTE)}, v5")
    a(f"  ds_write_b32 v5, v4")
    def publish_rest(with_q0):
        if with_q0:
            for t in range(4): emit(cvt0(t))
            a("  s_nop 0")
            emit(put(VPK, list(range(8)), 0))
        for t in range(4):
            emit(cvt1(t))
            a("  s_nop 0")
            emit(put(VPK+32, [2*t, 2*t+1], 1))
        a(f"  v_mov_b32 v4, v{VM}")
        a(f"  v_mov_b32 v5, v{VL}")
        a(f"  v_mov_b32 v6, v{VM+1}")
        a(f"  v_mov_b32 v7, v{VL+1}")
        def mlst(fl):
            a(f"  s_mov_b32 exec_hi, 0")
            a(f"  buffer_store_dwordx4 v[4:7], v{V_L16}, {R(R_WS)}, s{sML} offen{fl}")
            a(f"  s_mov_b32 exec_hi, -1")
        if opt.h1global: mlst(" sc0 sc1")
        else: dual(a, mlst)
    a("  s_waitcnt lgkmcnt(0)")
    a("  s_barrier")
    a(f"  v_mov_b32 v1, {hex(VOTE)}")
    a(f"  ds_read_b128 v[240:243], v1")
    publish_rest(not early)
    a(f"  s_lshl_b32 s{T0+2}, s{S_BG}, 9")
    a(f"  s_lshl_b32 s{T0+3}, s{S_W}, 7")
    a(f"  s_add_u32 s{T0+3}, s{T0+3}, s{T0+2}")
    a(f"  s_lshl_b32 s{T0+4}, s{S_J}, 2")
    a(f"  s_add_u32 s{T0+3}, s{T0+3}, s{T0+4}")
    a(f"  s_add_u32 s{T0+3}, s{T0+3}, {F1_OFF}")
    a("  s_waitcnt lgkmcnt(0)")
    a("  v_or_b32 v240, v240, v241")
    a("  v_or3_b32 v240, v240, v242, v243")
    a("  s_nop 0")
    a(f"  v_readfirstlane_b32 s{T0+1}, v240")
    a("  s_nop 3")
    a(f"  s_cmp_lg_u32 s{T0+1}, 0")
    a(f"  s_cbranch_scc1 L_safe")
    a("L_safe_back:")
    a("  s_waitcnt vmcnt(0) lgkmcnt(0)")
    set_flag(a, f"s{T0+3}", always_global=opt.h1global)
    if not ({'tailst','slowst'} & opt.bench): stamp(a, "H1 published")
    a("  s_barrier")
    VPA, VML, VAC = 32, 128, 96
    a(f"  s_lshl_b32 s{T0+4}, s{S_W}, 11")
    a(f"  v_add_u32 v8, s{T0+4}, v{V_L16}")
    a(f"  v_add_u32 v8, {hex(OWN)}, v8")
    a(f"  s_lshl_b32 s{T0+3}, s{S_J}, 7")
    a(f"  s_add_u32 s{T0+3}, s{T0+3}, s{T0+2}")
    a(f"  s_add_u32 s{T0+3}, s{T0+3}, {F1_OFF}")
    for qt in range(2):
        for s in range(2):
            a(f"  ds_read_b128 {vr(208+(qt*2+s)*4,4)}, v8 offset:{qt*8192+s*1024}")
    a(f"  s_lshl_b32 s{T0}, s{S_BG}, 2")
    a(f"  s_add_u32 s{T0}, s{T0}, s{S_J}")
    a(f"  s_lshl_b32 s{T0}, s{T0}, 2             ; (bg*4+j)*4")
    a(f"  s_lshl_b32 s{T0+1}, s{T0}, 14")
    a(f"  s_add_u32 s{T0+1}, s{T0+1}, s{S_LW}    ; + 2w*1024")
    a(f"  s_lshl_b32 s{T0+2}, s{T0}, 9")
    a("  v_and_b32 v2, 31, v0")
    a("  v_lshlrev_b32 v2, 4, v2")
    VWR = 192
    a(f"  s_lshl_b32 s{T0+4}, s{S_W}, 2")
    tr_addr(a, VWR, f"s{T0+4}", True, 'pv', 4)
    a(f"  v_add_u32 v{VWR+1}, 0x10000, v{VWR}")
    a(f"  v_add_u32 v{VWR+2}, 0x20000, v{VWR}")
    for kk in range(32):
        for r_ in range(2):
            off = WOLOC[kk >> 1] + (kk & 1)*4096 + r_*2048
            a(f"  ds_read_b64_tr_b16 {ar(128+kk*4+r_*2,2)}, v{VWR+(off>>16)} offset:{off & 65535}")
        if kk % 4 == 3 and kk < 31:
            a("  s_waitcnt lgkmcnt(4)")
    poll(a, f"s{T0+3}", 4)
    if not ({'tailst','slowst'} & opt.bench): stamp(a, "H1 flags seen")
    for jp in range(4):
        a(f"  s_add_u32 s{T0+3}, s{T0+2}, {WS_ML + jp*512}")
        a(f"  buffer_load_dwordx4 {vr(VML+jp*4,4)}, v2, {R(R_WS)}, s{T0+3} offen sc1")
    for jp in range(4):
        Ls = newlabel("skipown")
        a(f"  s_cmp_eq_u32 s{S_J}, {jp}")
        a(f"  s_cbranch_scc1 {Ls}")
        for qt in range(2):
            for s in range(2):
                a(f"  s_add_u32 s{T0+3}, s{T0+1}, {WS_MB + jp*16384 + qt*8192 + s*1024}")
                a(f"  buffer_load_dwordx4 {vr(VPA+jp*16+(qt*2+s)*4,4)}, v{V_L16}, {R(R_WS)}, s{T0+3} offen sc1")
        a(f"{Ls}:")
    a("  s_waitcnt vmcnt(12)")
    for qt in range(2):
        m = lambda jp: VML+jp*4+qt*2
        l = lambda jp: VML+jp*4+qt*2+1
        a(f"  v_max3_f32 v4, v{m(0)}, v{m(1)}, v{m(2)}")
        a(f"  v_max_f32 v4, v4, v{m(3)}")
        for jp in range(4):
            a(f"  v_sub_f32 v{m(jp)}, v{m(jp)}, v4")
        for jp in range(4):
            a(f"  v_exp_f32 v{m(jp)}, v{m(jp)}")
        a("  s_nop 0")
        a(f"  v_mul_f32 v5, v{m(0)}, v{l(0)}")
        for jp in range(1, 4):
            a(f"  v_fmac_f32 v5, v{m(jp)}, v{l(jp)}")
        a(f"  v_rcp_f32 v5, v5")
        a("  s_nop 0")
        for jp in range(4):
            a(f"  v_mul_f32 v{m(jp)}, v{m(jp)}, v5")
    for jp in range(4):
        Ls = newlabel("ownsc")
        a(f"  s_cmp_lg_u32 s{S_J}, {jp}")
        a(f"  s_cbranch_scc1 {Ls}")
        a(f"  v_mov_b32 v144, v{VML+jp*4}")
        a(f"  v_mov_b32 v146, v{VML+jp*4+2}")
        a(f"{Ls}:")
    a(f"  s_mov_b32 s{T0+4}, 0xffff0000")
    def acc_from(src, sc0, sc1, first):
        k = 0
        for qt in range(2):
            sc = sc0 if qt == 0 else sc1
            for s in range(2):
                for p in range(4):
                    r = src + (qt*2+s)*4 + p
                    d = VAC + qt*16 + s*8 + 2*p
                    t = 4 + 2*(k & 1); k += 1
                    a(f"  v_lshlrev_b32 v{t}, 16, v{r}")
                    a(f"  v_and_b32 v{t+1}, s{T0+4}, v{r}")
                    if first:
                        a(f"  v_pk_mul_f32 v[{d}:{d+1}], v[{t}:{t+1}], v[{sc}:{sc+1}] op_sel_hi:[1,0]")
                    else:
                        a(f"  v_pk_fma_f32 v[{d}:{d+1}], v[{t}:{t+1}], v[{sc}:{sc+1}], v[{d}:{d+1}] op_sel_hi:[1,0,1]")
    a("  s_waitcnt lgkmcnt(0)")
    acc_from(208, 144, 146, True)
    a("  s_waitcnt vmcnt(0)")
    for jp in range(4):
        Ls = newlabel("skipown2")
        a(f"  s_cmp_eq_u32 s{S_J}, {jp}")
        a(f"  s_cbranch_scc1 {Ls}")
        acc_from(VPA+jp*16, VML+jp*4, VML+jp*4+2, False)
        a(f"{Ls}:")
    VOF = 176
    for qt in range(2):
        for s in range(2):
            for p in range(4):
                r = VAC + qt*16 + s*8 + 2*p
                a(f"  v_cvt_pk_bf16_f32 v{VOF+(qt*2+s)*4+p}, v{r}, v{r+1}")
    a(f"  s_lshl_b32 s{T0}, s{S_B}, 5")
    a(f"  s_lshl_b32 s{T0+1}, s{S_G}, 2")
    a(f"  s_add_u32 s{T0}, s{T0}, s{T0+1}       ; b*32+4g")
    def ofst(fl):
        for qt in range(2):
            for s in range(2):
                a(f"  s_add_u32 s{T0+2}, s{sOFp}, {qt*8192+s*1024}")
                a(f"  buffer_store_dwordx4 {vr(VOF+(qt*2+s)*4,4)}, v{V_L16}, {R(R_WS)}, s{T0+2} offen{fl}")
    dual(a, ofst)
    a("  s_barrier")
    a(f"  v_add_u32 v8, s{S_LW}, v{V_L16}")
    for qt in range(2):
        for s in range(2):
            a(f"  ds_write_b128 v8, {vr(VOF+(qt*2+s)*4,4)} offset:{qt*8192+s*1024}")
    a(f"  s_lshl_b32 s{T0+2}, s{S_BG}, 7")
    a(f"  s_lshl_b32 s{T0+3}, s{S_J}, 4")
    a(f"  s_add_u32 s{T0+3}, s{T0+3}, s{T0+2}")
    a(f"  s_lshl_b32 s{T0+4}, s{S_W}, 2")
    a(f"  s_add_u32 s{T0+3}, s{T0+3}, s{T0+4}")
    a(f"  s_add_u32 s{T0+3}, s{T0+3}, {F2_OFF}")
    a("  s_waitcnt vmcnt(0)")
    set_flag(a, f"s{T0+3}")
    stamp(a, "OF published")
    a("  s_waitcnt lgkmcnt(0)")
    a("  s_barrier")
    ACC = 128
    NB = 6
    def rdB(kk):
        p, ks = kk >> 3, kk & 7
        return [f"  ds_read_b128 {vr(32+((kk%NB)*2+qt)*4,4)}, v{V_L16} offset:{(p*16+qt*8+ks)*1024}" for qt in range(2)]
    def gemm(k0, k1):
        for kk in range(k0, min(k0+NB-1, k1)): emit(rdB(kk))
        for kk in range(k0, k1):
            if kk + NB - 1 < k1:
                emit(rdB(kk+NB-1))
                a(f"  s_waitcnt lgkmcnt({2*(NB-1)})")
            else:
                a(f"  s_waitcnt lgkmcnt({2*(k1-1-kk)})")
            for qt in range(2):
                c = vr(ACC+16*qt,16) if kk else "0"
                a(f"  v_mfma_f32_32x32x16_bf16 {vr(ACC+16*qt,16)}, {ar(128+kk*4,4)}, {vr(32+((kk%NB)*2+qt)*4,4)}, {c}")
    gemm(0, 8)
    a(f"  s_add_u32 s{T0+3}, s{T0+2}, {F2_OFF}")
    poll(a, f"s{T0+3}", 16)
    if 'slowst' not in opt.bench: stamp(a, "H2 flags seen")
    a(f"  s_lshl_b32 s{T0+2}, s{S_W}, 12        ; w*4096")
    for p in range(1, 4):
        a(f"  s_add_u32 s{T0+1}, s{S_J}, {p}")
        a(f"  s_and_b32 s{T0+1}, s{T0+1}, 3")
        a(f"  s_add_u32 s{T0+1}, s{T0+1}, s{T0}")
        a(f"  s_lshl_b32 s{T0+1}, s{T0+1}, 14")
        a(f"  s_add_u32 s{T0+1}, s{T0+1}, s{T0+2}")
        for n in range(4):
            a(f"  s_add_u32 m0, s{T0+2}, {p*16384 + n*1024}")
            a(f"  s_add_u32 s{T0+3}, s{T0+1}, {WS_OF + n*1024}")
            a(f"  buffer_load_dwordx4 v{V_L16}, {R(R_WS)}, s{T0+3} offen sc1 lds")
    a("  s_waitcnt vmcnt(0)")
    a("  s_barrier")
    if 'tailst' in opt.bench: stamp(a, "OF landed"); a("  s_waitcnt lgkmcnt(0)")
    a(f"  s_lshl_b32 s{T0}, s{S_B}, 2")
    a(f"  s_add_u32 s{T0}, s{T0}, s{S_J}        ; b*4+j")
    a(f"  s_lshl_b32 s{T0+1}, s{T0}, 3")
    a(f"  s_add_u32 s{T0+1}, s{T0+1}, s{S_G}")
    a(f"  s_lshl_b32 s{T0+1}, s{T0+1}, 15")
    a(f"  s_lshl_b32 s{T0+2}, s{S_W}, 13")
    a(f"  s_add_u32 s{T0+1}, s{T0+1}, s{T0+2}")
    def postore(n):
        off = n*1024
        o = []
        if (off & 4095) == 0:
            o.append(f"  s_add_u32 s{T0+2}, s{T0+1}, {WS_PO + off}")
        o.append(f"  buffer_store_dwordx4 {vr(ACC+n*4,4)}, v{V_L16}, {R(R_WS)}, s{T0+2} offen offset:{off & 4095} sc0 sc1")
        return o
    if opt.gemmq:
        NB2 = 12
        seq = [(kk, qt) for qt in range(2) for kk in range(8, 32)]
        def rd1(n):
            kk, qt = seq[n]; p, ks = kk >> 3, kk & 7
            return f"  ds_read_b128 {vr(32+(n%NB2)*4,4)}, v{V_L16} offset:{(p*16+qt*8+ks)*1024}"
        for n in range(NB2-1): a(rd1(n))
        for n, (kk, qt) in enumerate(seq):
            if n + NB2 - 1 < len(seq):
                a(rd1(n+NB2-1))
                a(f"  s_waitcnt lgkmcnt({NB2-1})")
            else:
                a(f"  s_waitcnt lgkmcnt({len(seq)-1-n})")
            a(f"  v_mfma_f32_32x32x16_bf16 {vr(ACC+16*qt,16)}, {ar(128+kk*4,4)}, {vr(32+(n%NB2)*4,4)}, {vr(ACC+16*qt,16)}")
            if qt == 1 and 30 <= n < 34:
                emit(postore(n - 30))
        if 'tailst' in opt.bench: stamp(a, "gemm done")
        a("  s_nop 11")
        for n in range(4, 8): emit(postore(n))
    else:
        gemm(8, 32)
        if 'tailst' in opt.bench: stamp(a, "gemm done")
        a("  s_nop 11")
        for n in range(8): emit(postore(n))
    if 'tailst' in opt.bench: stamp(a, "PO stores issued")
    a("  s_waitcnt vmcnt(0)")
    a(f"  s_lshl_b32 s{T0+2}, s{T0}, 9")
    a(f"  s_lshl_b32 s{T0+3}, s{S_W}, 7")
    a(f"  s_add_u32 s{T0+3}, s{T0+3}, s{T0+2}")
    a(f"  s_lshl_b32 s{T0+4}, s{S_G}, 2")
    a(f"  s_add_u32 s{T0+3}, s{T0+3}, s{T0+4}")
    a(f"  s_add_u32 s{T0+3}, s{T0+3}, {F3_OFF}")
    set_flag(a, f"s{T0+3}", always_global=True)
    if 'slowst' not in opt.bench: stamp(a, "PO published")
    a(f"  s_lshr_b32 s{T0+3}, s{S_G}, 1")
    a(f"  s_lshl_b32 s{T0+3}, s{T0+3}, 7")
    a(f"  s_add_u32 s{T0+3}, s{T0+3}, s{T0+2}")
    a(f"  s_add_u32 s{T0+3}, s{T0+3}, {F3_OFF}")
    a(f"  s_lshl_b32 s{T0}, s{T0}, 18")
    a(f"  s_lshl_b32 s{T0+1}, s{S_G}, 12")
    a(f"  s_add_u32 s{T0}, s{T0}, s{T0+1}")
    a(f"  s_lshl_b32 s{T0+2}, s{S_W}, 10")
    a(f"  s_add_u32 s{T0}, s{T0}, s{T0+2}")
    if opt.progressive:
        Lp = newlabel("p5"); Lx = newlabel("p5x")
        sDONE, sNEW = T0+5, T0+6
        a(f"  s_mov_b32 s{sDONE}, 0")
        a(f"  s_mov_b32 s{S_SPIN}, {opt.timeout}")
        a(f"{Lp}:")
        a(f"  buffer_load_dword v4, v{V_FL}, {R(R_WS)}, s{T0+3} offen sc1")
        a(f"  s_sub_u32 s{S_SPIN}, s{S_SPIN}, 1")
        a(f"  s_cbranch_scc1 {Lx}")
        a(f"  s_waitcnt vmcnt(0)")
        a(f"  v_cmp_eq_u32 vcc, s{S_N}, v4")
        a(f"  s_nop 4")
        a(f"  s_andn2_b32 s{sNEW}, vcc_lo, s{sDONE}")
        a(f"  s_and_b32 s{sNEW}, s{sNEW}, 0xff")
        a(f"  s_or_b32 s{sDONE}, s{sDONE}, s{sNEW}")
        for gp in range(8):
            Ls = newlabel("p5s")
            a(f"  s_bitcmp1_b32 s{sNEW}, {gp}")
            a(f"  s_cbranch_scc0 {Ls}")
            a(f"  s_add_u32 s{T0+2}, s{T0}, {WS_PO + gp*32768}")
            a(f"  buffer_load_dwordx4 {vr(16+gp*4,4)}, v{V_L16}, {R(R_WS)}, s{T0+2} offen sc1")
            a(f"{Ls}:")
        a(f"  s_cmp_lg_u32 s{sDONE}, 0xff")
        a(f"  s_cbranch_scc1 {Lp}")
        a(f"{Lx}:")
        if 'tailst' in opt.bench: stamp(a, "H3 flags seen")
    else:
        poll(a, f"s{T0+3}", 8)
        if 'tailst' in opt.bench: stamp(a, "H3 flags seen")
        for gp in range(8):
            a(f"  s_add_u32 s{T0+2}, s{T0}, {WS_PO + gp*32768}")
            a(f"  buffer_load_dwordx4 {vr(16+gp*4,4)}, v{V_L16}, {R(R_WS)}, s{T0+2} offen sc1")
    srd(a, R_OUT, P_OUT, None, "0x80000")
    a(f"  s_lshl_b32 s{T0+3}, s{S_B}, 6")
    a(f"  s_and_b32 s{T0+4}, s{S_G}, 1")
    a(f"  s_lshl_b32 s{T0+4}, s{T0+4}, 5")
    a(f"  s_add_u32 s{T0+3}, s{T0+3}, s{T0+4}")
    a(f"  s_lshl_b32 s{T0+3}, s{T0+3}, 10")
    a(f"  s_lshl_b32 s{T0+4}, s{S_J}, 7")
    a(f"  s_lshr_b32 s{T0+5}, s{S_G}, 1")
    a(f"  s_lshl_b32 s{T0+5}, s{T0+5}, 5")
    a(f"  s_add_u32 s{T0+4}, s{T0+4}, s{T0+5}")
    a(f"  s_lshr_b32 s{T0+5}, s{S_W}, 1")
    a(f"  s_lshl_b32 s{T0+5}, s{T0+5}, 4")
    a(f"  s_add_u32 s{T0+4}, s{T0+4}, s{T0+5}")
    a(f"  s_and_b32 s{T0+5}, s{S_W}, 1")
    a(f"  s_lshl_b32 s{T0+5}, s{T0+5}, 2")
    a(f"  s_add_u32 s{T0+4}, s{T0+4}, s{T0+5}")
    a(f"  s_lshl_b32 s{T0+4}, s{T0+4}, 1")
    a(f"  s_add_u32 s{T0+3}, s{T0+3}, s{T0+4}")
    a("""  v_and_b32 v2, 31, v0
  v_lshrrev_b32 v3, 5, v0
  v_lshlrev_b32 v2, 10, v2
  v_lshl_add_u32 v2, v3, 4, v2""")
    a("  s_waitcnt vmcnt(0)")
    if 'tailst' in opt.bench: stamp(a, "PO loaded")
    for k in range(4):
        for gp in range(1, 8):
            a(f"  v_add_f32 v{16+k}, v{16+k}, v{16+gp*4+k}")
    a("  v_cvt_pk_bf16_f32 v4, v16, v17")
    a("  v_cvt_pk_bf16_f32 v5, v18, v19")
    a("  s_nop 1")
    a(f"  buffer_store_dwordx2 v[4:5], v2, {R(R_OUT)}, s{T0+3} offen")
    if opt.stamps:
        a("  s_waitcnt vmcnt(0)")
        stamp(a, "end")
        stamp_flush(a)
        if 'dbgst' in opt.bench:
            a("  s_cmp_lg_u32 s3, 0")
            a("  s_cbranch_scc1 L_done")
            for wg, base, idx in [(0, 1, [1, 3, 4, 5, 7, 9, 10]), (133, 8, [1, 3, 4, 5, 7, 9, 10])]:
                Lx = newlabel("dbg")
                a(f"  s_cmp_lg_u32 s2, {wg}")
                a(f"  s_cbranch_scc1 {Lx}")
                a("  s_mov_b64 exec, 1")
                for n_, k in enumerate(idx):
                    a(f"  s_sub_u32 s{T0}, s{S_T+2*k}, s{S_T}")
                    a(f"  v_mov_b32 v4, s{T0}")
                    a(f"  v_mov_b32 v5, {4*(base+n_)}")
                    a(f"  buffer_store_dword v4, v5, {R(R_DBG)}, 0 offen")
                    a("  s_nop 1")
                a(f"{Lx}:")
    a("L_done:")
    a("  s_endpgm")
    a("L_safe:")
    SK, SV = L_V + 6*8192, L_V + 7*8192
    a("  s_waitcnt vmcnt(0)")
    a("  s_barrier")
    for ks in range(8):
        a(f"  v_add_u32 v{224+ks}, {hex(SK)}, v{VKA+ks}")
    for qt in range(2):
        a(f"  v_mov_b32 v{VM+qt}, 0xff800000      ; -inf")
        a(f"  v_mov_b32 v{VL+qt}, 0")
    for r in range(64):
        a(f"  v_mov_b32 v{VO0+r}, 0")
        a(f"  v_accvgpr_write_b32 a{AO1+r}, 0")
    sI = 7
    a(f"  s_mov_b32 s{sI}, 0")
    a("L_safe_loop:")
    a(f"  s_add_u32 m0, s{S_LW}, {SK}")
    a(f"  s_nop 0")
    for ii in range(2):
        a(f"  buffer_load_dwordx4 v{VKD+ii}, {R(R_K)}, s{sI} offen offset:{ii*1024} lds")
    a(f"  s_add_u32 m0, s{S_LW}, {SV}")
    a(f"  s_nop 0")
    for ii in range(2):
        a(f"  buffer_load_dwordx4 v{VVD}, {R(R_V)}, s{sI} offen offset:{ii*1024} lds")
    a("  s_waitcnt vmcnt(0)")
    a("  s_barrier")
    for ks in range(8):
        a(f"  ds_read_b128 {ar(AK+ks*4,4)}, v{224+ks}")
    for s in range(2):
        for t in range(4):
            for rd in range(2):
                a(f"  ds_read_b64_tr_b16 {ar(AV+(t*2+s)*4+rd*2,2)}, v{VVA+t} offset:{7*8192+s*4096+rd*2048}")
    a("  s_waitcnt lgkmcnt(0)")
    a("  s_barrier")
    for qt in range(2):
        for ks in range(8):
            d = vr(VS+qt*16, 16)
            a(f"  v_mfma_f32_32x32x16_bf16 {d}, {ar(AK+ks*4,4)}, {ar(AQ+qt*32+ks*4,4)}, {d if ks else '0'}")
    a("  s_nop 15")
    for qt in range(2):
        r = VS + qt*16
        a(f"  v_max3_f32 v4, v{r}, v{r+1}, v{r+2}")
        for k in range(3, 15, 2):
            a(f"  v_max3_f32 v4, v4, v{r+k}, v{r+k+1}")
        a(f"  v_max_f32 v4, v4, v{r+15}")
        a(f"  v_mov_b32 v5, v4")
        a("  s_nop 1")
        a(f"  v_permlane32_swap_b32 v4, v5")
        a("  s_nop 1")
        a(f"  v_max3_f32 v4, v4, v5, v{VM+qt}")
        a(f"  v_sub_f32 v5, v{VM+qt}, v4")
        a(f"  v_exp_f32 v5, v5")
        a(f"  v_mov_b32 v{VM+qt}, v4")
        a(f"  v_mul_f32 v{VL+qt}, v{VL+qt}, v5")
        for k in range(16):
            a(f"  v_sub_f32 v{r+k}, v{r+k}, v4")
        for k in range(16):
            a(f"  v_exp_f32 v{r+k}, v{r+k}")
        a("  s_nop 0")
        for k in range(16):
            a(f"  v_add_f32 v{VL+qt}, v{VL+qt}, v{r+k}")
        for p in range(8):
            a(f"  v_cvt_pk_bf16_f32 v{VP+qt*8+p}, v{r+2*p}, v{r+2*p+1}")
        for t in range(4):
            for k in range(16):
                if qt == 0:
                    a(f"  v_mul_f32 v{VO0+t*16+k}, v{VO0+t*16+k}, v5")
                else:
                    a(f"  v_accvgpr_read_b32 v6, a{AO1+t*16+k}")
                    a(f"  v_mul_f32 v6, v6, v5")
                    a(f"  v_accvgpr_write_b32 a{AO1+t*16+k}, v6")
    a("  s_nop 1")
    for qt in range(2):
        for s in range(2):
            for t in range(4):
                d = Oreg(t, qt)
                a(f"  v_mfma_f32_32x32x16_bf16 {d}, {ar(AV+(t*2+s)*4,4)}, {vr(VP+qt*8+s*4,4)}, {d}")
    a(f"  s_add_u32 s{sI}, s{sI}, 8192")
    a(f"  s_cmp_lt_u32 s{sI}, {16*8192}")
    a("  s_nop 15")
    a(f"  s_cbranch_scc1 L_safe_loop")
    lreduce()
    a("  s_nop 7")
    a("  s_barrier")
    a(f"  v_add_u32 v{VOWN}, {hex(OWN)}, v{V_L16}")
    publish_rest(True)
    a(f"  s_lshl_b32 s{T0+2}, s{S_BG}, 9")
    a(f"  s_lshl_b32 s{T0+3}, s{S_W}, 7")
    a(f"  s_add_u32 s{T0+3}, s{T0+3}, s{T0+2}")
    a(f"  s_lshl_b32 s{T0+4}, s{S_J}, 2")
    a(f"  s_add_u32 s{T0+3}, s{T0+3}, s{T0+4}")
    a(f"  s_add_u32 s{T0+3}, s{T0+3}, {F1_OFF}")
    a("  s_branch L_safe_back")
    a(kernel_desc(KNAME, 512, 102, 256))
    return a.text()

if __name__ == "__main__":
    import argparse
    ap = argparse.ArgumentParser()
    ap.add_argument("out")
    ap.add_argument("--nostamps", action="store_true")
    ap.add_argument("--plain", action="store_true")
    ap.add_argument("--global_", action="store_true")
    ap.add_argument("--safe", action="store_true")
    ap.add_argument("--nolmfma", action="store_true")
    ap.add_argument("--noprog", action="store_true")
    ap.add_argument("--nogemmq", action="store_true")
    ap.add_argument("--nofastpro", action="store_true")
    ap.add_argument("--touchfl", type=str, default="")
    ap.add_argument("--h1global", action="store_true")
    ap.add_argument("--dmapos", type=str, default="E")
    ap.add_argument("--vend", type=int, default=12)
    ap.add_argument("--kend", type=int, default=8)
    ap.add_argument("--hlat", type=int, default=6)
    ap.add_argument("--bench", type=str, default="")
    ap.add_argument("--tstart", type=int, default=11)
    ap.add_argument("--maxi", type=str, default="3,3,2")
    ap.add_argument("--kvpro", type=str, default="")
    ap.add_argument("--kvpost", type=str, default="")
    ap.add_argument("--kvmid", type=str, default="")
    ap.add_argument("--wosched", type=str, default="")
    ap.add_argument("--mbtouch", type=str, default="")
    ap.add_argument("--oftouch", type=int, default=-1)
    ap.add_argument("--fltouch", type=int, default=7)
    ap.add_argument("--wostart", type=int, default=10)
    ap.add_argument("--woper", type=int, default=3)
    x = ap.parse_args()
    opt.stamps = not x.nostamps
    opt.nt = "" if x.plain else " nt"
    opt.force_global = x.global_
    opt.force_safe = x.safe
    opt.lmfma = not x.nolmfma
    opt.progressive = not x.noprog
    opt.gemmq = not x.nogemmq
    opt.fastpro = not x.nofastpro
    opt.touchfl = (' ' + x.touchfl.replace('_', ' ')) if x.touchfl else ''
    opt.h1global = x.h1global
    opt.dmapos = x.dmapos
    opt.vend = x.vend
    opt.kend = x.kend
    opt.hlat = x.hlat
    opt.tstart = x.tstart
    if x.wosched: opt.wosched = [int(t) for t in x.wosched.split(',')]
    if x.mbtouch: opt.mbtouch = [int(t) for t in x.mbtouch.split(',')]
    opt.oftouch = x.oftouch
    opt.fltouch = x.fltouch
    opt.wostart = x.wostart
    opt.woper = x.woper
    opt.maxi = [int(t) for t in x.maxi.split(',')]
    if x.kvpro: opt.kvpro = [(int(t[0]), t[1], int(t[2:])) for t in x.kvpro.split(',')]
    if x.kvmid: opt.kvmid = [(t[0], int(t[1:])) for t in x.kvmid.split(',')]
    if x.kvpost: opt.kvpost = [(t[0], int(t[1:])) for t in x.kvpost.split(',')]
    opt.bench = set(x.bench.split(",")) if x.bench else set()
    open(x.out, "w").write(build())
```
